```python
import torch

def _softmax(x, axis=-1):
    return torch.softmax(x, dim=axis)
def _gelu(x):
    return torch.nn.functional.gelu(x, approximate="tanh")
def _silu(x):
    return torch.nn.functional.silu(x)
def _sigmoid(x):
    return torch.sigmoid(x)
def _layernorm(x, axis=-1, eps=1e-5):
    m = x.mean(dim=axis, keepdim=True)
    v = x.var(dim=axis, keepdim=True, unbiased=False)
    return (x - m) / torch.sqrt(v + eps)
def _scatter_add(tgt, idx, src, axis=0):
    return tgt.clone().index_add_(axis, idx, src)
def _segment_sum(src, seg, n):
    out = torch.zeros((n,) + src.shape[1:], dtype=src.dtype)
    return out.index_add_(0, seg, src)
def _pad(x, pw):
    flat = tuple(v for pair in reversed(pw) for v in pair)
    return torch.nn.functional.pad(x, flat)

kernel_name = 'interleave_layers__sliding_block__glu_gated_swiglu__prompt'

def setup_inputs():

    _w = (lambda a: (lambda t: t.to(torch.bfloat16) if t.is_floating_point() else t)(torch.as_tensor(a)))
    def _A_setup():
        B, S, D = 1, 2048, 448
        return {
            "x": _w((lambda *s: torch.randn(*s, dtype=torch.bfloat16) * 0.05)(B, S, D)),
            "wqkv": _w((lambda *s: torch.randn(*s, dtype=torch.bfloat16) * 0.05)(D, 3 * D)),
            "wo": _w((lambda *s: torch.randn(*s, dtype=torch.bfloat16) * 0.05)(D, D)),
        }
    _A_in = _A_setup()

    def _B_setup():
        B, S, D, F = 1, 2048, 448, 1792
        return {
            "x": _w((lambda *s: torch.randn(*s, dtype=torch.bfloat16) * 0.05)(B, S, D)),
            "w1": _w((lambda *s: torch.randn(*s, dtype=torch.bfloat16) * 0.8)(D, F) * (2.0 / D) ** 0.5),
            "w3": _w((lambda *s: torch.randn(*s, dtype=torch.bfloat16) * 0.8)(D, F) * (2.0 / D) ** 0.5),
            "w2": _w((lambda *s: torch.randn(*s, dtype=torch.bfloat16) * 0.8)(F, D) * (2.0 / F) ** 0.5),
        }
    _B_in = _B_setup()

    return {
        "A_x": _A_in["x"],
        "A_wqkv": _A_in["wqkv"],
        "A_wo": _A_in["wo"],
        "B_x": _B_in["x"],
        "B_w1": _B_in["w1"],
        "B_w3": _B_in["w3"],
        "B_w2": _B_in["w2"],
    }

def reference(A_x, A_wqkv, A_wo, B_x, B_w1, B_w3, B_w2):
    def _A_ref(x, wqkv, wo):
        B, S, D = x.shape
        H = 16; Dh = D // H; W = 256
        qkv = (lambda x, *d: x.permute(*d))((x @ wqkv).reshape(B, S, 3, H, Dh), 2, 0, 3, 1, 4)
        q, k, v = qkv[0], qkv[1], qkv[2]
        scores = torch.einsum("bhqd,bhkd->bhqk", q, k) * (Dh ** -0.5)
        idx = torch.arange(S)
        mask = (idx[:, None] - idx[None, :] >= 0) & (idx[:, None] - idx[None, :] < W)
        scores = torch.where(mask[None, None], scores, -1e9)
        p = _softmax(scores, axis=-1)
        o = torch.einsum("bhqk,bhkd->bhqd", p, v)
        return (lambda x, *d: x.permute(*d))(o, 0, 2, 1, 3).reshape(B, S, D) @ wo

    def _B_ref(x, w1, w3, w2):
        gate = torch.einsum("bsd,df->bsf", x, w1)
        up = torch.einsum("bsd,df->bsf", x, w3)
        h = _silu(gate) * up
        out = torch.einsum("bsf,fd->bsd", h, w2)
        return out

    x = A_x
    x = x + _A_ref(_layernorm(x, axis=-1), A_wqkv, A_wo)
    x = x + _B_ref(_layernorm(x, axis=-1), B_w1, B_w3, B_w2)
    x = x + _A_ref(_layernorm(x, axis=-1), A_wqkv, A_wo)
    x = x + _B_ref(_layernorm(x, axis=-1), B_w1, B_w3, B_w2)
    return x
```

```python
import re

REG_RE = re.compile(r'^(-|abs\()?([vas])(\d+)\)?$')
RNG_RE = re.compile(r'^(-)?([vas])\[(\d+):(\d+)\]$')

TRANS = ('v_exp_f32', 'v_log_f32', 'v_rcp_f32', 'v_rsq_f32', 'v_sqrt_f32', 'v_sin_f32', 'v_cos_f32')


def parse_operand(op):
    op = op.strip()
    m = REG_RE.match(op)
    if m:
        return [(m.group(2), int(m.group(3)))]
    m = RNG_RE.match(op)
    if m:
        return [(m.group(2), i) for i in range(int(m.group(3)), int(m.group(4)) + 1)]
    if op == 'vcc':
        return [('s', 106), ('s', 107)]
    if op == 'vcc_lo':
        return [('s', 106)]
    if op == 'vcc_hi':
        return [('s', 107)]
    if op == 'exec':
        return [('s', 126), ('s', 127)]
    if op == 'm0':
        return [('s', 124)]
    return []


class Ins:
    __slots__ = ('text', 'mn', 'ops', 'mods', 'reads', 'writes', 'kind', 'tok', 'counted', 'srcc', 'comment')

    def __init__(self, text, tok=None, counted=True):
        self.text = text
        self.tok = tok
        self.counted = counted
        self.srcc = []
        t = text.split(';')[0].strip()
        if t.endswith(':') or t.startswith('.') or t.startswith('@'):
            self.mn = t
            self.kind = 'label' if t.endswith(':') else ('pseudo' if t.startswith('@') else 'dir')
            self.ops = []
            self.reads = []
            self.writes = []
            return
        parts = t.split(None, 1)
        self.mn = mn = parts[0]
        rest = parts[1] if len(parts) > 1 else ''
        ops = []
        cur = ''
        depth = 0
        for ch in rest:
            if ch == '[':
                depth += 1
            if ch == ']':
                depth -= 1
            if ch == ',' and depth == 0:
                ops.append(cur.strip())
                cur = ''
            else:
                cur += ch
        last = cur.strip()
        mods = ''
        if last:
            lp = last.split(None, 1)
            ops.append(lp[0])
            mods = lp[1] if len(lp) > 1 else ''
        self.ops = ops
        self.mods = mods
        R = [parse_operand(o) for o in ops]
        flat = lambda l: [x for y in l for x in y]
        reads, writes = [], []
        if mn.startswith('v_mfma'):
            self.kind = 'mfma'
            writes = R[0]
            reads = flat(R[1:])
            self.srcc = R[3]
        elif mn.startswith('buffer_load') or mn.startswith('global_load'):
            self.kind = 'vmem'
            if ' lds' in (' ' + mods) or mn.startswith('global_load_lds'):
                reads = flat(R) + [('s', 124)]
                self.kind = 'vmem_lds'
            else:
                writes = R[0]
                reads = flat(R[1:])
                if 'd16' in mn:
                    reads = reads + R[0]
        elif mn.startswith('buffer_store') or mn.startswith('global_store') or mn.startswith('global_atomic') or mn.startswith('buffer_atomic'):
            self.kind = 'vmem_st'
            reads = flat(R)
        elif mn.startswith('buffer_'):
            self.kind = 'vmem_st'
        elif mn.startswith('ds_read') or mn.startswith('ds_bpermute') or mn.startswith('ds_swizzle'):
            self.kind = 'ds'
            writes = R[0]
            reads = flat(R[1:])
        elif mn.startswith('ds_'):
            self.kind = 'ds_st'
            reads = flat(R)
        elif mn.startswith('s_load') or mn.startswith('s_memtime') or mn.startswith('s_memrealtime'):
            self.kind = 'smem'
            writes = R[0]
            reads = flat(R[1:])
        elif mn.startswith('s_'):
            self.kind = 'salu'
            if mn in ('s_waitcnt', 's_barrier', 's_nop', 's_endpgm', 's_branch', 's_sleep', 's_setprio') or mn.startswith('s_cbranch'):
                pass
            elif mn.startswith('s_cmp'):
                reads = flat(R)
            else:
                writes = R[0]
                reads = flat(R[1:])
                if 'saveexec' in mn:
                    writes = writes + [('s', 126), ('s', 127)]
        elif mn.startswith('v_'):
            self.kind = 'valu'
            if mn.startswith('v_cmp'):
                writes = R[0]
                reads = flat(R[1:])
            elif mn.startswith('v_permlane32_swap') or mn.startswith('v_permlane16_swap') or mn.startswith('v_swap'):
                writes = flat(R)
                reads = flat(R)
            elif mn in ('v_add_co_u32', 'v_sub_co_u32', 'v_addc_co_u32', 'v_mad_u64_u32'):
                writes = R[0] + R[1]
                reads = flat(R[2:])
            else:
                writes = R[0]
                reads = flat(R[1:])
                if mn.startswith('v_fmac') or mn.startswith('v_dot2c') or '_dpp' in mn:
                    reads = reads + R[0]
                if mn.startswith('v_cndmask') and len(ops) == 3:
                    reads = reads + [('s', 106), ('s', 107)]
        else:
            raise ValueError('unknown instr ' + text)
        self.reads = reads
        self.writes = writes


def mfma_passes(mn):
    if '32x32x16' in mn:
        return 8
    if '16x16x32' in mn:
        return 4
    raise ValueError(mn)


class Asm:
    def __init__(self):
        self.ins = []
        self.ntok = 0
        self.uncounted = False

    def __call__(self, text, tok=None):
        for line in text.split('\n'):
            line = line.strip()
            if not line:
                continue
            self.ins.append(Ins(line, tok=tok, counted=not self.uncounted))

    def tok(self):
        self.ntok += 1
        return self.ntok

    def wait_tok(self, *toks):
        self.ins.append(Ins('@waittok ' + ' '.join(str(t) for t in toks)))

    def drain(self, vm=True, lgkm=True):
        self.ins.append(Ins('@drain %d %d' % (vm, lgkm)))

    def forget(self):
        self.ins.append(Ins('@forget'))

    def extend(self, ins):
        self.ins.extend(ins)

    def insert_waits(self):
        out = []
        vmq = []
        lgq = []

        def emit_wait(vm=None, lg=None):
            parts = []
            if vm is not None:
                parts.append('vmcnt(%d)' % min(vm, 63))
            if lg is not None:
                parts.append('lgkmcnt(%d)' % min(lg, 15))
            out.append(Ins('s_waitcnt ' + ' '.join(parts)))

        def vm_need(idx):
            n = sum(1 for e in vmq[idx + 1:] if e['counted'])
            return n

        for I in self.ins:
            if I.kind == 'pseudo':
                w = I.text.split()
                if w[0] == '@waittok':
                    toks = set(int(x) for x in w[1:])
                    idx = -1
                    for k, e in enumerate(vmq):
                        if e['tok'] in toks:
                            idx = k
                    if idx >= 0:
                        n = vm_need(idx)
                        assert n <= 63, 'vmcnt overflow in waittok'
                        emit_wait(vm=n)
                        del vmq[:idx + 1]
                elif w[0] == '@drain':
                    vm = 0 if int(w[1]) else None
                    lg = 0 if int(w[2]) else None
                    emit_wait(vm, lg)
                    if vm is not None:
                        vmq.clear()
                    if lg is not None:
                        lgq.clear()
                elif w[0] == '@forget':
                    vmq.clear()
                    lgq.clear()
                continue
            if I.kind in ('label', 'dir'):
                out.append(I)
                continue
            touched = set(I.reads) | set(I.writes)
            vi = -1
            for k, e in enumerate(vmq):
                if e['writes'] & touched:
                    vi = k
            li = -1
            for k, e in enumerate(lgq):
                if e['writes'] & touched:
                    li = k
            vm = lg = None
            if vi >= 0:
                vm = vm_need(vi)
                assert vm <= 63, 'vmcnt overflow at ' + I.text
                del vmq[:vi + 1]
            if li >= 0:
                if any(e['smem'] for e in lgq):
                    lg = 0
                    lgq.clear()
                else:
                    lg = len(lgq) - li - 1
                    if lg > 15:
                        lg = 15
                        del lgq[:len(lgq) - 15]
                    else:
                        del lgq[:li + 1]
            if vm is not None or lg is not None:
                emit_wait(vm, lg)
            if I.mn == 's_waitcnt':
                m = re.search(r'vmcnt\((\d+)\)', I.text)
                if m and int(m.group(1)) == 0 and I.counted:
                    vmq.clear()
                m = re.search(r'lgkmcnt\((\d+)\)', I.text)
                if m and int(m.group(1)) == 0 and I.counted:
                    lgq.clear()
            out.append(I)
            if I.kind in ('vmem', 'vmem_lds', 'vmem_st'):
                vmq.append(dict(writes=set(I.writes), tok=I.tok, counted=I.counted))
            elif I.kind in ('ds', 'ds_st'):
                assert I.counted or True
                lgq.append(dict(writes=set(I.writes), smem=False))
            elif I.kind == 'smem':
                lgq.append(dict(writes=set(I.writes), smem=True))
        self.ins = out

    def insert_hazard_nops(self):
        out = []
        pos = 0
        valu_w = {}
        trans_w = {}
        dot_w = {}
        mfma_w = {}
        mfma_c = {}
        st_data = {}
        salu_m0 = -100
        nops_inserted = 0
        for I in self.ins:
            if I.kind in ('label', 'dir'):
                out.append(I)
                continue
            need = 0

            def req(p, ws):
                nonlocal need
                need = max(need, p + 1 + ws)

            k = I.kind
            if k == 'mfma':
                P = mfma_passes(I.mn)
                dt = tuple(I.writes)
                ab = [r for o in I.ops[1:3] for r in parse_operand(o)]
                for r in I.reads:
                    if r in valu_w:
                        req(valu_w[r], 2)
                    if r in dot_w:
                        req(dot_w[r][0], 3)
                for r in ab:
                    if r in mfma_w:
                        p, pp, _ = mfma_w[r]
                        req(p, {4: 8, 8: 12}[pp])
                for r in I.srcc:
                    if r in mfma_w:
                        p, pp, d = mfma_w[r]
                        if d == tuple(I.srcc) and pp == P:
                            pass
                        else:
                            req(p, {4: 6, 8: 10}[pp])
                for r in I.writes:
                    if r in mfma_w and r not in I.srcc:
                        p, pp, d = mfma_w[r]
                        req(p, {4: 6, 8: 10}[pp])
                    if r in st_data:
                        req(st_data[r], 2)
            else:
                rw = set(I.reads) | set(I.writes)
                if k in ('valu', 'vmem', 'vmem_lds', 'vmem_st', 'ds', 'ds_st'):
                    for r in rw:
                        if r in mfma_w:
                            p, pp, _ = mfma_w[r]
                            req(p, {4: 8, 8: 12}[pp])
                if k == 'valu':
                    for r in I.writes:
                        if r in mfma_c:
                            p, pp = mfma_c[r]
                            req(p, {4: 3, 8: 7}[pp])
                        if r in st_data:
                            req(st_data[r], 2)
                    for r in I.reads:
                        if r in trans_w and I.mn not in TRANS:
                            req(trans_w[r], 1)
                        if r[0] == 's' and r in valu_w:
                            req(valu_w[r], 2)
                        if r in valu_w and r[0] != 's':
                            if I.mn.startswith('v_readfirstlane') or I.mn.startswith('v_readlane'):
                                req(valu_w[r], 1)
                            if 'permlane' in I.mn or '_dpp' in I.mn:
                                req(valu_w[r], 2)
                    for r in rw:
                        if r in dot_w:
                            p, mn = dot_w[r]
                            same_c = (mn == I.mn) and (r in I.writes) and not any(r in parse_operand(o) for o in I.ops[1:3])
                            if not same_c:
                                req(p, 3)
                if k in ('vmem', 'ds'):
                    for r in I.writes:
                        if r in st_data:
                            req(st_data[r], 1)
                        if r in mfma_c:
                            p, pp = mfma_c[r]
                            req(p, {4: 3, 8: 7}[pp])
                if k in ('vmem', 'vmem_lds', 'vmem_st'):
                    for r in I.reads:
                        if r[0] == 's' and r in valu_w:
                            req(valu_w[r], 5)
                if k in ('vmem', 'vmem_lds', 'vmem_st', 'ds', 'ds_st'):
                    for r in I.reads:
                        if r in dot_w:
                            req(dot_w[r][0], 3)
                        if r in trans_w:
                            req(trans_w[r], 1)
                if k == 'vmem_lds':
                    req(salu_m0, 1)
                if k == 'salu':
                    for r in I.reads:
                        if r in valu_w and r[0] == 's':
                            req(valu_w[r], 1)
            if need > pos:
                n = need - pos
                nops_inserted += n
                while n > 0:
                    c = min(n, 16)
                    out.append(Ins('s_nop %d' % (c - 1)))
                    pos += c
                    n -= c
            for r in I.writes:
                for d in (valu_w, trans_w, dot_w, mfma_w):
                    d.pop(r, None)
            if k == 'valu':
                for r in I.writes:
                    valu_w[r] = pos
                    if I.mn in TRANS:
                        trans_w[r] = pos
                    if I.mn.startswith('v_dot2'):
                        dot_w[r] = (pos, I.mn)
            elif k == 'mfma':
                P = mfma_passes(I.mn)
                for r in I.writes:
                    mfma_w[r] = (pos, P, tuple(I.writes))
                for r in I.srcc:
                    mfma_c[r] = (pos, P)
            elif k in ('vmem_st', 'ds_st') and ('x4' in I.mn or 'x3' in I.mn or 'b128' in I.mn or 'b96' in I.mn):
                for r in I.reads:
                    if r[0] != 's':
                        st_data[r] = pos
            if k == 'salu' and ('s', 124) in I.writes:
                salu_m0 = pos
            out.append(I)
            if I.mn == 's_nop':
                pos += int(I.ops[0]) + 1
            else:
                pos += 1
        self.ins = out
        return nops_inserted

    def finish(self):
        self.insert_waits()
        n = self.insert_hazard_nops()
        return '\n'.join(('' if i.kind == 'label' else '    ') + i.text for i in self.ins), n


def interleave(main, fill, start=0, per=None):
    out = []
    n = len(main) - start
    if n <= 0:
        return list(main) + list(fill)
    done = 0
    for i, m in enumerate(main):
        out.append(m)
        if i >= start:
            if per is None:
                tgt = (len(fill) * (i - start + 1) + n - 1) // n
            else:
                tgt = min(len(fill), done + per)
            while done < tgt:
                out.append(fill[done])
                done += 1
    out.extend(fill[done:])
    return out


class Sched:
    def __init__(self, budget=5.0):
        self.main = []
        self.fixed = {}
        self.fifo = []
        self.budget = budget

    def add_main(self, text, tok=None):
        self.main.append((text, tok))
        return len(self.main) - 1

    def fix(self, gap, text, tok=None, cost=1.0):
        self.fixed.setdefault(max(gap, 0), []).append((text, tok, cost))

    def fill(self, text, earliest=0, deadline=None, cost=None, tok=None):
        if cost is None:
            mn = text.split()[0]
            cost = 2.0 if mn in TRANS else 1.0
        self.fifo.append((text, earliest, deadline, cost, tok))

    def emit(self, a):
        fi = 0
        n = len(self.main)
        for i in range(n + 1):
            last = -1
            for k in range(fi, len(self.fifo)):
                d = self.fifo[k][2]
                if d is not None and d <= i:
                    last = k
            while fi <= last:
                self._put(a, self.fifo[fi][0], self.fifo[fi][4])
                fi += 1
            used = 0.0
            for (t, tok, c) in self.fixed.get(i, []):
                self._put(a, t, tok)
            if i == n:
                break
            self._put(a, self.main[i][0], self.main[i][1])
            used = sum(c for (_, _, c) in self.fixed.get(i + 1, []))
            while fi < len(self.fifo) and self.fifo[fi][1] <= i and used + self.fifo[fi][3] <= self.budget + 1e-9:
                self._put(a, self.fifo[fi][0], self.fifo[fi][4])
                used += self.fifo[fi][3]
                fi += 1
        for k in sorted(self.fixed):
            if k > n:
                for (t, tok, c) in self.fixed[k]:
                    self._put(a, t, tok)
        while fi < len(self.fifo):
            self._put(a, self.fifo[fi][0], self.fifo[fi][4])
            fi += 1

    def _put(self, a, text, tok):
        if callable(text):
            text(a)
        else:
            a(text, tok=tok)
```

```python
import math, struct, os
from asmlib import *
from layout import *

STOP = int(os.environ.get("STOP", "99"))
TS = int(os.environ.get("TS", "0"))

def f32(x):
    return "0x%08x" % struct.unpack("<I", struct.pack("<f", x))[0]

LB = 108 * 1024
MISC = 156 * 1024
L_CSQ = MISC
L_CS13 = MISC + 512
L_ST = MISC + 2048
LDS_BYTES = 160 * 1024

SRD = "s[4:7]"
MF = "v_mfma_f32_32x32x16_bf16"

def vr(b, n=4):
    return f"v[{b}:{b+n-1}]"

def ar(b, n=4):
    return f"a[{b}:{b+n-1}]"

def lds_blk(b):
    return f"v{b // 64}", (b % 64) * 1024

def w2_frag(i, b):
    return ar((2 * i + b) * 4)

def wo_frag(i, b):
    k = 2 * i + b
    return ar(224 + 4 * k) if k < 8 else vr(224 + 4 * (k - 8))

class G:
    def __init__(self):
        self.a = Asm()
        self.nl = 0
        self.nts = 0

    def label(self, base):
        self.nl += 1
        return f"L{base}_{self.nl}"

    def ts(self):
        if not TS:
            return
        a = self.a
        k = self.nts
        self.nts += 1
        a.uncounted = True
        a("s_memtime s[46:47]")
        a.uncounted = False
        a("s_waitcnt lgkmcnt(0)")
        a.uncounted = True
        a("v_mov_b32 v222, s46")
        a("v_mov_b32 v223, s47")
        a("v_mov_b32 v221, 0")
        a(f"s_add_u32 s46, s51, {k*8}")
        a("s_mov_b64 exec, 1")
        a(f"buffer_store_dwordx2 v[222:223], v221, {SRD}, s46 offen")
        a("s_mov_b64 exec, -1")
        a.uncounted = False

    def dma(self, sg, goff, slds, loff, n, tok=None, flags="", sched=None, earliest=0):
        out = []
        for i in range(n):
            if i % 4 == 0:
                out.append(f"s_add_u32 s34, {sg}, {goff + i*1024}")
                out.append(f"s_add_u32 m0, {slds}, {loff + i*1024}")
            out.append(f"buffer_load_dwordx4 v0, {SRD}, s34 offen offset:{(i%4)*1024} {flags} lds")
        for t in out:
            if sched is None:
                self.a(t, tok=tok)
            else:
                sched.fill(t, earliest=earliest, tok=tok, cost=(0.5 if t.startswith("s_") else 1.0))

    def signal(self, soff_sgpr, const):
        a = self.a
        a(f"s_add_u32 s34, {soff_sgpr}, {const}")
        a("v_mov_b32 v220, 0")
        a("v_mov_b32 v221, 1")
        a("s_mov_b64 exec, 1")
        a(f"buffer_store_dword v221, v220, {SRD}, s34 offen sc1")
        a("s_mov_b64 exec, -1")

    def poll(self, soff_sgpr, const, mask):
        a = self.a
        L = self.label("poll"); D = self.label("polld")
        a(f"s_add_u32 s34, {soff_sgpr}, {const}")
        a(f"{L}:")
        a(f"buffer_load_dword v220, v7, {SRD}, s34 offen sc1")
        a("s_waitcnt vmcnt(0)")
        a("v_cmp_ne_u32 vcc, 0, v220")
        a("s_sub_u32 s33, s33, 1")
        a("s_cmp_eq_u32 s33, 0")
        a(f"s_cbranch_scc1 main_done")
        a(f"s_and_b32 s35, vcc_lo, {mask}")
        a(f"s_cmp_eq_u32 s35, {mask}")
        a(f"s_cbranch_scc0 {L}")
        a(f"{D}:")

    def wave0_else(self, f0, f1):
        a = self.a
        Lo = self.label("oth"); Lj = self.label("join")
        a("s_cmp_eq_u32 s14, 0")
        a(f"s_cbranch_scc0 {Lo}")
        a.uncounted = True
        f0()
        a(f"s_branch {Lj}")
        a(f"{Lo}:")
        if f1:
            f1()
        a.uncounted = False
        a(f"{Lj}:")

    def stats_load(self, sst, const, T):
        a = self.a
        a(f"s_add_u32 s34, {sst}, {const}")
        a(f"s_add_u32 s35, {sst}, {const + 4096}")
        for u in range(14):
            so = "s34" if u < 8 else "s35"
            a(f"buffer_load_dwordx2 {vr(T+2*u, 2)}, v3, {SRD}, {so} offen offset:{(u%8)*512} sc1")

    def stats_compute(self, T):
        a = self.a
        idx = list(range(14))
        while len(idx) > 1:
            nxt = []
            for k in range(0, len(idx) - 1, 2):
                x, y = idx[k], idx[k + 1]
                a(f"v_add_f32 v{T+2*x}, v{T+2*x}, v{T+2*y}")
                a(f"v_add_f32 v{T+2*x+1}, v{T+2*x+1}, v{T+2*y+1}")
                nxt.append(x)
            if len(idx) % 2:
                nxt.append(idx[-1])
            idx = nxt
        a(f"v_mov_b32 v{T+2}, v{T}")
        a(f"v_mov_b32 v{T+3}, v{T+1}")
        a(f"v_permlane32_swap_b32 v{T}, v{T+2}")
        a(f"v_permlane32_swap_b32 v{T+1}, v{T+3}")
        a(f"v_add_f32 v{T}, v{T}, v{T+2}")
        a(f"v_add_f32 v{T+1}, v{T+1}, v{T+3}")
        a(f"v_mul_f32 v216, s52, v{T}")
        a(f"v_mul_f32 v219, s52, v{T+1}")
        a("v_fma_f32 v219, -v216, v216, v219")
        a("v_max_f32 v219, 0, v219")
        a("v_add_f32 v219, s53, v219")
        a("v_rsq_f32 v217, v219")
        a("v_sub_f32 v218, 0, v216")

    def xload(self, sx, const, X):
        a = self.a
        for ks in range(28):
            if ks % 4 == 0:
                a(f"s_add_u32 s36, {sx}, {const + ks*1024}")
            a(f"buffer_load_dwordx4 {vr(X+4*ks)}, v0, {SRD}, s36 offen offset:{(ks%4)*1024} sc1")

    def prologue(self):
        a = self.a
        a("main_kernel:")
        a("s_load_dwordx2 s[8:9], s[0:1], 56")
        a("s_load_dwordx2 s[4:5], s[0:1], 72")
        a("s_cmp_ge_u32 s2, 256")
        a("s_cbranch_scc1 main_done")
        a("v_lshrrev_b32 v1, 6, v0")
        a("v_and_b32 v7, 63, v0")
        a("v_readfirstlane_b32 s14, v1")
        a("s_and_b32 s12, s2, 7"); a("s_lshl_b32 s12, s12, 1"); a("s_bfe_u32 s34, s2, 0x10003"); a("s_add_u32 s12, s12, s34")
        a("s_lshr_b32 s13, s2, 4")
        a("s_mov_b32 s6, 0x10000000"); a("s_mov_b32 s7, 0x20000")
        a(f"s_mov_b32 s10, {2048*896}"); a("s_mov_b32 s11, 0x20000")
        a("v_lshlrev_b32 v0, 4, v7")
        a("v_add_u32 v1, 0x10000, v0")
        a("v_add_u32 v2, 0x20000, v0")
        a("v_lshlrev_b32 v3, 3, v7")
        a("s_lshl_b32 s15, s12, 2"); a("s_add_u32 s15, s15, s14")
        a(f"s_mul_i32 s48, s13, {84*1024}"); a(f"s_add_u32 s48, s48, {WQKV}")
        a(f"s_mul_i32 s49, s13, {196*1024}"); a(f"s_add_u32 s49, s49, {W13}")
        a("s_mov_b32 s33, 0x40000")
        a("s_waitcnt lgkmcnt(0)")
        a(f"s_mul_i32 s37, s14, {21*1024}")
        a("s_add_u32 s38, s48, s37")
        self.dma("s38", 0, "s37", 0, 21)
        a("v_lshlrev_b32 v7, 2, v7")
        a(f"s_mul_i32 s37, s13, {96*4}"); a(f"s_add_u32 s37, s37, {CSQ}")
        a(f"s_mul_i32 s38, s13, {224*4}"); a(f"s_add_u32 s38, s38, {CS13}")
        a("s_lshl_b32 s39, s14, 8")
        a("v_add_u32 v16, s39, v7")
        a(f"buffer_load_dword v17, v16, {SRD}, s37 offen")
        a(f"buffer_load_dword v18, v16, {SRD}, s38 offen")
        a("s_cmp_ge_u32 s13, 7"); a("s_cselect_b32 s40, 1, 0")
        a("s_mul_i32 s41, s40, 7"); a("s_sub_u32 s41, s13, s41")
        a("s_min_u32 s41, s41, 6")
        a("s_lshr_b32 s42, s14, 1"); a("s_and_b32 s43, s14, 1")
        a("s_lshl_b32 s44, s12, 2"); a("s_lshl_b32 s45, s40, 1"); a("s_add_u32 s44, s44, s45")
        a("s_add_u32 s45, s44, s42")
        a("s_sub_u32 s44, s44, s42"); a("s_add_u32 s44, s44, 1")
        a("s_lshl_b32 s41, s41, 1")
        a("s_add_u32 s46, s41, s43")
        a("s_sub_u32 s47, s41, s43"); a("s_add_u32 s47, s47, 1")
        a("s_mov_b32 s16, 0")
        a(f"s_mul_i32 s17, s15, {28*1024}"); a(f"s_add_u32 s17, s17, {X0}")
        a(f"s_mul_i32 s18, s15, {14*512}"); a(f"s_add_u32 s18, s18, {ST0}")
        a("s_lshl_b32 s19, s13, 6"); a("s_add_u32 s19, s19, s15"); a("s_lshl_b32 s19, s19, 12"); a(f"s_add_u32 s19, s19, {KV0}")
        a("s_lshl_b32 s20, s14, 12"); a("s_add_u32 s20, s20, s19"); a("s_sub_u32 s20, s20, 32768")
        a("s_lshl_b32 s21, s15, 4"); a("s_add_u32 s21, s21, s13"); a("s_lshl_b32 s21, s21, 11"); a(f"s_add_u32 s21, s21, {O0}")
        a("s_lshl_b32 s34, s14, 13"); a(f"s_add_u32 s34, s34, {O0}")
        a("s_lshl_b32 s22, s45, 15"); a("s_add_u32 s22, s22, s34")
        a("s_lshl_b32 s23, s44, 15"); a("s_add_u32 s23, s23, s34")
        a(f"s_mul_i32 s34, s14, {28*1024}"); a(f"s_add_u32 s34, s34, {H0}")
        a(f"s_mul_i32 s24, s45, {112*1024}"); a("s_add_u32 s24, s24, s34")
        a(f"s_mul_i32 s25, s44, {112*1024}"); a("s_add_u32 s25, s25, s34")
        a("s_mul_i32 s34, s45, 14"); a("s_add_u32 s34, s34, s46")
        a("s_lshl_b32 s26, s34, 11"); a(f"s_add_u32 s26, s26, {X0}")
        a("s_lshl_b32 s27, s34, 9"); a(f"s_add_u32 s27, s27, {ST0}")
        a("s_lshl_b32 s28, s15, 4"); a("s_add_u32 s28, s28, s13"); a(f"s_mul_i32 s28, s28, {7*1024}"); a(f"s_add_u32 s28, s28, {H0}")
        a(f"s_mul_i32 s57, s45, {32*896}"); a("s_lshl_b32 s34, s46, 6"); a("s_add_u32 s57, s57, s34")
        a("s_lshl_b32 s34, s14, 13"); a(f"s_add_u32 s34, s34, {WO}")
        a("s_lshl_b32 s58, s46, 15"); a("s_add_u32 s58, s58, s34")
        a("s_lshl_b32 s59, s47, 15"); a("s_add_u32 s59, s59, s34")
        a(f"s_mul_i32 s34, s14, {28*1024}"); a(f"s_add_u32 s34, s34, {W2}")
        a(f"s_mul_i32 s60, s46, {112*1024}"); a("s_add_u32 s60, s60, s34")
        a(f"s_mul_i32 s61, s47, {112*1024}"); a("s_add_u32 s61, s61, s34")
        a(f"buffer_load_dwordx4 v[8:11], v0, {SRD}, s26 offen")
        a(f"buffer_load_dwordx4 v[12:15], v0, {SRD}, s26 offen offset:1024")
        a("s_lshl_b32 s30, s12, 8"); a(f"s_add_u32 s29, s30, {FLAGS}")
        a("s_lshl_b32 s34, s13, 2"); a("s_add_u32 s30, s29, s34")
        a("s_lshl_b32 s31, s13, 8"); a(f"s_add_u32 s31, s31, {FLAGS}")
        a("s_lshl_b32 s34, s12, 2"); a("s_add_u32 s62, s31, s34")
        a("s_lshl_b32 s32, 3, s12"); a("s_lshr_b32 s32, s32, 2")
        a("s_sub_u32 s50, s14, 1")
        a(f"s_mov_b32 s52, {f32(1.0/448)}"); a(f"s_mov_b32 s53, {f32(1e-5)}")
        a(f"s_mov_b32 s54, {f32(28**-0.5 * math.log2(math.e))}"); a(f"s_mov_b32 s55, {f32(-math.log2(math.e))}")
        a(f"s_mov_b32 s56, {f32(-2.0**100)}")
        if TS:
            a("s_lshl_b32 s51, s2, 2"); a("s_add_u32 s51, s51, s14"); a("s_lshl_b32 s51, s51, 9"); a(f"s_add_u32 s51, s51, {DBG}")
        a("v_lshrrev_b32 v19, 2, v7")
        a("v_lshrrev_b32 v20, 5, v19")
        a("v_and_b32 v21, 31, v19")
        a("v_lshlrev_b32 v4, 5, v20"); a(f"v_add_u32 v4, {MISC}, v4")
        a("v_cmp_eq_u32 vcc, 28, v21")
        a("v_cndmask_b32 v5, 0, 1.0, vcc")
        a("v_lshlrev_b32 v22, 2, v20")
        a("v_sub_u32 v22, v21, v22")
        for rho in range(16):
            kk = 8 * (rho >> 2) + (rho & 3)
            a(f"v_cmp_le_i32 s[{64+2*rho}:{65+2*rho}], {kk}, v22")
        a(f"v_add_u32 v16, {MISC}, v16")
        a("v_cmp_gt_u32 vcc, 2, v19")
        a("s_cmp_lt_u32 s14, 2")
        Ls = self.label("nocsq")
        a(f"s_cbranch_scc0 {Ls}")
        a("ds_write_b32 v16, v17")
        a(f"{Ls}:")
        a("ds_write_b32 v16, v18 offset:512")
        a("v_and_b32 v22, 19, v21")
        a("v_bfe_u32 v23, v21, 2, 1"); a("v_lshl_or_b32 v22, v23, 3, v22")
        a("v_bfe_u32 v23, v21, 3, 1"); a("v_lshl_or_b32 v22, v23, 2, v22")
        a("v_lshlrev_b32 v22, 2, v22")
        a(f"v_add_u32 v22, {L_CSQ + 128}, v22")
        a.drain()
        a("s_barrier")
        a("ds_read_b32 v6, v22")
        a("v_sub_f32 v6, 0, v6")

    def p1(self):
        a = self.a
        X, AK, AV, AQ, WB, RV = 16, 128, 144, 160, 176, 200
        NB = 6
        self.stats_load("s18", 0, AK)
        self.xload("s17", 0, X)
        self.stats_compute(AK)
        a("v_bfe_u32 v220, v7, 2, 5")
        a("s_lshl_b32 s34, s14, 8"); a(f"s_add_u32 s34, s34, {L_ST}")
        a("v_lshl_add_u32 v220, v220, 2, s34")
        a("ds_write_b32 v220, v216")
        a("ds_write_b32 v220, v217 offset:128")
        a("v_bfe_u32 v221, v7, 7, 1")
        a("v_lshl_add_u32 v221, v221, 4, s34")
        for q in range(4):
            a(f"ds_read_b128 {vr(AK+4*q)}, v4 offset:{(L_CSQ-MISC) + 0*128 + (q>>1)*64 + (q&1)*16}")
        for q in range(4):
            a(f"ds_read_b128 {vr(AV+4*q)}, v221 offset:{q*32}")
        for q in range(4):
            a(f"ds_read_b128 {vr(AQ+4*q)}, v4 offset:{(L_CSQ-MISC) + 2*128 + (q>>1)*64 + (q&1)*16}")
        for q in range(4):
            a(f"ds_read_b128 {vr(RV+4*q)}, v221 offset:{128 + q*32}")
        S = Sched(budget=5)
        seq = []
        for ks in range(28):
            seq.append((0, ks)); seq.append((1, ks))
        for ks in range(28):
            seq.append((2, ks))
        for n, (p, ks) in enumerate(seq):
            wb = WB + 4 * (n % NB)
            base, off = lds_blk(p * 28 + ks)
            S.fix(n - (NB - 1), f"ds_read_b128 {vr(wb)}, {base} offset:{off}")
            if p == 0:
                S.add_main(f"{MF} {vr(AK,16)}, {vr(wb)}, {vr(X+4*ks)}, {vr(AK,16)}")
            elif p == 1:
                S.add_main(f"{MF} {vr(AV,16)}, {vr(X+4*ks)}, {vr(wb)}, {vr(AV,16)}")
            else:
                S.add_main(f"{MF} {vr(AQ,16)}, {vr(wb)}, {vr(X+4*ks)}, {vr(AQ,16)}")
        for i in range(16):
            S.fill(f"v_mul_f32 v{AK+i}, v218, v{AK+i}", deadline=0)
        for i in range(16):
            S.fill(f"v_mul_f32 v{AV+i}, v6, v{AV+i}", deadline=1)
        for i in range(16):
            S.fill(f"v_mul_f32 v{AQ+i}, v218, v{AQ+i}", deadline=56)
        S.fill("v_mul_f32 v222, s54, v217", deadline=56)
        S.fill("s_lshl_b32 s34, s14, 12", deadline=56, cost=0.5)
        S.fill(f"s_add_u32 s34, s34, {LB}", deadline=56, cost=0.5)
        S.fill("v_add_u32 v220, s34, v0", deadline=56)
        e0 = 57
        for i in range(16):
            S.fill(f"v_mul_f32 v{AK+i}, v217, v{AK+i}", earliest=e0)
        for i in range(8):
            S.fill(f"v_cvt_pk_bf16_f32 v{AK+i}, v{AK+2*i}, v{AK+2*i+1}", earliest=e0)
        S.fill(f"buffer_store_dwordx4 {vr(AK)}, v0, {SRD}, s19 offen sc1", earliest=e0)
        S.fill(f"buffer_store_dwordx4 {vr(AK+4)}, v0, {SRD}, s19 offen offset:1024 sc1", earliest=e0)
        for i in range(16):
            S.fill(f"v_fma_f32 v{AV+i}, v{AV+i}, v{RV+i}, v5", earliest=e0)
        for i in range(8):
            S.fill(f"v_cvt_pk_bf16_f32 v{AV+i}, v{AV+2*i}, v{AV+2*i+1}", earliest=e0)
        S.fill(f"buffer_store_dwordx4 {vr(AV)}, v0, {SRD}, s19 offen offset:2048 sc1", earliest=e0)
        S.fill(f"buffer_store_dwordx4 {vr(AV+4)}, v0, {SRD}, s19 offen offset:3072 sc1", earliest=e0)
        S.fill(f"ds_write_b128 v220, {vr(AK)} offset:{8*4096}", earliest=e0)
        S.fill(f"ds_write_b128 v220, {vr(AK+4)} offset:{8*4096+1024}", earliest=e0)
        S.fill(f"ds_write_b128 v220, {vr(AV)} offset:{8*4096+2048}", earliest=e0)
        S.fill(f"ds_write_b128 v220, {vr(AV+4)} offset:{8*4096+3072}", earliest=e0)
        S.emit(a)
        for i in range(16):
            a(f"v_mul_f32 v{AQ+i}, v222, v{AQ+i}")
        a("v_mov_b32 v221, s56")
        a("s_mov_b32 s34, 0"); a("s_mov_b32 s35, -1")
        a(f"v_cndmask_b32 v{AQ+12}, v{AQ+12}, v221, s[34:35]")
        for i in range(8):
            a(f"v_cvt_pk_bf16_f32 v{AQ+i}, v{AQ+2*i}, v{AQ+2*i+1}")
        a("v_mov_b32 v168, v220")

    def load_wo(self):
        a = self.a
        L = self.label("nowo")
        a("s_cmp_eq_u32 s16, 0")
        a(f"s_cbranch_scc0 {L}")
        a.uncounted = True
        for b, sb in ((0, "s58"), (1, "s59")):
            for i in range(8):
                if i % 4 == 0:
                    a(f"s_add_u32 s34, {sb}, {i*1024}")
                a(f"buffer_load_dwordx4 {wo_frag(i,b)}, v0, {SRD}, s34 offen offset:{(i%4)*1024}")
        a.uncounted = False
        a(f"{L}:")

    def load_w2(self, i0, i1):
        a = self.a
        L = self.label("now2")
        a("s_cmp_eq_u32 s16, 0")
        a(f"s_cbranch_scc0 {L}")
        a.uncounted = True
        for b, sb in ((0, "s60"), (1, "s61")):
            for i in range(i0, i1):
                if (i - i0) % 4 == 0:
                    a(f"s_add_u32 s34, {sb}, {i*1024}")
                a(f"buffer_load_dwordx4 {w2_frag(i,b)}, v0, {SRD}, s34 offen offset:{((i-i0)%4)*1024}")
        a.uncounted = False
        a(f"{L}:")

    def dma3(self, sbase, q0, n3, lds0):
        a = self.a
        a(f"s_mul_i32 s37, s50, {n3*1024}")
        a(f"s_add_u32 s38, {sbase}, s37")
        self.dma("s38", q0 * 1024, "s37", lds0 * 1024, n3)

    def p2(self):
        a = self.a
        Q, KF, SB, NM, PM, OA, VB = 160, 16, 88, 136, 152, 176, 192
        a.drain()
        a("s_barrier")
        self.wave0_else(lambda: (self.signal("s62", 0), self.poll("s31", 0, "s32")),
                        lambda: self.dma3("s49", 0, 18, 0))
        a("s_barrier")
        self.ts()
        Lf = self.label("fill"); Lh = self.label("halo")
        a("s_lshl_b32 s34, s12, 2"); a("s_lshl_b32 s35, s14, 1"); a("s_add_u32 s34, s34, s35")
        a("s_lshl_b32 s37, s14, 13"); a(f"s_add_u32 s37, s37, {LB}")
        a("s_cmp_lt_u32 s34, 8")
        a(f"s_cbranch_scc1 {Lf}")
        a.uncounted = True
        self.dma("s20", 0, "s37", 0, 8, flags="sc1")
        a(f"s_branch {Lh}")
        a(f"{Lf}:")
        a("v_add_u32 v220, s37, v0")
        for i in range(8):
            a(f"v_mov_b32 v{SB+i}, 0")
        a("s_mov_b32 s34, 0"); a("s_mov_b32 s35, -1")
        a("v_mov_b32 v221, 0x3f80")
        a(f"v_cndmask_b32 v{SB+6}, 0, v221, s[34:35]")
        for t in range(2):
            a(f"ds_write_b128 v220, {vr(SB)} offset:{t*4096}")
            a(f"ds_write_b128 v220, {vr(SB+4)} offset:{t*4096+1024}")
            a(f"ds_write_b128 v220, {vr(SB)} offset:{t*4096+2048}")
            a(f"ds_write_b128 v220, {vr(SB)} offset:{t*4096+3072}")
        a.uncounted = False
        a(f"{Lh}:")
        a("v_mov_b32 v220, 0xffff"); a("v_mov_b32 v221, 0xffff0000")
        for i in range(8):
            a(f"v_cndmask_b32 v{PM+i}, 0, v220, s[{64+4*i}:{65+4*i}]")
            a(f"v_cndmask_b32 v219, 0, v221, s[{66+4*i}:{67+4*i}]")
            a(f"v_or_b32 v{PM+i}, v{PM+i}, v219")
        a.drain()
        a("s_barrier")
        self.load_w2(0, 12)
        order = [8, 0, 1, 2, 3, 4, 5, 6, 7]
        for n, i in enumerate(order):
            for s in range(2):
                a(f"ds_read_b128 {vr(KF+8*n+4*s)}, v168 offset:{i*4096+s*1024}")
        S = Sched(budget=5)
        for n, i in enumerate(order):
            sb = SB + 16 * (n % 3)
            S.add_main(f"{MF} {vr(sb,16)}, {vr(KF+8*n)}, {vr(Q)}, 0")
            S.add_main(f"{MF} {vr(sb,16)}, {vr(KF+8*n+4)}, {vr(Q+4)}, {vr(sb,16)}")
            e = 2 * n + 3
            dl = 2 * (n + 3)
            if n == 0:
                continue
            if n == 1:
                sd = SB
                for k in range(16):
                    S.fill(f"v_cndmask_b32 v{sb+k}, v{sb+k}, v{sd+k}, s[{64+2*k}:{65+2*k}]", earliest=e, deadline=6)
                S.fill(f"v_max_f32 v216, v{sb}, v{sb+1}", earliest=e, deadline=dl)
                for k in range(1, 8):
                    S.fill(f"v_max3_f32 v216, v216, v{sb+2*k}, v{sb+2*k+1}", earliest=e, deadline=dl)
            else:
                for k in range(8):
                    S.fill(f"v_max3_f32 v216, v216, v{sb+2*k}, v{sb+2*k+1}", earliest=e, deadline=dl)
        S.emit(a)
        a("v_mov_b32 v217, v216")
        a("v_permlane32_swap_b32 v216, v217")
        a("v_max_f32 v216, v216, v217")
        for k in range(16):
            a(f"v_sub_f32 v{NM+k}, 0, v216")
        S = Sched(budget=10)
        nv = [0]
        def vread(i, s, gap):
            vb = VB + 4 * (nv[0] % 6); nv[0] += 1
            S.fix(gap, f"ds_read_b128 {vr(vb)}, v168 offset:{i*4096+2048+s*1024}")
            return vb
        def smm(n):
            sb = SB + 16 * (n % 3)
            S.add_main(f"{MF} {vr(sb,16)}, {vr(KF+8*n)}, {vr(Q)}, {vr(NM,16)}")
            return S.add_main(f"{MF} {vr(sb,16)}, {vr(KF+8*n+4)}, {vr(Q+4)}, {vr(sb,16)}")
        first = [True]
        def pv(i, pb):
            for s in range(2):
                vb = vread(i, s, len(S.main) - 3)
                c = "0" if first[0] else vr(OA, 16)
                first[0] = False
                S.add_main(f"{MF} {vr(OA,16)}, {vr(vb)}, {vr(pb+4*s)}, {c}")
        def soft(n, e, dl):
            sb = SB + 16 * (n % 3)
            for k in range(8):
                S.fill(f"v_exp_f32 v{sb+2*k}, v{sb+2*k}", earliest=e, deadline=dl)
                S.fill(f"v_exp_f32 v{sb+2*k+1}, v{sb+2*k+1}", earliest=e, deadline=dl)
                if k >= 1:
                    S.fill(f"v_cvt_pk_bf16_f32 v{sb+k-1}, v{sb+2*k-2}, v{sb+2*k-1}", earliest=e, deadline=dl)
            S.fill(f"v_cvt_pk_bf16_f32 v{sb+7}, v{sb+14}, v{sb+15}", earliest=e, deadline=dl)
        smm(0); i1 = smm(1); i2 = smm(2)
        sb1 = SB + 16
        for k in range(16):
            S.fill(f"v_cndmask_b32 v{sb1+k}, v{sb1+k}, v{SB+k}, s[{64+2*k}:{65+2*k}]", earliest=i1 + 1, deadline=6)
        i3 = smm(3)
        soft(1, i1 + 1, 8)
        for k in range(8):
            S.fill(f"v_bfi_b32 v{sb1+8+k}, v{PM+k}, 0, v{sb1+k}", deadline=8)
            S.fill(f"v_and_b32 v{sb1+k}, v{PM+k}, v{sb1+k}", deadline=8)
        pv(8, sb1); pv(0, sb1 + 8)
        send = {2: i2, 3: i3}
        for n in range(2, 9):
            if n + 2 <= 8:
                send[n + 2] = smm(n + 2)
            soft(n, send[n] + 1, len(S.main))
            pv(order[n], SB + 16 * (n % 3))
        S.emit(a)
        a(f"v_mov_b32 v216, v{OA+12}")
        a(f"v_mov_b32 v217, v{OA+12}")
        a("v_permlane32_swap_b32 v216, v217")
        a("v_rcp_f32 v217, v217")
        for k in range(16):
            a(f"v_mul_f32 v{OA+k}, v217, v{OA+k}")
        for k in range(8):
            a(f"v_cvt_pk_bf16_f32 v{OA+k}, v{OA+2*k}, v{OA+2*k+1}")
        a(f"buffer_store_dwordx4 {vr(OA)}, v0, {SRD}, s21 offen sc1")
        a(f"buffer_store_dwordx4 {vr(OA+4)}, v0, {SRD}, s21 offen offset:1024 sc1")

    def ksplit(self, n, sa0, sa1, wfrag, final):
        a = self.a
        AC, AB, NBUF = 16, 80, 16
        def aload(i, S=None, gap=None):
            out = []
            for s, sa in ((0, sa0), (1, sa1)):
                st = "s36" if s == 0 else "s37"
                if i % 4 == 0:
                    out.append(f"s_add_u32 {st}, {sa}, {i*1024}")
                out.append(f"buffer_load_dwordx4 {vr(AB + 8*(i % NBUF) + 4*s)}, v0, {SRD}, {st} offen offset:{(i%4)*1024} sc1")
            for t in out:
                if S is None:
                    a(t)
                else:
                    S.fix(gap, t)
        for i in range(min(n, NBUF)):
            aload(i)
        for k in range(8):
            a(f"v_lshlrev_b32 v{AC+2*k}, 16, v{8+k}")
            a(f"v_and_b32 v{AC+2*k+1}, 0xffff0000, v{8+k}")
        for s in range(1, 4):
            a(f"s_xor_b32 s34, s14, {s}")
            a(f"s_mul_i32 s34, s34, 12288")
            a(f"s_add_u32 s34, s34, {LB + (s-1)*4096}")
            a(f"v_add_u32 v{207+s}, s34, v0")
        a(f"s_mul_i32 s34, s14, 12288"); a(f"s_add_u32 s34, s34, {LB}")
        a("v_add_u32 v211, s34, v0")
        S = Sched(budget=5)
        for i in range(n):
            slots = [1, 2, 3, 0]
            for sl in slots:
                aa, bb = sl >> 1, sl & 1
                ac = AC + 16 * sl
                c = vr(ac, 16) if (i > 0 or sl == 0) else "0"
                S.add_main(f"{MF} {vr(ac,16)}, {wfrag(i,bb)}, {vr(AB + 8*(i % NBUF) + 4*aa)}, {c}")
            if i + NBUF < n:
                aload(i + NBUF, S, len(S.main))
        S.emit(a)
        for s in range(1, 4):
            for q in range(4):
                a(f"ds_write_b128 v{207+s}, {vr(AC+16*s+4*q)} offset:{q*1024}")
        a.drain(vm=False)
        a("s_barrier")
        for s in range(3):
            for q in range(4):
                a(f"ds_read_b128 {vr(AB+16*s+4*q)}, v211 offset:{s*4096+q*1024}")
        for s in range(3):
            for k in range(16):
                a(f"v_add_f32 v{AC+k}, v{AC+k}, v{AB+16*s+k}")
        for k in range(8):
            a(f"v_cvt_pk_bf16_f32 v{8+k}, v{AC+2*k}, v{AC+2*k+1}")
        final()

    def store_x(self, xoff, stoff):
        a = self.a
        a(f"s_add_u32 s34, s26, {xoff}")
        a(f"buffer_store_dwordx4 v[8:11], v0, {SRD}, s34 offen sc1")
        a(f"buffer_store_dwordx4 v[12:15], v0, {SRD}, s34 offen offset:1024 sc1")
        a("v_mov_b32 v212, 0"); a("v_mov_b32 v213, 0"); a("v_mov_b32 v214, 0x3f803f80")
        for k in range(8):
            a(f"v_dot2_f32_bf16 v212, v{8+k}, v214, v212")
            a(f"v_dot2_f32_bf16 v213, v{8+k}, v{8+k}, v213")
        a(f"s_add_u32 s35, s27, {stoff}")
        a(f"buffer_store_dwordx2 v[212:213], v3, {SRD}, s35 offen sc1")

    def p3(self):
        a = self.a
        Le = self.label("p3end")
        a.drain()
        a("s_barrier")
        self.wave0_else(lambda: self.signal("s30", 1 * 4096),
                        lambda: self.dma3("s49", 54, 18, 54))
        a("s_cmp_ge_u32 s13, 14")
        a(f"s_cbranch_scc1 {Le}")
        self.wave0_else(lambda: self.poll("s29", 1 * 4096, "0xffff"), None)
        a("s_barrier")
        self.ts()
        self.ksplit(8, "s22", "s23", wo_frag, lambda: self.store_x(XSZ, STSZ))
        a.drain()
        a("s_barrier")
        self.wave0_else(lambda: self.signal("s30", 2 * 4096), None)
        a(f"{Le}:")

    def p4(self):
        a = self.a
        X, AC, WB, NB = 16, 128, 192, 6
        self.wave0_else(lambda: self.poll("s29", 2 * 4096, "0x3fff"),
                        lambda: self.dma3("s49", 108, 16, 108))
        a("s_waitcnt vmcnt(16)")
        a.forget()
        a("s_barrier")
        self.ts()
        self.stats_load("s18", STSZ, AC)
        self.xload("s17", XSZ, X)
        self.stats_compute(AC)
        a("v_mul_f32 v217, s55, v217")
        S = Sched(budget=5)
        seq = []
        for ks in range(28):
            for t in range(3):
                seq.append((t, ks))
        for t in range(3, 7):
            for ks in range(28):
                seq.append((t, ks))
        aset = {0: 0, 1: 1, 2: 2, 3: 3, 4: 0, 5: 1, 6: 2}
        first = {}; last = {}
        for n, (t, ks) in enumerate(seq):
            first.setdefault(t, n); last[t] = n
        def init(t, earliest, deadline):
            ac = AC + 16 * aset[t]
            for q in range(4):
                S.fill(f"ds_read_b128 {vr(ac+4*q)}, v4 offset:{(L_CS13-MISC) + t*128 + (q>>1)*64 + (q&1)*16}", earliest=earliest, deadline=deadline)
            for i in range(16):
                S.fill(f"v_mul_f32 v{ac+i}, v218, v{ac+i}", earliest=earliest, deadline=deadline)
        def epi(t, earliest, deadline):
            ac = AC + 16 * aset[t]
            f = lambda s: S.fill(s, earliest=earliest, deadline=deadline)
            for i in range(8):
                f(f"v_mul_f32 v{ac+8+i}, v{ac+i}, v{ac+8+i}")
                f(f"v_mul_f32 v{ac+i}, v217, v{ac+i}")
            for i in range(8):
                f(f"v_exp_f32 v{ac+i}, v{ac+i}")
            for i in range(8):
                f(f"v_fma_f32 v{ac+i}, v{ac+i}, v219, v219")
            for i in range(8):
                f(f"v_rcp_f32 v{ac+i}, v{ac+i}")
            for i in range(8):
                f(f"v_mul_f32 v{ac+i}, v{ac+i}, v{ac+8+i}")
            for i in range(4):
                f(f"v_cvt_pk_bf16_f32 v{ac+i}, v{ac+2*i}, v{ac+2*i+1}")
            if t % 4 == 0:
                f(f"s_add_u32 s39, s28, {t*1024}")
            f(f"buffer_store_dwordx4 {vr(ac)}, v0, {SRD}, s39 offen offset:{(t%4)*1024} sc1")
        for n, (t, ks) in enumerate(seq):
            wb = WB + 4 * (n % NB)
            q = t * 28 + ks
            blk = q if q < 156 else q - 156
            base, off = lds_blk(blk)
            S.fix(n - (NB - 1), f"ds_read_b128 {vr(wb)}, {base} offset:{off}")
            ac = AC + 16 * aset[t]
            S.add_main(f"{MF} {vr(ac,16)}, {vr(wb)}, {vr(X+4*ks)}, {vr(ac,16)}")
        for t in range(3):
            init(t, 0, t)
        init(3, 3, first[3])
        tokD = a.tok()
        def midbar(aa):
            aa.drain(vm=True, lgkm=False)
            aa("s_barrier")
            aa(f"s_mul_i32 s37, s14, {10*1024}")
            aa("s_add_u32 s38, s49, s37")
            self.dma("s38", 156 * 1024, "s37", 0, 10, tok=tokD)
        S.fix(first[3] + 1, midbar)
        def bar2(aa):
            aa.wait_tok(tokD)
            aa("s_barrier")
        n156 = seq.index((5, 16))
        S.fix(n156 - (NB - 1) - 1, bar2)
        epi(0, last[2] + 2, None); init(4, last[2] + 2, first[4])
        epi(1, last[2] + 2, None); init(5, last[2] + 2, first[5])
        epi(2, last[2] + 2, None); init(6, last[2] + 2, first[6])
        for t in range(3, 7):
            epi(t, last[t] + 2, None)
        S.fix(first[4], lambda aa: self.load_w2(12, 20))
        S.fix(first[6], lambda aa: self.load_w2(20, 28))
        S.emit(a)

    def p5(self):
        a = self.a
        Le = self.label("p5end"); Lf = self.label("p5fin"); Lnl = self.label("p5nl")
        a.drain()
        a("s_barrier")
        def pre():
            a("s_cmp_eq_u32 s16, 0")
            a(f"s_cbranch_scc0 {Lnl}")
            self.dma3("s48", 0, 28, 0)
            a(f"{Lnl}:")
        self.wave0_else(lambda: self.signal("s30", 3 * 4096), pre)
        a("s_cmp_ge_u32 s13, 14")
        a(f"s_cbranch_scc1 {Le}")
        self.wave0_else(lambda: self.poll("s29", 3 * 4096, "0xffff"), None)
        a("s_barrier")
        self.ts()
        def fin():
            a("s_cmp_eq_u32 s16, 0")
            a(f"s_cbranch_scc0 {Lf}")
            self.store_x(2 * XSZ, 2 * STSZ)
            a.drain()
            a("s_barrier")
            self.wave0_else(lambda: self.signal("s30", 4 * 4096), None)
            a(f"s_branch {Le}")
            a(f"{Lf}:")
            a("v_bfe_u32 v212, v7, 2, 5")
            a("v_mul_u32_u24 v212, 896, v212")
            a("v_bfe_u32 v213, v7, 7, 1")
            a("v_lshl_add_u32 v212, v213, 4, v212")
            a("buffer_store_dwordx4 v[8:11], v212, s[8:11], s57 offen")
            a("buffer_store_dwordx4 v[12:15], v212, s[8:11], s57 offen offset:32")
        self.ksplit(28, "s24", "s25", w2_frag, fin)
        a(f"{Le}:")

    def build(self):
        a = self.a
        self.prologue()
        a("main_layer:")
        a.drain()
        a("s_barrier")
        self.ts()
        def stop(ph):
            for l in range(2):
                if STOP == ph + 5 * l:
                    a(f"s_cmp_eq_u32 s16, {l}")
                    a("s_cbranch_scc1 main_done")
        self.p1()
        self.load_wo()
        self.ts(); stop(1)
        self.p2()
        self.ts(); stop(2)
        self.p3()
        self.ts(); stop(3)
        self.p4()
        self.ts(); stop(4)
        self.p5()
        self.ts(); stop(5)
        a("s_cmp_eq_u32 s16, 0")
        a("s_cbranch_scc0 main_done")
        self.wave0_else(lambda: self.poll("s29", 4 * 4096, "0x3fff"), None)
        a("s_mov_b32 s16, 1")
        for s, d in (("s17", 2 * XSZ), ("s18", 2 * STSZ), ("s19", KVSZ), ("s20", KVSZ), ("s21", OSZ), ("s22", OSZ), ("s23", OSZ),
                     ("s24", HSZ), ("s25", HSZ), ("s26", 2 * XSZ), ("s27", 2 * STSZ), ("s28", HSZ),
                     ("s29", 5 * 4096), ("s30", 5 * 4096), ("s31", 5 * 4096), ("s62", 5 * 4096)):
            a(f"s_add_u32 {s}, {s}, {d}")
        if TS:
            a("s_add_u32 s51, s51, 256")
        a("s_branch main_layer")
        a("main_done:")
        a("s_endpgm")
        txt, n = a.finish()
        return txt


def gen_main():
    return G().build()

MAIN_KD = dict(vgpr=512, sgpr=100, accum=256, grid=256, block=256, lds=LDS_BYTES)
```

```python
from asmlib import *
from layout import *

NPREP = 361

def i0_code(a, dst, g, t):
    a(f"v_and_b32 {dst}, 4, {g}")
    a(f"v_and_b32 {t}, 1, {g}")
    a(f"v_lshl_or_b32 {dst}, {t}, 1, {dst}")
    a(f"v_bfe_u32 {t}, {g}, 1, 1")
    a(f"v_or_b32 {dst}, {dst}, {t}")
    a(f"v_lshlrev_b32 {dst}, 6, {dst}")

def transpose_store(a, vdst, sdst, colsum):
    for e in range(4):
        sel = "s34" if e % 2 == 0 else "s35"
        for m in range(4):
            lo = 16 + 2 * (2 * m) + (e >> 1)
            hi = 16 + 2 * (2 * m + 1) + (e >> 1)
            a(f"v_perm_b32 v{32+4*e+m}, v{hi}, v{lo}, {sel}")
        a(f"buffer_store_dwordx4 v[{32+4*e}:{35+4*e}], {vdst}, s[4:7], {sdst} offen offset:{16*e}")
    if colsum:
        for e in range(4):
            a(f"v_mov_b32 v{48+e}, 0")
        for m in range(4):
            for e in range(4):
                a(f"v_dot2_f32_bf16 v{48+e}, v{32+4*e+m}, v8, v{48+e}")

def gen_prep(name="prep_kernel"):
    a = Asm()
    a(f"{name}:")
    a("s_load_dwordx16 s[16:31], s[0:1], 0")
    a("s_load_dwordx2 s[32:33], s[0:1], 72")
    a(f"s_cmp_ge_u32 s2, {NPREP}")
    a("s_cbranch_scc1 prep_done")
    a("s_mov_b32 s34, 0x05040100")
    a("s_mov_b32 s35, 0x07060302")
    a("v_mov_b32 v8, 0x3f803f80")
    a("v_and_b32 v1, 7, v0")
    a("v_lshrrev_b32 v2, 3, v0")
    a("s_waitcnt lgkmcnt(0)")
    a("s_mov_b32 s4, s32"); a("s_mov_b32 s5, s33"); a("s_mov_b32 s6, 0x10000000"); a("s_mov_b32 s7, 0x20000")
    a("s_cmp_ge_u32 s2, 232"); a("s_cbranch_scc1 prep_E")
    a("s_cmp_ge_u32 s2, 160"); a("s_cbranch_scc1 prep_CD")
    i0_code(a, "v4", "v1", "v5")
    a("v_lshl_add_u32 v4, v2, 9, v4")
    a("s_cmp_lt_u32 s2, 48"); a("s_cbranch_scc0 prep_B")
    a("s_mul_i32 s36, s2, 171"); a("s_lshr_b32 s36, s36, 9")
    a("s_mul_i32 s37, s36, 3"); a("s_sub_u32 s37, s2, s37")
    a("s_add_u32 s37, s37, 1"); a("s_cmp_eq_u32 s37, 3"); a("s_cselect_b32 s37, 0, s37")
    a("s_mul_i32 s37, s37, 896"); a("s_mul_i32 s36, s36, 56"); a("s_add_u32 s36, s36, s37")
    a("s_mov_b32 s8, s18"); a("s_mov_b32 s9, s19"); a(f"s_mov_b32 s10, {448*1344*2}"); a("s_mov_b32 s11, 0x20000")
    a(f"s_mov_b32 s38, {8*2688}")
    a("v_mul_lo_u32 v3, v2, s38")
    a("v_lshl_add_u32 v3, v1, 3, v3")
    a("v_mov_b32 v5, 0x40000000")
    a("v_cmp_eq_u32 vcc, 7, v1")
    a("v_cndmask_b32 v3, v3, v5, vcc")
    for j in range(8):
        a(f"buffer_load_dwordx2 v[{16+2*j}:{17+2*j}], v3, s[8:11], s36 offen")
        if j < 7: a("s_add_u32 s36, s36, 2688")
    a(f"s_mul_i32 s39, s2, 28672"); a(f"s_add_u32 s39, s39, {WQKV}")
    a(f"s_lshl_b32 s40, s2, 7"); a(f"s_add_u32 s40, s40, {CSQ}")
    a("s_branch prep_AB"); a.forget()
    a("prep_B:")
    a("s_sub_u32 s41, s2, 48")
    a("s_lshl_b32 s36, s41, 5")
    a("s_mov_b32 s8, s24"); a("s_mov_b32 s9, s25"); a(f"s_mov_b32 s10, {448*1792*2}"); a("s_mov_b32 s11, 0x20000")
    a("s_mov_b32 s12, s26"); a("s_mov_b32 s13, s27"); a(f"s_mov_b32 s14, {448*1792*2}"); a("s_mov_b32 s15, 0x20000")
    a(f"s_mov_b32 s38, {8*3584}")
    a("v_mul_lo_u32 v3, v2, s38")
    a("v_and_b32 v5, 3, v1")
    a("v_lshl_add_u32 v3, v5, 3, v3")
    a("s_mov_b32 s42, 0x0f0f0f0f"); a("s_mov_b32 s43, 0x0f0f0f0f")
    a("s_mov_b32 s44, 0xf0f0f0f0"); a("s_mov_b32 s45, 0xf0f0f0f0")
    for j in range(8):
        a("s_mov_b64 exec, s[42:43]")
        a(f"buffer_load_dwordx2 v[{16+2*j}:{17+2*j}], v3, s[8:11], s36 offen")
        a("s_mov_b64 exec, s[44:45]")
        I = Ins(f"buffer_load_dwordx2 v[{16+2*j}:{17+2*j}], v3, s[12:15], s36 offen")
        I.writes = []
        a.ins.append(I)
        if j < 7: a("s_add_u32 s36, s36, 3584")
    a("s_mov_b64 exec, -1")
    a(f"s_mul_i32 s39, s41, 28672"); a(f"s_add_u32 s39, s39, {W13}")
    a(f"s_lshl_b32 s40, s41, 7"); a(f"s_add_u32 s40, s40, {CS13}")
    a("prep_AB:")
    a.drain(vm=True, lgkm=False)
    transpose_store(a, "v4", "s39", True)
    a("v_lshlrev_b32 v6, 4, v0")
    a("ds_write_b128 v6, v[48:51]")
    a.drain(vm=False, lgkm=True)
    a("s_barrier")
    a("v_cmp_gt_u32 vcc, 64, v0")
    a("s_and_saveexec_b64 s[42:43], vcc")
    a("s_cbranch_execz prep_done")
    a("v_lshrrev_b32 v5, 5, v0"); a("v_and_b32 v6, 31, v0")
    a(f"v_mul_u32_u24 v5, {28*128}, v5")
    a("v_lshl_add_u32 v5, v6, 2, v5")
    for i in range(28):
        a(f"ds_read_b32 v{16+i}, v5 offset:{i*128}")
    a.drain(vm=False, lgkm=True)
    for i in range(1, 28):
        a(f"v_add_f32 v16, v16, v{16+i}")
    a("v_mov_b32 v17, v16")
    a("v_permlane32_swap_b32 v16, v17")
    a("v_add_f32 v16, v16, v17")
    a("v_lshlrev_b32 v6, 2, v6")
    a("buffer_store_dword v16, v6, s[4:7], s40 offen")
    a("s_endpgm"); a.forget()
    a("prep_CD:")
    a("v_mul_u32_u24 v2, 586, v0"); a("v_lshrrev_b32 v2, 16, v2")
    a("v_mul_u32_u24 v3, 112, v2"); a("v_sub_u32 v3, v0, v3")
    a("v_and_b32 v1, 7, v3")
    a("v_lshrrev_b32 v7, 3, v3")
    i0_code(a, "v4", "v1", "v5")
    a("v_lshl_add_u32 v4, v2, 9, v4")
    a(f"v_mul_u32_u24 v5, {8*896}, v2")
    a("v_lshl_add_u32 v3, v3, 3, v5")
    a("v_mov_b32 v9, v3")
    a("s_cmp_ge_u32 s2, 176"); a("s_cbranch_scc1 prep_D")
    a("s_sub_u32 s41, s2, 160")
    a(f"s_mul_i32 s36, s41, {28*896}")
    a("s_mov_b32 s8, s20"); a("s_mov_b32 s9, s21"); a(f"s_mov_b32 s10, {448*448*2}"); a("s_mov_b32 s11, 0x20000")
    a("v_mov_b32 v5, 0x40000000")
    a("v_cmp_eq_u32 vcc, 3, v2")
    a("v_cndmask_b32 v9, v3, v5, vcc")
    a("s_lshl_b32 s39, s41, 11"); a(f"s_add_u32 s39, s39, {WO}")
    a(f"s_mov_b32 s38, {32*1024}")
    a("s_branch prep_CD2")
    a("prep_D:")
    a("s_sub_u32 s41, s2, 176")
    a(f"s_mul_i32 s36, s41, {32*896}")
    a("s_mov_b32 s8, s28"); a("s_mov_b32 s9, s29"); a(f"s_mov_b32 s10, {1792*448*2}"); a("s_mov_b32 s11, 0x20000")
    a("s_lshl_b32 s39, s41, 11"); a(f"s_add_u32 s39, s39, {W2}")
    a(f"s_mov_b32 s38, {112*1024}")
    a("prep_CD2:")
    a("v_mul_lo_u32 v7, v7, s38")
    a("v_add_u32 v4, v4, v7")
    for j in range(8):
        vo = "v3" if j < 4 else "v9"
        a(f"buffer_load_dwordx2 v[{16+2*j}:{17+2*j}], {vo}, s[8:11], s36 offen offset:{(j%4)*896}")
        if j == 3: a(f"s_add_u32 s36, s36, {4*896}")
    a.drain(vm=True, lgkm=False)
    transpose_store(a, "v4", "s39", False)
    a("s_endpgm"); a.forget()
    a("prep_E:")
    a("s_cmp_eq_u32 s2, 360"); a("s_cbranch_scc1 prep_F")
    a("s_sub_u32 s41, s2, 232")
    a("v_lshrrev_b32 v1, 6, v0")
    a("v_and_b32 v2, 63, v0")
    a("v_readfirstlane_b32 s36, v1")
    a("s_lshr_b32 s37, s41, 1")
    a("s_and_b32 s38, s41, 1"); a("s_mul_i32 s38, s38, 7"); a("s_add_u32 s38, s38, s36")
    a("s_mov_b32 s8, s16"); a("s_mov_b32 s9, s17"); a(f"s_mov_b32 s10, {2048*896}"); a("s_mov_b32 s11, 0x20000")
    a("v_and_b32 v3, 31, v2"); a("v_lshrrev_b32 v4, 5, v2")
    a("v_mul_u32_u24 v3, 896, v3"); a("v_lshl_add_u32 v3, v4, 4, v3")
    a(f"s_mul_i32 s39, s37, {32*896}"); a("s_lshl_b32 s40, s38, 6"); a("s_add_u32 s39, s39, s40")
    a("buffer_load_dwordx4 v[16:19], v3, s[8:11], s39 offen")
    a("buffer_load_dwordx4 v[20:23], v3, s[8:11], s39 offen offset:32")
    a("s_mul_i32 s39, s37, 14"); a("s_add_u32 s39, s39, s38")
    a("s_lshl_b32 s40, s39, 11"); a(f"s_add_u32 s40, s40, {XBUF[0]}")
    a("s_lshl_b32 s39, s39, 9"); a(f"s_add_u32 s39, s39, {STBUF[0]}")
    a("v_lshlrev_b32 v4, 4, v2"); a("v_lshlrev_b32 v5, 3, v2")
    a("v_mov_b32 v10, 0"); a("v_mov_b32 v11, 0")
    a("buffer_store_dwordx4 v[16:19], v4, s[4:7], s40 offen")
    a("buffer_store_dwordx4 v[20:23], v4, s[4:7], s40 offen offset:1024")
    for i in range(8):
        a(f"v_dot2_f32_bf16 v10, v{16+i}, v8, v10")
        a(f"v_dot2_f32_bf16 v11, v{16+i}, v{16+i}, v11")
    a("buffer_store_dwordx2 v[10:11], v5, s[4:7], s39 offen")
    a("s_endpgm"); a.forget()
    a("prep_F:")
    a("v_cmp_gt_u32 vcc, 256, v0")
    a("s_and_saveexec_b64 s[42:43], vcc")
    a("s_cbranch_execz prep_done")
    a("v_lshlrev_b32 v4, 4, v0")
    for i in range(4): a(f"v_mov_b32 v{16+i}, 0")
    for i in range(16):
        a(f"s_mov_b32 s36, {FLAGS + i*4096}")
        a(f"buffer_store_dwordx4 v[16:19], v4, s[4:7], s36 offen")
    a("prep_done:")
    a("s_endpgm")
    txt, n = a.finish()
    return txt

PREP_KD = dict(vgpr=56, sgpr=48, accum=56, grid=NPREP, block=448, lds=8192)
```

```python
KB = 1024
FLAGS = 0
FLAGS_SZ = 0x10000
CSQ = 0x10000
CS13 = 0x12000
WQKV = 0x20000
WO = WQKV + 16 * 84 * KB
W13 = WO + 14 * 32 * KB
W2 = W13 + 16 * 196 * KB
XSZ = 64 * 28 * KB
STSZ = 64 * 14 * 512
X0 = W2 + 14 * 112 * KB
XBUF = [X0 + i * XSZ for i in range(4)]
ST0 = X0 + 4 * XSZ
STBUF = [ST0 + i * STSZ for i in range(4)]
KV0 = ST0 + 4 * STSZ
KVSZ = 16 * 64 * 4 * KB
KVBUF = [KV0 + i * KVSZ for i in range(2)]
O0 = KV0 + 2 * KVSZ
OSZ = 64 * 32 * KB
OBUF = [O0 + i * OSZ for i in range(2)]
H0 = O0 + 2 * OSZ
HSZ = 64 * 112 * KB
HBUF = [H0 + i * HSZ for i in range(2)]
WS_END = H0 + 2 * HSZ
DBG = WS_END
def pi(i):
    return (i & ~12) | ((i & 4) << 1) | ((i & 8) >> 1)
if __name__ == "__main__":
    for k, v in list(globals().items()):
        if k.isupper(): print(k, v if not isinstance(v, int) else hex(v))
```

```python
import sys
from asmlib import *
from layout import *
from gen_prep import gen_prep, PREP_KD

KNAME = "interleave_layers__sliding_block__glu_gated_swiglu__prompt"

def kd(name, vgpr, sgpr, accum, **kw):
    return f""".p2align 6
.amdhsa_kernel {name}
  .amdhsa_next_free_vgpr {vgpr}
  .amdhsa_next_free_sgpr {sgpr}
  .amdhsa_accum_offset {accum}
  .amdhsa_group_segment_fixed_size 0
  .amdhsa_kernarg_size 80
  .amdhsa_user_sgpr_count 2
  .amdhsa_user_sgpr_kernarg_segment_ptr 1
  .amdhsa_system_sgpr_workgroup_id_x 1
.end_amdhsa_kernel"""

def build(kernels, path):
    hdr = ["; generated by dev/gen.py (hand-written generator)"]
    body = []; kds = []
    for name, txt, k in kernels:
        hdr.append(f"; @launch kernel={name} grid=({k['grid']},1,1) block=({k['block']},1,1) lds={k['lds']}")
        body.append(f".globl {name}\n.p2align 8\n.type {name},@function\n{txt}")
        kds.append(kd(name, **k))
    out = "\n".join(hdr) + '\n.amdgcn_target "amdgcn-amd-amdhsa--gfx950"\n.text\n' + "\n".join(body) + '\n.section .rodata,"a"\n' + "\n".join(kds) + "\n"
    open(path, "w").write(out)

if __name__ == "__main__":
    kernels = [("prep_kernel", gen_prep(), PREP_KD)]
    try:
        from gen_main import gen_main, MAIN_KD
        kernels.append(("main_kernel", gen_main(), MAIN_KD))
    except ImportError:
        pass
    build(kernels, sys.argv[1] if len(sys.argv) > 1 else "k.s")
```

```python
import re

REG_RE = re.compile(r'^(-|abs\()?([vas])(\d+)\)?$')
RNG_RE = re.compile(r'^(-)?([vas])\[(\d+):(\d+)\]$')

TRANS = ('v_exp_f32', 'v_log_f32', 'v_rcp_f32', 'v_rsq_f32', 'v_sqrt_f32', 'v_sin_f32', 'v_cos_f32')


def parse_operand(op):
    op = op.strip()
    m = REG_RE.match(op)
    if m:
        return [(m.group(2), int(m.group(3)))]
    m = RNG_RE.match(op)
    if m:
        return [(m.group(2), i) for i in range(int(m.group(3)), int(m.group(4)) + 1)]
    if op == 'vcc':
        return [('s', 106), ('s', 107)]
    if op == 'vcc_lo':
        return [('s', 106)]
    if op == 'vcc_hi':
        return [('s', 107)]
    if op == 'exec':
        return [('s', 126), ('s', 127)]
    if op == 'exec_lo':
        return [('s', 126)]
    if op == 'exec_hi':
        return [('s', 127)]
    if op == 'm0':
        return [('s', 124)]
    return []


class Ins:
    __slots__ = ('text', 'mn', 'ops', 'mods', 'reads', 'writes', 'kind', 'tok', 'counted', 'srcc', 'comment', 'ghost')

    def __init__(self, text, tok=None, counted=True):
        self.text = text
        self.tok = tok
        self.counted = counted
        self.srcc = []
        self.ghost = False
        t = text.split(';')[0].strip()
        if t.endswith(':') or t.startswith('.') or t.startswith('@'):
            self.mn = t
            self.kind = 'label' if t.endswith(':') else ('pseudo' if t.startswith('@') else 'dir')
            self.ops = []
            self.reads = []
            self.writes = []
            return
        parts = t.split(None, 1)
        self.mn = mn = parts[0]
        rest = parts[1] if len(parts) > 1 else ''
        ops = []
        cur = ''
        depth = 0
        for ch in rest:
            if ch == '[':
                depth += 1
            if ch == ']':
                depth -= 1
            if ch == ',' and depth == 0:
                ops.append(cur.strip())
                cur = ''
            else:
                cur += ch
        last = cur.strip()
        mods = ''
        if last:
            lp = last.split(None, 1)
            ops.append(lp[0])
            mods = lp[1] if len(lp) > 1 else ''
        self.ops = ops
        self.mods = mods
        R = [parse_operand(o) for o in ops]
        flat = lambda l: [x for y in l for x in y]
        reads, writes = [], []
        if mn.startswith('v_mfma'):
            self.kind = 'mfma'
            writes = R[0]
            reads = flat(R[1:])
            self.srcc = R[3]
        elif mn.startswith('buffer_load') or mn.startswith('global_load'):
            self.kind = 'vmem'
            if ' lds' in (' ' + mods) or mn.startswith('global_load_lds'):
                reads = flat(R) + [('s', 124)]
                self.kind = 'vmem_lds'
            else:
                writes = R[0]
                reads = flat(R[1:])
                if 'd16' in mn:
                    reads = reads + R[0]
        elif mn.startswith('buffer_store') or mn.startswith('global_store') or mn.startswith('global_atomic') or mn.startswith('buffer_atomic'):
            self.kind = 'vmem_st'
            reads = flat(R)
        elif mn.startswith('buffer_'):
            self.kind = 'vmem_st'
        elif mn.startswith('ds_read') or mn.startswith('ds_bpermute') or mn.startswith('ds_swizzle'):
            self.kind = 'ds'
            writes = R[0]
            reads = flat(R[1:])
        elif mn.startswith('ds_'):
            self.kind = 'ds_st'
            reads = flat(R)
        elif mn.startswith('s_load') or mn.startswith('s_memtime') or mn.startswith('s_memrealtime'):
            self.kind = 'smem'
            writes = R[0]
            reads = flat(R[1:])
        elif mn.startswith('s_'):
            self.kind = 'salu'
            if mn in ('s_waitcnt', 's_barrier', 's_nop', 's_endpgm', 's_branch', 's_sleep', 's_setprio') or mn.startswith('s_cbranch'):
                pass
            elif mn.startswith('s_cmp'):
                reads = flat(R)
            else:
                writes = R[0]
                reads = flat(R[1:])
                if 'saveexec' in mn:
                    writes = writes + [('s', 126), ('s', 127)]
        elif mn.startswith('v_'):
            self.kind = 'valu'
            if mn.startswith('v_cmp'):
                writes = R[0]
                reads = flat(R[1:])
            elif mn.startswith('v_permlane32_swap') or mn.startswith('v_permlane16_swap') or mn.startswith('v_swap'):
                writes = flat(R)
                reads = flat(R)
            elif mn in ('v_add_co_u32', 'v_sub_co_u32', 'v_addc_co_u32', 'v_mad_u64_u32'):
                writes = R[0] + R[1]
                reads = flat(R[2:])
            else:
                writes = R[0]
                reads = flat(R[1:])
                if mn.startswith('v_fmac') or mn.startswith('v_dot2c') or '_dpp' in mn:
                    reads = reads + R[0]
                if mn.startswith('v_cndmask') and len(ops) == 3:
                    reads = reads + [('s', 106), ('s', 107)]
        else:
            raise ValueError('unknown instr ' + text)
        self.reads = reads
        self.writes = writes


def mfma_passes(mn):
    if '32x32x16' in mn:
        return 8
    if '16x16x32' in mn:
        return 4
    raise ValueError(mn)


class Asm:
    def __init__(self):
        self.ins = []
        self.ntok = 0
        self.uncounted = False

    def __call__(self, text, tok=None):
        for line in text.split('\n'):
            line = line.strip()
            if not line:
                continue
            nowr = line.startswith('!')
            if nowr:
                line = line[1:]
            self.ins.append(Ins(line, tok=tok, counted=not self.uncounted))
            if nowr:
                self.ins[-1].writes = []

    def tok(self):
        self.ntok += 1
        return self.ntok

    def wait_tok(self, *toks):
        self.ins.append(Ins('@waittok ' + ' '.join(str(t) for t in toks)))

    def drain(self, vm=True, lgkm=True):
        self.ins.append(Ins('@drain %d %d' % (vm, lgkm)))

    def forget(self):
        self.ins.append(Ins('@forget'))

    def extend(self, ins):
        self.ins.extend(ins)

    def insert_waits(self):
        out = []
        vmq = []
        lgq = []

        def emit_wait(vm=None, lg=None):
            parts = []
            if vm is not None:
                parts.append('vmcnt(%d)' % min(vm, 63))
            if lg is not None:
                parts.append('lgkmcnt(%d)' % min(lg, 15))
            out.append(Ins('s_waitcnt ' + ' '.join(parts)))

        def vm_need(idx):
            n = sum(1 for e in vmq[idx + 1:] if e['counted'])
            return n

        for I in self.ins:
            if I.kind == 'pseudo':
                w = I.text.split()
                if w[0] == '@waittok':
                    toks = set(int(x) for x in w[1:])
                    idx = -1
                    for k, e in enumerate(vmq):
                        if e['tok'] in toks:
                            idx = k
                    if idx >= 0:
                        n = vm_need(idx)
                        assert n <= 63, 'vmcnt overflow in waittok'
                        emit_wait(vm=n)
                        del vmq[:idx + 1]
                elif w[0] == '@drain':
                    vm = 0 if int(w[1]) else None
                    lg = 0 if int(w[2]) else None
                    emit_wait(vm, lg)
                    if vm is not None:
                        vmq.clear()
                    if lg is not None:
                        lgq.clear()
                elif w[0] == '@forget':
                    vmq.clear()
                    lgq.clear()
                continue
            if I.kind in ('label', 'dir'):
                out.append(I)
                continue
            touched = set(I.reads) | set(I.writes)
            vi = -1
            for k, e in enumerate(vmq):
                if e['writes'] & touched:
                    vi = k
            li = -1
            for k, e in enumerate(lgq):
                if e['writes'] & touched:
                    li = k
            vm = lg = None
            if vi >= 0:
                vm = vm_need(vi)
                assert vm <= 63, 'vmcnt overflow at ' + I.text
                del vmq[:vi + 1]
            if li >= 0:
                if any(e['smem'] for e in lgq):
                    lg = 0
                    lgq.clear()
                else:
                    lg = len(lgq) - li - 1
                    if lg > 15:
                        lg = 15
                        del lgq[:len(lgq) - 15]
                    else:
                        del lgq[:li + 1]
            if vm is not None or lg is not None:
                emit_wait(vm, lg)
            if I.mn == 's_waitcnt':
                m = re.search(r'vmcnt\((\d+)\)', I.text)
                if m and int(m.group(1)) == 0 and I.counted:
                    vmq.clear()
                m = re.search(r'lgkmcnt\((\d+)\)', I.text)
                if m and int(m.group(1)) == 0 and I.counted:
                    lgq.clear()
            out.append(I)
            if I.ghost:
                pass
            elif I.kind in ('vmem', 'vmem_lds', 'vmem_st'):
                vmq.append(dict(writes=set(I.writes), tok=I.tok, counted=I.counted))
            elif I.kind in ('ds', 'ds_st'):
                assert I.counted or True
                lgq.append(dict(writes=set(I.writes), smem=False))
            elif I.kind == 'smem':
                lgq.append(dict(writes=set(I.writes), smem=True))
        self.ins = out

    def insert_hazard_nops(self):
        out = []
        pos = 0
        valu_w = {}
        trans_w = {}
        dot_w = {}
        mfma_w = {}
        mfma_c = {}
        st_data = {}
        salu_m0 = -100
        nops_inserted = 0
        for I in self.ins:
            if I.kind in ('label', 'dir'):
                out.append(I)
                continue
            need = 0

            def req(p, ws):
                nonlocal need
                need = max(need, p + 1 + ws)

            k = I.kind
            if k == 'mfma':
                P = mfma_passes(I.mn)
                dt = tuple(I.writes)
                ab = [r for o in I.ops[1:3] for r in parse_operand(o)]
                for r in I.reads:
                    if r in valu_w:
                        req(valu_w[r], 2)
                    if r in dot_w:
                        req(dot_w[r][0], 3)
                for r in ab:
                    if r in mfma_w:
                        p, pp, _ = mfma_w[r]
                        req(p, {4: 8, 8: 12}[pp])
                for r in I.srcc:
                    if r in mfma_w:
                        p, pp, d = mfma_w[r]
                        if d == tuple(I.srcc) and pp == P:
                            pass
                        else:
                            req(p, {4: 6, 8: 10}[pp])
                for r in I.writes:
                    if r in mfma_w and r not in I.srcc:
                        p, pp, d = mfma_w[r]
                        req(p, {4: 6, 8: 10}[pp])
                    if r in st_data:
                        req(st_data[r], 2)
            else:
                rw = set(I.reads) | set(I.writes)
                if k in ('valu', 'vmem', 'vmem_lds', 'vmem_st', 'ds', 'ds_st'):
                    for r in rw:
                        if r in mfma_w:
                            p, pp, _ = mfma_w[r]
                            req(p, {4: 8, 8: 12}[pp])
                if k == 'valu':
                    for r in I.writes:
                        if r in mfma_c:
                            p, pp = mfma_c[r]
                            req(p, {4: 3, 8: 7}[pp])
                        if r in st_data:
                            req(st_data[r], 2)
                    for r in I.reads:
                        if r in trans_w and I.mn not in TRANS:
                            req(trans_w[r], 1)
                        if r[0] == 's' and r in valu_w:
                            req(valu_w[r], 2)
                        if r in valu_w and r[0] != 's':
                            if I.mn.startswith('v_readfirstlane') or I.mn.startswith('v_readlane'):
                                req(valu_w[r], 1)
                            if 'permlane' in I.mn or '_dpp' in I.mn:
                                req(valu_w[r], 2)
                    for r in rw:
                        if r in dot_w:
                            p, mn = dot_w[r]
                            same_c = (mn == I.mn) and (r in I.writes) and not any(r in parse_operand(o) for o in I.ops[1:3])
                            if not same_c:
                                req(p, 3)
                if k in ('vmem', 'ds'):
                    for r in I.writes:
                        if r in st_data:
                            req(st_data[r], 1)
                        if r in mfma_c:
                            p, pp = mfma_c[r]
                            req(p, {4: 3, 8: 7}[pp])
                if k in ('vmem', 'vmem_lds', 'vmem_st'):
                    for r in I.reads:
                        if r[0] == 's' and r in valu_w:
                            req(valu_w[r], 5)
                if k in ('vmem', 'vmem_lds', 'vmem_st', 'ds', 'ds_st'):
                    for r in I.reads:
                        if r in dot_w:
                            req(dot_w[r][0], 3)
                        if r in trans_w:
                            req(trans_w[r], 1)
                if k == 'vmem_lds':
                    req(salu_m0, 1)
                if k == 'salu':
                    for r in I.reads:
                        if r in valu_w and r[0] == 's':
                            req(valu_w[r], 1)
            if need > pos:
                n = need - pos
                nops_inserted += n
                while n > 0:
                    c = min(n, 16)
                    out.append(Ins('s_nop %d' % (c - 1)))
                    pos += c
                    n -= c
            for r in I.writes:
                for d in (valu_w, trans_w, dot_w, mfma_w):
                    d.pop(r, None)
            if k == 'valu':
                for r in I.writes:
                    valu_w[r] = pos
                    if I.mn in TRANS:
                        trans_w[r] = pos
                    if I.mn.startswith('v_dot2'):
                        dot_w[r] = (pos, I.mn)
            elif k == 'mfma':
                P = mfma_passes(I.mn)
                for r in I.writes:
                    mfma_w[r] = (pos, P, tuple(I.writes))
                for r in I.srcc:
                    mfma_c[r] = (pos, P)
            elif k in ('vmem_st', 'ds_st') and ('x4' in I.mn or 'x3' in I.mn or 'b128' in I.mn or 'b96' in I.mn):
                for r in I.reads:
                    if r[0] != 's':
                        st_data[r] = pos
            if k == 'salu' and ('s', 124) in I.writes:
                salu_m0 = pos
            out.append(I)
            if I.mn == 's_nop':
                pos += int(I.ops[0]) + 1
            else:
                pos += 1
        self.ins = out
        return nops_inserted

    def finish(self):
        self.insert_waits()
        n = self.insert_hazard_nops()
        return '\n'.join(('' if i.kind == 'label' else '    ') + i.text for i in self.ins), n


def interleave(main, fill, start=0, per=None):
    out = []
    n = len(main) - start
    if n <= 0:
        return list(main) + list(fill)
    done = 0
    for i, m in enumerate(main):
        out.append(m)
        if i >= start:
            if per is None:
                tgt = (len(fill) * (i - start + 1) + n - 1) // n
            else:
                tgt = min(len(fill), done + per)
            while done < tgt:
                out.append(fill[done])
                done += 1
    out.extend(fill[done:])
    return out


class Sched:
    def __init__(self, budget=5.0):
        self.main = []
        self.posts = {}
        self.pres = {}
        self.fifo = []
        self.budget = budget

    def add_main(self, text, tok=None):
        self.main.append((text, tok))
        return len(self.main) - 1

    def post(self, i, text, tok=None, cost=1.0):
        self.posts.setdefault(max(i, -1), []).append((text, tok, cost))

    def pre(self, i, text, tok=None):
        self.pres.setdefault(i, []).append((text, tok))

    def fill(self, text, earliest=0, deadline=None, cost=None, tok=None):
        if cost is None:
            if callable(text):
                cost = 1.0
            else:
                mn = text.split()[0]
                cost = 2.0 if mn in TRANS else (0.25 if mn.startswith('s_') else 1.0)
        self.fifo.append((text, earliest, deadline, cost, tok))

    def emit(self, a):
        fi = 0
        n = len(self.main)
        for (t, tok, c) in self.posts.get(-1, []):
            self._put(a, t, tok)
        for i in range(n + 1):
            last = -1
            for k in range(fi, len(self.fifo)):
                d = self.fifo[k][2]
                if d is not None and d <= i:
                    last = k
            while fi <= last:
                self._put(a, self.fifo[fi][0], self.fifo[fi][4])
                fi += 1
            for (t, tok) in self.pres.get(i, []):
                self._put(a, t, tok)
            if i == n:
                break
            self._put(a, self.main[i][0], self.main[i][1])
            used = 0.0
            for (t, tok, c) in self.posts.get(i, []):
                self._put(a, t, tok)
                used += c
            while fi < len(self.fifo) and self.fifo[fi][1] <= i and used + self.fifo[fi][3] <= self.budget + 1e-9:
                self._put(a, self.fifo[fi][0], self.fifo[fi][4])
                used += self.fifo[fi][3]
                fi += 1
        for k in sorted(self.posts):
            if k >= n:
                for (t, tok, c) in self.posts[k]:
                    self._put(a, t, tok)
        while fi < len(self.fifo):
            self._put(a, self.fifo[fi][0], self.fifo[fi][4])
            fi += 1

    def _put(self, a, text, tok):
        if callable(text):
            text(a)
        else:
            a(text, tok=tok)
```

```python
import math, struct, os
from asmlib import *
from layout import *

STOP = int(os.environ.get("STOP", "99"))
TS = int(os.environ.get("TS", "0"))
NOFAST = int(os.environ.get("NOFAST", "0"))

XD = int(os.environ.get("XD", "8"))
SPOS = int(os.environ.get("SPOS", "16"))
KD = int(os.environ.get("KD", "10"))
KP = float(os.environ.get("KP", "2"))
KNAME = "interleave_layers__sliding_block__glu_gated_swiglu__prompt_kernel"
def f32(x):
    return "0x%08x" % struct.unpack("<I", struct.pack("<f", x))[0]

MISC = 154 * 1024
L_AUG = MISC
L_ST = MISC + 5120
LDS_BYTES = 160 * 1024
WQ_BLK = {0: 98, 1: 126, 2: 70}

def w13_blk(q):
    return 48 + q if q < 106 else (q - 106 if q < 154 else 48 + q - 154)

SRD = "s[4:7]"
MF = "v_mfma_f32_32x32x16_bf16"

def vr(b, n=4):
    return f"v[{b}:{b+n-1}]"

def ar(b, n=4):
    return f"a[{b}:{b+n-1}]"

def lds_blk(b):
    return f"v{b // 64}", (b % 64) * 1024

def w2_frag(i, b):
    return ar((2 * i + b) * 4)

def wo_frag(i, b):
    k = 2 * i + b
    return ar(224 + 4 * k) if k < 8 else vr(224 + 4 * (k - 8))

class G:
    def __init__(self):
        self.a = Asm()
        self.nl = 0
        self.nts = 0

    def label(self, base):
        self.nl += 1
        return f"L{base}_{self.nl}"

    def ts(self, lvl=1):
        if TS < lvl:
            return
        a = self.a
        k = self.nts
        self.nts += 1
        unc = a.uncounted
        a("s_memrealtime s[42:43]")
        a("s_memtime s[44:45]")
        a("s_waitcnt lgkmcnt(0)")
        a.uncounted = True
        a("v_mov_b32 v222, s42")
        a("v_mov_b32 v223, s44")
        a(f"s_add_u32 s42, s51, {k*8}")
        a("s_mov_b64 exec, 1")
        a(f"buffer_store_dwordx2 v[222:223], v0, {SRD}, s42 offen")
        a("s_mov_b64 exec, -1")
        a.uncounted = unc

    def dma_groups(self, sg, goff, slds, loff, n, flags="", per=4):
        out = []
        for i0 in range(0, n, per):
            g = [f"s_add_u32 s34, {sg}, {goff + i0*1024}", f"s_add_u32 m0, {slds}, {loff + i0*1024}"]
            for i in range(i0, min(n, i0 + per)):
                g.append(f"buffer_load_dwordx4 v0, {SRD}, s34 offen offset:{(i-i0)*1024} {flags} lds")
            out.append(g)
        return out

    def dma(self, sg, goff, slds, loff, n, tok=None, flags=""):
        for g in self.dma_groups(sg, goff, slds, loff, n, flags):
            for t in g:
                self.a(t, tok=tok)

    def grp(self, texts, tok=None):
        def f(a):
            for t in texts:
                a(t, tok=tok)
        return f

    def hstore(self, text):
        def f(a):
            if not NOFAST:
                a(text.replace(SRD, "s[96:99]"))
            a(text.replace(SRD, "s[0:3]") + " sc1")
        return f

    def signal(self, soff_sgpr, const, fast):
        a = self.a
        a(f"s_add_u32 s34, {soff_sgpr}, {const}")
        a("v_mov_b32 v220, s100")
        a("v_mov_b32 v221, s101")
        a("s_mov_b64 exec, 1")
        t = f"buffer_store_dwordx2 v[220:221], v0, {SRD}, s34 offen"
        if fast:
            self.hstore(t)(a)
        else:
            a(t + " sc1")
        a("s_mov_b64 exec, -1")

    def poll(self, soff_sgpr, const, mask, vaddr="v7", hi=None):
        a = self.a
        L = self.label("poll")
        a(f"s_add_u32 s34, {soff_sgpr}, {const}")
        a(f"s_mov_b32 exec_lo, {mask}")
        a(f"s_mov_b32 exec_hi, {hi if hi else 0}")
        a(f"{L}:")
        a(f"buffer_load_dwordx2 v[220:221], {vaddr}, {SRD}, s34 offen sc1")
        a("s_waitcnt vmcnt(0)")
        a("v_cmp_eq_u64 vcc, s[100:101], v[220:221]")
        a("s_sub_u32 s33, s33, 1")
        a("s_cmp_eq_u32 s33, 0")
        a(f"s_cbranch_scc1 main_done")
        a(f"s_cmp_eq_u64 vcc, exec")
        a(f"s_cbranch_scc0 {L}")
        a("s_mov_b64 exec, -1")

    def wave_if(self, cmp, f0, f1):
        a = self.a
        Lo = self.label("oth"); Lj = self.label("join")
        a(cmp)
        a(f"s_cbranch_scc0 {Lo}")
        a.uncounted = True
        f0()
        if f1:
            a(f"s_branch {Lj}")
        a(f"{Lo}:")
        if f1:
            f1()
        a.uncounted = False
        if f1:
            a(f"{Lj}:")

    def wave0_else(self, f0, f1):
        self.wave_if("s_cmp_eq_u32 s14, 0", f0, f1)

    def stats_tree(self, T, n):
        o = []
        idx = list(range(n))
        while len(idx) > 1:
            nxt = []
            for k in range(0, len(idx) - 1, 2):
                x, y = idx[k], idx[k + 1]
                o.append(f"v_add_f32 v{T+2*x}, v{T+2*x}, v{T+2*y}")
                o.append(f"v_add_f32 v{T+2*x+1}, v{T+2*x+1}, v{T+2*y+1}")
                nxt.append(x)
            if len(idx) % 2:
                nxt.append(idx[-1])
            idx = nxt
        return o

    def stats_finish(self, T, AB):
        return [f"v_mov_b32 v{T+2}, v{T}", f"v_mov_b32 v{T+3}, v{T+1}",
              f"v_permlane32_swap_b32 v{T}, v{T+2}", f"v_permlane32_swap_b32 v{T+1}, v{T+3}",
              f"v_add_f32 v{T}, v{T}, v{T+2}", f"v_add_f32 v{T+1}, v{T+1}, v{T+3}",
              f"v_mul_f32 v216, s52, v{T}", f"v_mul_f32 v219, s52, v{T+1}",
              "v_fma_f32 v219, -v216, v216, v219", "v_max_f32 v219, 0, v219", "v_add_f32 v219, s53, v219",
              "v_rsq_f32 v217, v219",
              f"v_cndmask_b32 v{T}, -v216, 0, s[40:41]",
              f"v_cvt_pk_bf16_f32 v{T+1}, v{T}, v{T}",
              f"v_and_b32 v{T+1}, 0xffff0000, v{T+1}",
              f"v_sub_f32 v{T+1}, v{T}, v{T+1}",
              f"v_cvt_pk_bf16_f32 v{AB}, v{T}, v{T+1}",
              f"v_and_b32 v{T+2}, 0xffff0000, v{AB}",
              f"v_sub_f32 v{T+2}, v{T+1}, v{T+2}",
              f"v_cvt_pk_bf16_f32 v{AB+1}, v{T}, v{T+2}",
              f"v_mov_b32 v{AB+2}, v{AB}", f"v_mov_b32 v{AB+3}, 0"]

    def xload(self, sx, const, X, ks):
        o = []
        if ks % 4 == 0:
            o.append(f"s_add_u32 s36, {sx}, {const + ks*1024}")
        o.append(f"buffer_load_dwordx4 {vr(X+4*ks)}, v0, {SRD}, s36 offen offset:{(ks%4)*1024} sc1")
        return o

    def priv_groups(self, frag, sb0, sb1, i0, i1):
        out = []
        for b, sb in ((0, sb0), (1, sb1)):
            for i in range(i0, i1, 2):
                out.append([f"s_add_u32 s34, {sb}, {i*1024}",
                            f"buffer_load_dwordx4 {frag(i,b)}, v0, {SRD}, s34 offen sc1",
                            f"buffer_load_dwordx4 {frag(i+1,b)}, v0, {SRD}, s34 offen offset:1024 sc1"])
        return out

    def touch(self, sbase, const, nlines, dst):
        mask = (1 << nlines) - 1
        o = [f"s_add_u32 s34, {sbase}, {const}", "v_lshlrev_b32 v218, 3, v0"]
        if nlines <= 32:
            o.append(f"s_mov_b64 exec, {hex(mask)}")
        else:
            o += [f"s_mov_b32 exec_lo, -1", f"s_mov_b32 exec_hi, {hex(mask >> 32)}"]
        o += [f"!buffer_load_dword v{dst}, v218, {SRD}, s34 offen sc1", "s_mov_b64 exec, -1"]
        return o

    def prologue(self):
        a = self.a
        X = 16
        a(f"{KNAME}:")
        a("s_load_dwordx16 s[64:79], s[0:1], 0")
        a("s_load_dwordx4 s[80:83], s[0:1], 64")
        a("s_cmp_ge_u32 s2, 256")
        a("s_cbranch_scc1 main_done")
        a("v_lshrrev_b32 v1, 6, v0")
        a("v_and_b32 v7, 63, v0")
        a("v_readfirstlane_b32 s14, v1")
        a("s_and_b32 s12, s2, 7"); a("s_lshl_b32 s12, s12, 1"); a("s_bfe_u32 s34, s2, 0x10003"); a("s_add_u32 s12, s12, s34")
        a("s_lshr_b32 s13, s2, 4")
        a("v_and_b32 v196, 7, v0")
        a("v_lshrrev_b32 v197, 3, v0")
        a("v_lshlrev_b32 v204, 4, v0")
        a("v_lshlrev_b32 v0, 4, v7")
        Lw2, Lwo, Lq, Lu = (self.label(x) for x in ("uw2", "uwo", "uq", "uend"))
        a("s_mov_b32 s38, 7"); a("s_mov_b32 s39, 0"); a("s_mov_b32 s40, 8"); a("s_mov_b32 s42, 28672"); a("s_mov_b32 s44, 0"); a("s_mov_b32 s43, 0")
        a("s_cmp_lt_u32 s13, 14"); a("s_cselect_b32 s46, -1, 0")
        a("s_waitcnt lgkmcnt(0)")
        a("s_cmp_ge_u32 s12, 12"); a(f"s_cbranch_scc1 {Lq}")
        a("s_cmp_eq_u32 s12, 11"); a(f"s_cbranch_scc1 {Lwo}")
        a("s_cmp_ge_u32 s12, 7"); a(f"s_cbranch_scc1 {Lw2}")
        a("s_mul_i32 s34, s13, 7"); a("s_add_u32 s34, s34, s12")
        a("s_mov_b32 s36, 3584"); a("s_lshl_b32 s37, s34, 5"); a("s_mov_b32 s38, 3")
        a("s_mul_i32 s41, s34, 28672"); a(f"s_add_u32 s41, s41, {W13}")
        a("s_lshl_b32 s43, s34, 9"); a(f"s_add_u32 s43, s43, {AUG13}"); a("s_mov_b32 s44, 512")
        a(f"s_mov_b32 s45, {448*1792*2}")
        a("s_mov_b64 s[84:85], s[72:73]"); a("s_mov_b64 s[88:89], s[74:75]")
        a(f"s_branch {Lu}")
        a(f"{Lw2}:")
        a("s_sub_u32 s34, s12, 7")
        a("s_mov_b32 s36, 896"); a(f"s_mul_i32 s37, s34, {448*896}"); a("s_lshl_b32 s35, s13, 6"); a("s_add_u32 s37, s37, s35")
        a("s_lshl_b32 s41, s13, 2"); a("s_add_u32 s41, s41, s34"); a("s_mul_i32 s41, s41, 28672"); a(f"s_add_u32 s41, s41, {W2}")
        a(f"s_and_b32 s45, s46, {1792*448*2}"); a("s_and_b32 s42, s42, s46")
        a("s_mov_b64 s[84:85], s[76:77]"); a("s_mov_b64 s[88:89], s[76:77]")
        a(f"s_branch {Lu}")
        a(f"{Lwo}:")
        a("s_mov_b32 s36, 896"); a("s_lshl_b32 s37, s13, 6"); a("s_mov_b32 s39, 4")
        a("s_lshl_b32 s41, s13, 15"); a(f"s_add_u32 s41, s41, {WO}")
        a(f"s_and_b32 s45, s46, {448*448*2}"); a("s_and_b32 s42, s46, 32768")
        a("s_mov_b64 s[84:85], s[68:69]"); a("s_mov_b64 s[88:89], s[68:69]")
        a(f"s_branch {Lu}")
        a(f"{Lq}:")
        a("s_sub_u32 s34, s12, 12")
        a("s_add_u32 s35, s34, 1"); a("s_cmp_ge_u32 s35, 3"); a("s_cselect_b32 s35, 0, s35")
        a("s_mov_b32 s36, 2688"); a("s_mul_i32 s37, s35, 896"); a("s_mul_i32 s35, s13, 56"); a("s_add_u32 s37, s37, s35")
        a("s_mov_b32 s40, 7")
        a("s_mul_i32 s35, s13, 3"); a("s_add_u32 s35, s35, s34")
        a("s_mul_i32 s41, s35, 28672"); a(f"s_add_u32 s41, s41, {WQKV}")
        a("s_lshl_b32 s43, s35, 9"); a(f"s_add_u32 s43, s43, {AUGQ}")
        a("s_cmp_lt_u32 s34, 3"); a("s_cselect_b32 s46, -1, 0")
        a(f"s_and_b32 s45, s46, {448*1344*2}"); a("s_and_b32 s42, s42, s46"); a("s_and_b32 s44, s46, 512")
        a("s_mov_b64 s[84:85], s[66:67]"); a("s_mov_b64 s[88:89], s[66:67]")
        a(f"{Lu}:")
        a("s_mov_b32 s86, s45"); a("s_mov_b32 s87, 0x20000"); a("s_mov_b32 s90, s45"); a("s_mov_b32 s91, 0x20000")
        a("s_mov_b32 s4, s82"); a("s_mov_b32 s5, s83"); a("s_mov_b32 s6, 0x10000000"); a("s_mov_b32 s7, 0x20000")
        a("s_mov_b32 s8, s64"); a("s_mov_b32 s9, s65"); a(f"s_mov_b32 s10, {2048*896}"); a("s_mov_b32 s11, 0x20000")
        a("v_and_b32 v202, s38, v196"); a("v_lshlrev_b32 v202, 3, v202")
        a("v_mov_b32 v203, 0x40000000")
        a("s_lshr_b32 s47, s42, 9")
        for rd in range(2):
            ko = "v197" if rd == 0 else "v205"
            if rd == 1:
                a("v_add_u32 v205, 32, v197")
            o = 198 + 2 * rd
            a(f"v_lshrrev_b32 v{o}, 2, {ko}")
            a(f"v_mul_lo_u32 v{o}, v{o}, s39")
            a(f"v_lshlrev_b32 v{o+1}, 3, {ko}")
            a(f"v_sub_u32 v{o}, v{o+1}, v{o}")
            a(f"v_mul_lo_u32 v{o}, v{o}, s36")
            a(f"v_add_u32 v{o}, v{o}, v202")
            a(f"v_cmp_eq_u32 vcc, s40, v196")
            a(f"v_cndmask_b32 v{o}, v{o}, v203, vcc")
            a(f"v_cmp_le_u32 vcc, s47, {ko}")
            a(f"v_cndmask_b32 v{o}, v{o}, v203, vcc")
            a(f"v_and_b32 v{o+1}, 3, {ko}")
            a(f"v_add_u32 v{o+1}, s39, v{o+1}")
            a(f"v_cmp_eq_u32 vcc, 7, v{o+1}")
            a(f"v_cndmask_b32 v{o+1}, v{o}, v203, vcc")
        a("s_mov_b32 s92, 0x0f0f0f0f"); a("s_mov_b32 s93, 0x0f0f0f0f")
        a("s_mov_b32 s94, 0xf0f0f0f0"); a("s_mov_b32 s95, 0xf0f0f0f0")
        tokR = [a.tok(), a.tok()]
        for rd in range(2):
            for half, (ex, srd) in enumerate((("s[92:93]", "s[84:87]"), ("s[94:95]", "s[88:91]"))):
                a(f"s_mov_b64 exec, {ex}")
                a("s_mov_b32 s34, s37")
                for i in range(8):
                    vo = 198 + 2 * rd + (i >> 2)
                    r0 = 128 + 16 * rd + 2 * i
                    a(f"!buffer_load_dwordx2 {vr(r0, 2)}, v{vo}, {srd}, s34 offen", tok=tokR[rd])
                    if i < 7:
                        a("s_add_u32 s34, s34, s36")
        a("s_mov_b64 exec, -1")
        a("v_and_b32 v206, 31, v7"); a("v_lshrrev_b32 v207, 5, v7")
        a("v_mul_u32_u24 v208, 896, v206"); a("v_lshl_add_u32 v208, v207, 4, v208")
        a("s_lshl_b32 s34, s12, 2"); a("s_add_u32 s34, s34, s14"); a(f"s_mul_i32 s34, s34, {32*896}")
        for ks in range(28):
            a(f"buffer_load_dwordx4 {vr(X+4*ks)}, v208, s[8:11], s34 offen offset:{ks*32}")
        Ln = self.label("nonce")
        a("s_cmp_eq_u32 s2, 0"); a(f"s_cbranch_scc0 {Ln}")
        a("s_cmp_eq_u32 s14, 0"); a(f"s_cbranch_scc0 {Ln}")
        a.uncounted = True
        a("s_memrealtime s[34:35]")
        a("s_waitcnt lgkmcnt(0)")
        a("s_or_b32 s34, s34, 1")
        a("v_mov_b32 v210, s34"); a("v_mov_b32 v211, s35")
        a("s_mov_b64 exec, 1")
        a("global_store_dwordx2 v0, v[210:211], s[80:81] sc1")
        a("s_mov_b64 exec, -1")
        a.uncounted = False
        a(f"{Ln}:")
        a("s_add_u32 s92, s82, s41"); a("s_addc_u32 s93, s83, 0"); a("s_mov_b32 s94, s42"); a("s_mov_b32 s95, 0x20000")
        a("s_add_u32 s96, s82, s43"); a("s_addc_u32 s97, s83, 0"); a("s_mov_b32 s98, s44"); a("s_mov_b32 s99, 0x20000")
        if TS:
            a("s_lshl_b32 s51, s2, 2"); a("s_add_u32 s51, s51, s14"); a("s_lshl_b32 s51, s51, 9"); a(f"s_add_u32 s51, s51, {DBG}")
        a("v_add_u32 v1, 0x10000, v0")
        a("v_add_u32 v2, 0x20000, v0")
        a("v_lshlrev_b32 v7, 3, v7")
        a(f"s_mul_i32 s48, s13, {84*1024}"); a(f"s_add_u32 s48, s48, {WQKV}")
        a(f"s_mul_i32 s49, s13, {196*1024}"); a(f"s_add_u32 s49, s49, {W13}")
        a("s_mov_b32 s33, 0x40000")
        a("s_getreg_b32 s63, hwreg(HW_REG_XCC_ID, 0, 4)")
        a("s_cmp_ge_u32 s13, 7"); a("s_cselect_b32 s40, 1, 0")
        a("s_mul_i32 s41, s40, 7"); a("s_sub_u32 s41, s13, s41")
        a("s_min_u32 s41, s41, 6")
        a("s_lshr_b32 s42, s14, 1"); a("s_and_b32 s43, s14, 1")
        a("s_lshl_b32 s44, s40, 1")
        a("s_add_u32 s45, s44, s42")
        a("s_sub_u32 s44, s44, s42"); a("s_add_u32 s44, s44, 1")
        a("s_lshl_b32 s16, s12, 20"); a(f"s_add_u32 s16, s16, {GRP0}")
        a("s_lshl_b32 s41, s41, 1")
        a("s_add_u32 s46, s41, s43")
        a("s_sub_u32 s47, s41, s43"); a("s_add_u32 s47, s47, 1")
        a(f"s_mul_i32 s17, s14, {28*1024}"); a("s_add_u32 s17, s17, s16"); a("s_mov_b32 s15, s17")
        a(f"s_mul_i32 s18, s14, {14*256}"); a("s_add_u32 s18, s18, s16"); a("s_mov_b32 s32, s18")
        a("s_lshl_b32 s19, s12, 5"); a("s_add_u32 s19, s19, s13"); a("s_lshl_b32 s19, s19, 14"); a(f"s_add_u32 s19, s19, {KV0}")
        a("s_add_u32 s20, s14, 1"); a("s_lshl_b32 s20, s20, 19"); a("s_sub_u32 s20, s19, s20")
        a("s_lshl_b32 s34, s14, 12"); a("s_add_u32 s19, s19, s34")
        a("s_lshl_b32 s21, s14, 4"); a("s_add_u32 s21, s21, s13"); a("s_lshl_b32 s21, s21, 11"); a("s_add_u32 s21, s21, s16"); a(f"s_add_u32 s21, s21, {GO}")
        a("s_lshl_b32 s34, s14, 13"); a("s_add_u32 s34, s34, s16"); a(f"s_add_u32 s34, s34, {GO}")
        a("s_lshl_b32 s22, s45, 15"); a("s_add_u32 s22, s22, s34")
        a("s_lshl_b32 s23, s44, 15"); a("s_add_u32 s23, s23, s34")
        a(f"s_add_u32 s34, s17, {GH}")
        a(f"s_mul_i32 s24, s45, {112*1024}"); a("s_add_u32 s24, s24, s34")
        a(f"s_mul_i32 s25, s44, {112*1024}"); a("s_add_u32 s25, s25, s34")
        a("s_mul_i32 s34, s45, 14"); a("s_add_u32 s34, s34, s46")
        a("s_lshl_b32 s26, s34, 11"); a("s_add_u32 s26, s26, s16")
        a("s_lshl_b32 s27, s34, 8"); a("s_add_u32 s27, s27, s16")
        a("s_lshl_b32 s28, s14, 4"); a("s_add_u32 s28, s28, s13"); a(f"s_mul_i32 s28, s28, {7*1024}"); a("s_add_u32 s28, s28, s16"); a(f"s_add_u32 s28, s28, {GH}")
        a("s_lshl_b32 s34, s12, 2"); a("s_add_u32 s34, s34, s45")
        a(f"s_mul_i32 s57, s34, {32*896}"); a("s_lshl_b32 s34, s46, 6"); a("s_add_u32 s57, s57, s34")
        a("s_lshl_b32 s34, s14, 13"); a(f"s_add_u32 s34, s34, {WO}")
        a("s_lshl_b32 s58, s46, 15"); a("s_add_u32 s58, s58, s34")
        a("s_lshl_b32 s59, s47, 15"); a("s_add_u32 s59, s59, s34")
        a(f"s_mul_i32 s34, s14, {28*1024}"); a(f"s_add_u32 s34, s34, {W2}")
        a(f"s_mul_i32 s60, s46, {112*1024}"); a("s_add_u32 s60, s60, s34")
        a(f"s_mul_i32 s61, s47, {112*1024}"); a("s_add_u32 s61, s61, s34")
        a("s_sub_u32 s3, s41, 1")
        a("buffer_load_dwordx4 v[8:11], v208, s[8:11], s57 offen")
        a("buffer_load_dwordx4 v[12:15], v208, s[8:11], s57 offen offset:32")
        for sb_, c_, n_ in (("s21", 0, 16), ("s26", GX[1], 16), ("s26", GX[2], 16), ("s27", GST[1], 2), ("s27", GST[2], 2), ("s28", 0, 56)):
            for t in self.touch(sb_, c_, n_, 221):
                a(t)
        a("s_lshl_b32 s29, s12, 8")
        a("s_lshl_b32 s34, s13, 3"); a("s_add_u32 s30, s29, s34")
        a("s_lshl_b32 s62, s12, 4"); a("s_add_u32 s62, s62, s13"); a("s_lshl_b32 s62, s62, 7"); a(f"s_add_u32 s62, s62, {F1}")
        a("s_add_u32 s34, s14, 1"); a("s_lshl_b32 s34, s34, 11"); a("s_sub_u32 s31, s62, s34")
        a("s_sub_u32 s50, s14, 1")
        a(f"s_mov_b32 s52, {f32(1.0/448)}"); a(f"s_mov_b32 s53, {f32(1e-5)}")
        a(f"s_mov_b32 s54, {f32(28**-0.5 * math.log2(math.e))}"); a(f"s_mov_b32 s55, {f32(-math.log2(math.e))}")
        a(f"s_mov_b32 s56, {f32(-2.0**100)}")
        a("s_mov_b32 s40, 0"); a("s_mov_b32 s41, -1")
        a("s_mov_b32 s36, 0x05040100"); a("s_mov_b32 s37, 0x07060302")
        if TS:
            sv = self.nts; self.nts = 31; self.ts(); self.nts = sv
        a("v_lshlrev_b32 v4, 4, v206"); a(f"v_add_u32 v4, {MISC}, v4")
        a("v_cmp_eq_u32 vcc, 28, v206")
        a("v_cndmask_b32 v5, 0, 1.0, vcc")
        a("s_lshl_b32 s34, s14, 7"); a(f"s_add_u32 s34, s34, {L_ST}")
        a("v_lshl_add_u32 v3, v206, 2, s34")
        a("v_lshl_add_u32 v6, v207, 4, s34")
        a("v_and_b32 v202, 4, v196"); a("v_and_b32 v203, 1, v196"); a("v_lshl_or_b32 v202, v203, 1, v202")
        a("v_bfe_u32 v203, v196, 1, 1"); a("v_or_b32 v202, v202, v203"); a("v_lshlrev_b32 v202, 6, v202")
        a("v_lshl_add_u32 v202, v197, 9, v202")
        a("v_mov_b32 v209, 0x3f803f80")
        for e in range(4):
            a(f"v_mov_b32 v{192+e}, 0")
        for rd in range(2):
            a.wait_tok(tokR[rd])
            R, O = 128 + 16 * rd, 160 + 16 * rd
            for e in range(4):
                sel = "s36" if e % 2 == 0 else "s37"
                for m in range(4):
                    a(f"v_perm_b32 v{O+4*e+m}, v{R+2*(2*m+1)+(e>>1)}, v{R+2*(2*m)+(e>>1)}, {sel}")
                a(f"ds_write_b128 v202, {vr(O+4*e)} offset:{rd*16384 + 16*e}")
            for m in range(4):
                for e in range(4):
                    a(f"v_dot2_f32_bf16 v{192+e}, v{O+4*e+m}, v209, v{192+e}")
        a(f"ds_write_b128 v204, v[192:195] offset:{32*1024}")
        a.drain(vm=False)
        a("s_barrier")
        a("s_lshl_b32 s34, s14, 13")
        a("v_add_u32 v202, s34, v0")
        for i in range(8):
            a(f"ds_read_b128 {vr(128+4*i)}, v202 offset:{i*1024}")
        tokP = a.tok()
        for i in range(8):
            if i == 4:
                a("v_add_u32 v202, 4096, v202")
            a(f"buffer_store_dwordx4 {vr(128+4*i)}, v202, s[92:95], 0 offen offset:{(i%4)*1024} sc1", tok=tokP)
        def aug():
            a(f"v_lshlrev_b32 v202, 11, v207"); a("v_lshl_add_u32 v202, v206, 2, v202")
            for i in range(16):
                a(f"ds_read_b32 v{160+i}, v202 offset:{32*1024 + i*128}")
            a("s_waitcnt lgkmcnt(0)")
            for st in (8, 4, 2, 1):
                for i in range(st):
                    a(f"v_add_f32 v{160+i}, v{160+i}, v{160+i+st}")
            a("v_mov_b32 v161, v160")
            a("v_permlane32_swap_b32 v160, v161")
            a("v_add_f32 v160, v160, v161")
            a("v_cvt_pk_bf16_f32 v164, v160, v160")
            a("v_and_b32 v161, 0xffff0000, v164")
            a("v_sub_f32 v161, v160, v161")
            a("v_cvt_pk_bf16_f32 v165, v161, v160")
            a("v_lshlrev_b32 v162, 16, v165")
            a("v_sub_f32 v162, v161, v162")
            a("v_cvt_pk_bf16_f32 v166, v162, v161")
            a("v_mov_b32 v167, 0")
            a("v_and_b32 v202, 19, v206")
            a("v_bfe_u32 v203, v206, 2, 1"); a("v_lshl_or_b32 v202, v203, 3, v202")
            a("v_bfe_u32 v203, v206, 3, 1"); a("v_lshl_or_b32 v202, v203, 2, v202")
            a("v_lshlrev_b32 v202, 4, v202")
            a("buffer_store_dwordx4 v[164:167], v202, s[96:99], 0 offen sc1")
        self.wave_if("s_cmp_eq_u32 s14, 3", aug, None)
        Lt = self.label("tag")
        a("v_mov_b32 v203, 0")
        a(f"{Lt}:")
        a("global_load_dwordx2 v[210:211], v203, s[80:81] sc1")
        a("s_waitcnt vmcnt(0)")
        a("v_readfirstlane_b32 s100, v210")
        a("v_readfirstlane_b32 s101, v211")
        a("s_sub_u32 s33, s33, 1")
        a("s_cmp_eq_u32 s33, 0")
        a("s_cbranch_scc1 main_done")
        a("s_cmp_lg_u32 s100, 0")
        a(f"s_cbranch_scc0 {Lt}")
        a.forget()
        a("s_barrier")
        def sig():
            a("s_lshl_b32 s35, s13, 8"); a("s_lshl_b32 s34, s12, 3"); a("s_add_u32 s35, s35, s34")
            self.signal("s35", PKF, False)
            a("s_add_u32 s35, s101, s63")
            a("v_mov_b32 v221, s35")
            a(f"s_add_u32 s34, s30, {XCCT}")
            a("s_mov_b64 exec, 1")
            a(f"buffer_store_dwordx2 v[220:221], v0, {SRD}, s34 offen sc1")
            a("s_mov_b64 exec, -1")
        self.wave0_else(sig, None)
        self.ts(2)
        for k in range(8):
            a(f"v_mov_b32 v{192+k}, 0")
        for i in range(112):
            o = 192 + 2 * (i % 4)
            a(f"v_dot2_f32_bf16 v{o}, v{X+i}, v209, v{o}")
            a(f"v_dot2_f32_bf16 v{o+1}, v{X+i}, v{X+i}, v{o+1}")
        for t in self.stats_tree(192, 4) + self.stats_finish(192, 212):
            a(t)
        a("s_mov_b32 s8, s78"); a("s_mov_b32 s9, s79")
        a("v_lshlrev_b32 v207, 2, v207")
        a("v_sub_u32 v207, v206, v207")
        for rho in range(16):
            kk = 8 * (rho >> 2) + (rho & 3)
            a(f"v_cmp_le_i32 s[{64+2*rho}:{65+2*rho}], {kk}, v207")
        a("s_mov_b32 s46, s3")
        a("s_lshl_b32 s35, s13, 8")
        self.wave0_else(lambda: self.poll("s35", PKF, "0x7000"), None)
        a(f"s_mul_i32 s37, s14, {14*1024}")
        a(f"s_mul_i32 s39, s14, {7*1024}")
        a("s_barrier")
        self.ts(2)
        a("s_add_u32 s38, s48, s37")
        self.dma("s38", 0, "s37", 98 * 1024, 14, flags="sc1")
        a("s_add_u32 s38, s48, s39")
        self.dma("s38", 56 * 1024, "s39", 70 * 1024, 7, flags="sc1")
        a(f"s_mul_i32 s37, s13, {3*512}"); a(f"s_add_u32 s37, s37, {AUGQ}")
        a("s_lshl_b32 s39, s14, 10")
        a("v_add_u32 v202, s39, v0")
        a(f"buffer_load_dwordx4 v[128:131], v202, {SRD}, s37 offen sc1")
        a(f"v_cmp_gt_u32 vcc, 1536, v202")
        a(f"v_add_u32 v202, {L_AUG}, v202")
        a("s_mov_b64 exec, vcc")
        a("ds_write_b128 v202, v[128:131]")
        a("s_mov_b64 exec, -1")

    def xstream(self, S, a, sx, xoff, sst, stoff, X, T, gaps):
        items = [self.xload(sx, xoff, X, ks) for ks in range(28)]
        sitems = []
        for u in range(7):
            g = []
            if u == 0:
                g.append(f"s_add_u32 s35, {sst}, {stoff}")
            g.append(f"buffer_load_dwordx2 {vr(T+2*u, 2)}, v7, {SRD}, s35 offen offset:{u*512} sc1")
            sitems.append(g)
        order = items[:SPOS] + sitems + items[SPOS:]
        for g in order[:XD]:
            for t in g:
                a(t)
        pos = {}
        for k, g in enumerate(order[XD:]):
            S.post(gaps[k], self.grp(g), cost=1.5)
            pos[XD + k] = gaps[k]
        return pos[SPOS + 6]

    def p1(self, l):
        a = self.a
        X, AK, AV, AQ, WB, RV, AB = 16, 128, 144, 160, 176, 200, 212
        NB = 6
        S = Sched(budget=5)
        seq = []
        for ks in range(29):
            seq.append((0, ks)); seq.append((1, ks))
        for ks in range(29):
            seq.append((2, ks))
        ACC = {0: AK, 1: AV, 2: AQ}
        idx = {}
        for n, (p, ks) in enumerate(seq):
            idx[(p, ks)] = n
            wb = WB + 4 * (n % NB)
            if ks < 28:
                base, off = lds_blk(WQ_BLK[p] + ks)
                S.post(n - NB, f"ds_read_b128 {vr(wb)}, {base} offset:{off}")
                xb = vr(X + 4 * ks)
            else:
                S.post(n - NB, f"ds_read_b128 {vr(wb)}, v4 offset:{p*512}")
                xb = vr(AB)
            ac = vr(ACC[p], 16)
            c = "0" if ks == 0 else ac
            if p == 1:
                S.add_main(f"{MF} {ac}, {xb}, {vr(wb)}, {c}")
            else:
                S.add_main(f"{MF} {ac}, {vr(wb)}, {xb}, {c}")
        dq = idx[(0, 28)]
        if l == 1:
            gaps = [(3 * k) // 2 for k in range(40)]
            gs = self.xstream(S, a, "s17", GX[2], "s18", GST[2], X, AQ, gaps)
            for t in self.stats_tree(AQ, 7) + self.stats_finish(AQ, AB):
                S.fill(t, earliest=gs + 14, deadline=dq)
        a("s_lshl_b32 s34, s14, 12")
        a("v_add_u32 v220, s34, v0")
        S.fill("ds_write_b32 v3, v217", deadline=dq)
        for q in range(3):
            S.fill(f"ds_read_b128 {vr(RV+4*q)}, v6 offset:{q*32}", deadline=dq)
        S.fill("v_mul_f32 v219, s54, v217", deadline=dq)
        e0 = idx[(1, 28)] + 1
        tokS = a.tok()
        f = lambda t, tok=None: S.fill(t, earliest=e0, cost=0.5, tok=tok)
        for i in range(16):
            f(f"v_mul_f32 v{AK+i}, v217, v{AK+i}")
        for i in range(8):
            f(f"v_cvt_pk_bf16_f32 v{AK+i}, v{AK+2*i}, v{AK+2*i+1}")
        f(f"ds_read_b128 {vr(AK+8)}, v6 offset:96")
        f(f"buffer_store_dwordx4 {vr(AK)}, v0, {SRD}, s19 offen sc1", tokS)
        f(f"buffer_store_dwordx4 {vr(AK+4)}, v0, {SRD}, s19 offen offset:1024 sc1", tokS)
        for i in range(16):
            rv = RV + i if i < 12 else AK + 8 + (i - 12)
            f(f"v_fma_f32 v{AV+i}, v{AV+i}, v{rv}, v5")
        for i in range(8):
            f(f"v_cvt_pk_bf16_f32 v{AV+i}, v{AV+2*i}, v{AV+2*i+1}")
        f(f"buffer_store_dwordx4 {vr(AV)}, v0, {SRD}, s19 offen offset:2048 sc1", tokS)
        f(f"buffer_store_dwordx4 {vr(AV+4)}, v0, {SRD}, s19 offen offset:3072 sc1", tokS)
        for k, r in enumerate((AK, AK + 4, AV, AV + 4)):
            S.fill(f"ds_write_b128 v220, {vr(r)} offset:{8*4096+k*1024}", earliest=e0)
        PM = 152
        S.fill("v_mov_b32 v216, 0xffff", earliest=e0); S.fill("v_mov_b32 v218, 0xffff0000", earliest=e0)
        for i in range(8):
            S.fill(f"v_cndmask_b32 v{PM+i}, 0, v216, s[{64+4*i}:{65+4*i}]", earliest=e0)
            S.fill(f"v_cndmask_b32 v221, 0, v218, s[{66+4*i}:{67+4*i}]", earliest=e0)
            S.fill(f"v_or_b32 v{PM+i}, v{PM+i}, v221", earliest=e0)
        S.pre(e0, lambda aa: self.ts(2))
        for k in (0, 1, 20, 40):
            S.pre(k, lambda aa: self.ts(3))
        S.emit(a)
        a("v_mov_b32 v176, v220")
        a.wait_tok(tokS)
        a.drain(vm=False)
        a("s_barrier")
        self.wave0_else(lambda: self.signal("s62", 0, False), None)
        for i in range(16):
            a(f"v_mul_f32 v{AQ+i}, v219, v{AQ+i}")
        a("v_mov_b32 v221, s56")
        a(f"v_cndmask_b32 v{AQ+12}, v{AQ+12}, v221, s[40:41]")
        for i in range(8):
            a(f"v_cvt_pk_bf16_f32 v{AQ+i}, v{AQ+2*i}, v{AQ+2*i+1}")
        a("v_mov_b32 v168, v176")
        if l == 0:
            a("v_bfe_u32 v218, v7, 7, 2")
            a("v_add_u32 v220, s46, v218")
            a("v_mov_b32 v221, s13")
            a("v_cmp_eq_u32 vcc, 0, v218")
            a("v_and_b32 v218, 0x78, v7")
            a("v_cndmask_b32 v220, v220, v221, vcc")
            a("v_lshl_add_u32 v218, v220, 8, v218")
            a("s_mov_b32 s47, 0")
            self.poll("s47", PKF, "0x0f80007f", vaddr="v218", hi="0x0f80")
            L = self.label("xcc")
            a(f"s_add_u32 s34, s29, {XCCT}")
            a("s_mov_b64 exec, 0xffff")
            a(f"{L}:")
            a(f"buffer_load_dwordx2 v[220:221], v7, {SRD}, s34 offen sc1")
            a("s_waitcnt vmcnt(0)")
            a("v_subrev_u32 v218, s101, v221")
            a("v_cmp_eq_u32 s[36:37], s100, v220")
            a("v_cmp_gt_u32 vcc, 16, v218")
            a("s_sub_u32 s33, s33, 1")
            a("s_cmp_eq_u32 s33, 0")
            a("s_cbranch_scc1 main_done")
            a("s_and_b32 s36, s36, vcc_lo")
            a("s_cmp_eq_u32 s36, 0xffff")
            a(f"s_cbranch_scc0 {L}")
            a.forget()
            a("v_cmp_eq_u32 vcc, s63, v218")
            a("s_mov_b64 exec, -1")
            a("s_lshl_b32 s39, s14, 10")
            a("v_add_u32 v218, s39, v0")
            a(f"s_mul_i32 s38, s13, {7*512}"); a(f"s_add_u32 s38, s38, {AUG13}")
            a(f"buffer_load_dwordx4 v[176:179], v218, {SRD}, s38 offen sc1")
            a("s_mov_b32 s96, s4"); a("s_mov_b32 s97, s5"); a("s_mov_b32 s99, 0x20000")
            a("s_mov_b32 s0, s4"); a("s_mov_b32 s1, s5"); a("s_mov_b32 s3, 0x20000")
            if NOFAST:
                a("s_cmp_eq_u32 s4, -1")
            else:
                a("s_cmp_eq_u32 vcc_lo, 0xffff")
            a("s_cselect_b32 s98, 0x10000000, 0")
            a("s_cselect_b32 s2, 0, 0x10000000")
            a(f"s_cselect_b32 s63, 0, {SLOWD}")
            a(f"v_cmp_gt_u32 vcc, 3584, v218")
            a(f"v_add_u32 v218, {L_AUG + 1536}, v218")
            a("s_mov_b64 exec, vcc")
            a("ds_write_b128 v218, v[176:179]")
            a("s_mov_b64 exec, -1")

    def p2(self, l):
        a = self.a
        Q, KF, SB, NM, PM, OA, VB = 160, 16, 88, 136, 152, 176, 192
        def halo():
            Lf = self.label("fill"); Lh = self.label("halo")
            a("s_lshl_b32 s37, s14, 14"); a("s_sub_u32 s37, 16384, s37")
            a("s_cmp_le_u32 s12, s14")
            a(f"s_cbranch_scc1 {Lf}")
            self.poll("s31", 0, "1")
            self.dma("s20", 0, "s37", 0, 16, flags="sc1")
            a(f"s_branch {Lh}")
            a(f"{Lf}:")
            a("v_add_u32 v220, s37, v0")
            for i in range(8):
                a(f"v_mov_b32 v{SB+i}, 0")
            a("v_mov_b32 v221, 0x3f80")
            a(f"v_cndmask_b32 v{SB+6}, 0, v221, s[40:41]")
            for t in range(4):
                a(f"ds_write_b128 v220, {vr(SB)} offset:{t*4096}")
                a(f"ds_write_b128 v220, {vr(SB+4)} offset:{t*4096+1024}")
                a(f"ds_write_b128 v220, {vr(SB)} offset:{t*4096+2048}")
                a(f"ds_write_b128 v220, {vr(SB)} offset:{t*4096+3072}")
            a(f"{Lh}:")
            a("s_waitcnt vmcnt(0) lgkmcnt(0)")
        def pref():
            a("s_sub_u32 s37, s14, 2"); a(f"s_mul_i32 s37, s37, {19*1024}")
            a("s_add_u32 s38, s49, s37")
            self.dma("s38", 0, "s37", 48 * 1024, 19, flags="sc1")
        self.wave_if("s_cmp_lt_u32 s14, 2", halo, pref)
        a(f"s_mul_i32 s37, s14, {17*1024}")
        a("s_add_u32 s38, s49, s37")
        a("s_barrier")
        self.ts()
        order = [8, 0, 1, 2, 3, 4, 5, 6, 7]
        S = Sched(budget=5)
        for n, i in enumerate(order):
            for s in range(2):
                S.post(2 * n + s - 6, f"ds_read_b128 {vr(KF+8*n+4*s)}, v168 offset:{i*4096+s*1024}")
        for n, i in enumerate(order):
            sb = SB + 16 * (n % 3)
            S.add_main(f"{MF} {vr(sb,16)}, {vr(KF+8*n)}, {vr(Q)}, 0")
            S.add_main(f"{MF} {vr(sb,16)}, {vr(KF+8*n+4)}, {vr(Q+4)}, {vr(sb,16)}")
            e = 2 * n + 3
            dl = 2 * (n + 3)
            if n == 0:
                continue
            if n == 1:
                sd = SB
                for k in range(16):
                    S.fill(f"v_cndmask_b32 v{sb+k}, v{sb+k}, v{sd+k}, s[{64+2*k}:{65+2*k}]", earliest=e, deadline=6)
                S.fill(f"v_max_f32 v216, v{sb}, v{sb+1}", earliest=e, deadline=dl)
                for k in range(1, 8):
                    S.fill(f"v_max3_f32 v216, v216, v{sb+2*k}, v{sb+2*k+1}", earliest=e, deadline=dl)
            else:
                for k in range(8):
                    S.fill(f"v_max3_f32 v216, v216, v{sb+2*k}, v{sb+2*k+1}", earliest=e, deadline=dl)
        S.emit(a)
        a("v_mov_b32 v217, v216")
        a("v_permlane32_swap_b32 v216, v217")
        a("v_max_f32 v216, v216, v217")
        for k in range(16):
            a(f"v_sub_f32 v{NM+k}, 0, v216")
        self.ts(2)
        S = Sched(budget=10)
        nv = [0]
        def vread(i, s, gap):
            vb = VB + 4 * (nv[0] % 6); nv[0] += 1
            S.post(gap, f"ds_read_b128 {vr(vb)}, v168 offset:{i*4096+2048+s*1024}")
            return vb
        def smm(n):
            sb = SB + 16 * (n % 3)
            S.add_main(f"{MF} {vr(sb,16)}, {vr(KF+8*n)}, {vr(Q)}, {vr(NM,16)}")
            return S.add_main(f"{MF} {vr(sb,16)}, {vr(KF+8*n+4)}, {vr(Q+4)}, {vr(sb,16)}")
        first = [True]
        def pv(i, pb):
            for s in range(2):
                vb = vread(i, s, len(S.main) - 4)
                c = "0" if first[0] else vr(OA, 16)
                first[0] = False
                S.add_main(f"{MF} {vr(OA,16)}, {vr(vb)}, {vr(pb+4*s)}, {c}")
        def soft(n, e, dl):
            sb = SB + 16 * (n % 3)
            for k in range(8):
                S.fill(f"v_exp_f32 v{sb+2*k}, v{sb+2*k}", earliest=e, deadline=dl)
                S.fill(f"v_exp_f32 v{sb+2*k+1}, v{sb+2*k+1}", earliest=e, deadline=dl)
                if k >= 1:
                    S.fill(f"v_cvt_pk_bf16_f32 v{sb+k-1}, v{sb+2*k-2}, v{sb+2*k-1}", earliest=e, deadline=dl)
            S.fill(f"v_cvt_pk_bf16_f32 v{sb+7}, v{sb+14}, v{sb+15}", earliest=e, deadline=dl)
        smm(0); i1 = smm(1); i2 = smm(2)
        sb1 = SB + 16
        for k in range(16):
            S.fill(f"v_cndmask_b32 v{sb1+k}, v{sb1+k}, v{SB+k}, s[{64+2*k}:{65+2*k}]", earliest=i1 + 1, deadline=6)
        i3 = smm(3)
        soft(1, i1 + 1, 8)
        for k in range(8):
            S.fill(f"v_bfi_b32 v{sb1+8+k}, v{PM+k}, 0, v{sb1+k}", deadline=8)
            S.fill(f"v_and_b32 v{sb1+k}, v{PM+k}, v{sb1+k}", deadline=8)
        pv(8, sb1); pv(0, sb1 + 8)
        send = {2: i2, 3: i3}
        for n in range(2, 9):
            if n + 2 <= 8:
                send[n + 2] = smm(n + 2)
            soft(n, send[n] + 1, len(S.main))
            pv(order[n], SB + 16 * (n % 3))
        for k, g in enumerate(self.dma_groups("s38", 38 * 1024, "s37", (48 + 38) * 1024, 17, per=1, flags="sc1")):
            S.post(2 * k, self.grp(g), cost=1.5)
        if l == 0:
            for k, g in enumerate(self.priv_groups(wo_frag, "s58", "s59", 0, 8)):
                S.post(4 * k + 1, self.grp(g), cost=2)
        S.emit(a)
        a(f"v_mov_b32 v216, v{OA+12}")
        a(f"v_mov_b32 v217, v{OA+12}")
        a("v_permlane32_swap_b32 v216, v217")
        a("v_rcp_f32 v217, v217")
        for k in range(16):
            a(f"v_mul_f32 v{OA+k}, v217, v{OA+k}")
            if k in (7, 15):
                h = k // 8
                for kk in range(4):
                    a(f"v_cvt_pk_bf16_f32 v{OA+8*h+kk}, v{OA+8*h+2*kk}, v{OA+8*h+2*kk+1}")
                self.hstore(f"buffer_store_dwordx4 {vr(OA+8*h)}, v0, {SRD}, s21 offen offset:{h*1024}")(a)

    def ksplit_pre(self):
        a = self.a
        AC = 16
        for k in range(8):
            a(f"v_lshlrev_b32 v{AC+2*k}, 16, v{8+k}")
            a(f"v_and_b32 v{AC+2*k+1}, 0xffff0000, v{8+k}")
        for s in range(1, 4):
            a(f"s_xor_b32 s34, s14, {s}")
            a(f"s_mul_i32 s34, s34, 12288")
            a(f"s_add_u32 s34, s34, {(s-1)*4096}")
            a(f"v_add_u32 v{207+s}, s34, v0")
        a(f"s_mul_i32 s34, s14, 12288")
        a("v_add_u32 v211, s34, v0")
        for k in range(4):
            a(f"v_mov_b32 v{212+k}, 0")
        a("v_mov_b32 v216, 0x3f803f80")
        a("v_and_b32 v217, 0xf8, v7")

    def ksplit(self, n, sa0, sa1, wfrag, final):
        a = self.a
        AC, AB, NBUF = 16, 80, 16
        loads = []
        for i in range(n):
            for s, sa in ((0, sa0), (1, sa1)):
                st = "s36" if s == 0 else "s37"
                g = []
                if i % 4 == 0:
                    g.append(f"s_add_u32 {st}, {sa}, {i*1024}")
                g.append(f"buffer_load_dwordx4 {vr(AB + 8*(i % NBUF) + 4*s)}, v0, {SRD}, {st} offen offset:{(i%4)*1024} sc1")
                loads.append((i, g))
        S = Sched(budget=5)
        for i in range(n):
            for sl in (1, 0, 2, 3) if i < n - 1 else (1, 2, 3, 0):
                aa, bb = sl >> 1, sl & 1
                ac = AC + 16 * sl
                c = vr(ac, 16) if (i > 0 or sl == 0) else "0"
                S.add_main(f"{MF} {vr(ac,16)}, {wfrag(i,bb)}, {vr(AB + 8*(i % NBUF) + 4*aa)}, {c}")
        for k, (i, g) in enumerate(loads):
            pos = -1 if k < KD else max(int(KP * (k - KD)), 4 * (i - NBUF) + 3)
            S.post(pos, self.grp(g), cost=1.5)
        if n == 28:
            for k in (0, 1, 28, 56, 84):
                S.pre(k, lambda aa: self.ts(3))
        S.emit(a)
        self.ts(2)
        for s in range(1, 4):
            for q in range(4):
                a(f"ds_write_b128 v{207+s}, {vr(AC+16*s+4*q)} offset:{q*1024}")
        a.drain(vm=False)
        a("s_barrier")
        for q in range(4):
            for s in range(3):
                a(f"ds_read_b128 {vr(AB+16*s+4*q)}, v211 offset:{s*4096+q*1024}")
        for h in range(2):
            for q in (2 * h, 2 * h + 1):
                for s in range(3):
                    for k in range(4 * q, 4 * q + 4):
                        a(f"v_add_f32 v{AC+k}, v{AC+k}, v{AB+16*s+k}")
            for k in range(4 * h, 4 * h + 4):
                a(f"v_cvt_pk_bf16_f32 v{8+k}, v{AC+2*k}, v{AC+2*k+1}")
            final(h)

    def store_x(self, xoff, stoff):
        a = self.a
        def fin(h):
            if h == 0:
                a(f"s_add_u32 s34, s26, {xoff}")
            self.hstore(f"buffer_store_dwordx4 {vr(8+4*h)}, v0, {SRD}, s34 offen offset:{h*1024}")(a)
            for k in range(4 * h, 4 * h + 4):
                o = 2 * (k & 1)
                a(f"v_dot2_f32_bf16 v{212+o}, v{8+k}, v216, v{212+o}")
                a(f"v_dot2_f32_bf16 v{213+o}, v{8+k}, v{8+k}, v{213+o}")
            if h == 1:
                a(f"s_add_u32 s35, s27, {stoff}")
                a("v_add_f32 v212, v212, v214")
                a("v_add_f32 v213, v213, v215")
                a("v_mov_b32 v214, v212")
                a("v_mov_b32 v215, v213")
                a("v_permlane32_swap_b32 v212, v214")
                a("v_permlane32_swap_b32 v213, v215")
                a("v_add_f32 v212, v212, v214")
                a("v_add_f32 v213, v213, v215")
                self.hstore(f"buffer_store_dwordx2 v[212:213], v217, {SRD}, s35 offen")(a)
        return fin

    def p3(self, l):
        a = self.a
        Le = self.label("p3end")
        a.drain()
        a("s_barrier")
        self.wave0_else(lambda: self.signal("s30", 0 * 4096, True), None)
        a("s_cmp_ge_u32 s13, 14")
        a(f"s_cbranch_scc1 {Le}")
        self.ksplit_pre()
        self.wave0_else(lambda: self.poll("s29", 0 * 4096, "0xffff"), None)
        a("s_barrier")
        self.ts()
        self.ksplit(8, "s22", "s23", wo_frag, self.store_x(GX[1], GST[1]))
        a.drain()
        a("s_barrier")
        self.wave0_else(lambda: self.signal("s30", 1 * 4096, True), None)
        a(f"{Le}:")

    def dma3(self, sbase, q0, n3, lds0):
        a = self.a
        a(f"s_mul_i32 s37, s50, {n3*1024}")
        a(f"s_add_u32 s38, {sbase}, s37")
        self.dma("s38", q0 * 1024, "s37", lds0 * 1024, n3, flags="sc1")

    def p4(self, l):
        a = self.a
        X, AC, WB, NB, AB = 16, 128, 192, 5, 212
        self.wave0_else(lambda: self.poll("s29", 1 * 4096, "0x3fff"), None)
        a.forget()
        a(f"s_mul_i32 s37, s14, {12*1024}")
        a("s_add_u32 s38, s49, s37")
        a("s_barrier")
        self.ts()
        S = Sched(budget=5)
        seq = []
        for ks in range(29):
            for t in range(3):
                seq.append((t, ks))
        for t in range(3, 7):
            for ks in range(29):
                seq.append((t, ks))
        aset = {0: 0, 1: 1, 2: 2, 3: 3, 4: 0, 5: 1, 6: 2}
        idx = {k: n for n, k in enumerate(seq)}
        first = {t: idx[(t, 0)] for t in range(7)}
        last = {t: idx[(t, 28)] for t in range(7)}
        for n, (t, ks) in enumerate(seq):
            wb = WB + 4 * (n % NB)
            if ks < 28:
                base, off = lds_blk(w13_blk(t * 28 + ks))
                S.post(n - NB, f"ds_read_b128 {vr(wb)}, {base} offset:{off}")
                xb = vr(X + 4 * ks)
            else:
                S.post(n - NB, f"ds_read_b128 {vr(wb)}, v4 offset:{(3+t)*512}")
                xb = vr(AB)
            ac = vr(AC + 16 * aset[t], 16)
            S.add_main(f"{MF} {ac}, {vr(wb)}, {xb}, {'0' if ks == 0 else ac}")
        T = AC + 48
        gaps = [2 * k for k in range(40)]
        gs = self.xstream(S, a, "s15", GX[1], "s32", GST[1], X, T, gaps)
        for t in self.stats_tree(T, 7) + self.stats_finish(T, AB):
            S.fill(t, earliest=gs + 20, deadline=idx[(0, 28)])
        S.fill("v_mul_f32 v217, s55, v217", deadline=idx[(0, 28)])
        g0 = gaps[35 - XD]
        for k, g in enumerate(self.dma_groups("s38", 106 * 1024, "s37", 0, 12, per=1, flags="sc1")):
            S.post(g0 + 2 * k, self.grp(g), cost=1.5)
        assert g0 + 24 < first[3]
        def epi(t, earliest, deadline):
            ac = AC + 16 * aset[t]
            f = lambda s, c=None: S.fill(s, earliest=earliest, deadline=deadline, cost=c)
            for i in range(8):
                f(f"v_mul_f32 v{ac+8+i}, v{ac+i}, v{ac+8+i}")
                f(f"v_mul_f32 v{ac+i}, v217, v{ac+i}")
            for i in range(8):
                f(f"v_exp_f32 v{ac+i}, v{ac+i}")
            for i in range(8):
                f(f"v_fma_f32 v{ac+i}, v{ac+i}, v219, v219")
            for i in range(8):
                f(f"v_rcp_f32 v{ac+i}, v{ac+i}")
            for i in range(8):
                f(f"v_mul_f32 v{ac+i}, v{ac+i}, v{ac+8+i}")
            for i in range(4):
                f(f"v_cvt_pk_bf16_f32 v{ac+i}, v{ac+2*i}, v{ac+2*i+1}")
            if t % 4 == 0:
                f(f"s_add_u32 s39, s28, {t*1024}")
            f(self.hstore(f"buffer_store_dwordx4 {vr(ac)}, v0, {SRD}, s39 offen offset:{(t%4)*1024}"), 3)
        tokD = a.tok()
        nmid = first[3] + 12
        def midbar(aa):
            aa.drain(vm=True, lgkm=False)
            self.ts(2)
            aa("s_barrier")
            aa(f"s_mul_i32 s37, s14, {11*1024}")
            aa("s_add_u32 s38, s49, s37")
        assert nmid <= idx[(3, 22)] - NB
        S.pre(nmid, midbar)
        for k, g in enumerate(self.dma_groups("s38", 154 * 1024, "s37", 48 * 1024, 11, per=1, flags="sc1")):
            S.post(nmid + 2 * k, self.grp(g, tok=tokD), cost=1.5)
        def bar2(aa):
            self.ts(2)
            aa.wait_tok(tokD)
            aa("s_barrier")
            aa(f"s_mul_i32 s37, s14, {14*1024}")
            aa("s_add_u32 s38, s48, s37")
        nb2 = idx[(5, 14)] - NB
        S.pre(nb2, bar2)
        if l == 0:
            for k, g in enumerate(self.dma_groups("s38", 0, "s37", 98 * 1024, 14, per=1, flags="sc1")):
                S.post(nb2 + 1 + 3 * k, self.grp(g), cost=1.5)
            gs2 = self.priv_groups(w2_frag, "s60", "s61", 0, 28)
            for k, g in enumerate(gs2):
                p = nmid + 1 + 3 * k + (k // 2)
                if p > nb2 and (p - nb2 - 1) % 3 == 0:
                    p += 1
                S.post(p, self.grp(g), cost=2)
        epi(0, last[2] + 1, first[4])
        epi(1, last[2] + 1, first[5])
        epi(2, last[2] + 1, first[6])
        for t in range(3, 7):
            epi(t, last[t] + 2, None)
        S.pre(len(seq), lambda aa: self.ts(2))
        for k in (0, 1, 21, 42, 63):
            S.pre(k, lambda aa: self.ts(3))
        S.emit(a)

    def p5(self, l):
        a = self.a
        Le = self.label("p5end")
        a.drain()
        a("s_barrier")
        self.wave0_else(lambda: self.signal("s30", 2 * 4096, True),
                        (lambda: self.dma3("s48", 54, 10, 68)) if l == 0 else None)
        a("s_cmp_ge_u32 s13, 14")
        a(f"s_cbranch_scc1 {Le}")
        self.ksplit_pre()
        if l == 1:
            a("v_bfe_u32 v212, v7, 3, 5")
            a("v_mul_u32_u24 v212, 896, v212")
            a("v_bfe_u32 v213, v7, 8, 1")
            a("v_lshl_add_u32 v212, v213, 4, v212")
        self.wave0_else(lambda: self.poll("s29", 2 * 4096, "0xffff"), None)
        a("s_barrier")
        self.ts()
        if l == 0:
            self.ksplit(28, "s24", "s25", w2_frag, self.store_x(GX[2], GST[2]))
            a.drain()
            a("s_barrier")
            self.wave0_else(lambda: self.signal("s30", 3 * 4096, True), None)
        else:
            self.ksplit(28, "s24", "s25", w2_frag,
                        lambda h: a(f"buffer_store_dwordx4 {vr(8+4*h)}, v212, s[8:11], s57 offen offset:{32*h}"))
        a(f"{Le}:")

    def build(self):
        a = self.a
        self.nts = 29
        self.prologue()
        for l in range(2):
            self.nts = 0
            a.drain()
            a("s_barrier")
            self.ts()
            ph = [self.p1, self.p2, self.p3, self.p4, self.p5]
            for k, p in enumerate(ph):
                p(l)
                self.ts()
                if STOP == 5 * l + k + 1:
                    a("s_branch main_done")
            if l == 0:
                self.wave0_else(lambda: self.poll("s29", 3 * 4096, "0x3fff"), None)
                for s, d in (("s19", 0x40000), ("s20", 0x40000), ("s29", 4 * 4096), ("s30", 4 * 4096), ("s31", 0x8000), ("s62", 0x8000)):
                    a(f"s_add_u32 {s}, {s}, {d}")
                for s in ("s15", "s32", "s21", "s22", "s23", "s24", "s25", "s26", "s27", "s28"):
                    a(f"s_add_u32 {s}, {s}, s63")
                if TS:
                    a("s_add_u32 s51, s51, 256")
        a("main_done:")
        a("s_endpgm")
        txt, n = a.finish()
        return txt


def gen_main():
    return G().build()

MAIN_KD = dict(vgpr=512, sgpr=102, accum=256, grid=256, block=256, lds=LDS_BYTES)
```

```python
KB = 1024
FLAGS = 0
XCCT = 0x8000
PKF = 0x9000
PKA = 0xa000
F1 = 0x10000
FLAGS_SZ = 0x20000
CSP = 0x700000
CSP13 = 0x740000
WQKV = 0x40000
WO = WQKV + 16 * 84 * KB
W13 = WO + 14 * 32 * KB
W2 = W13 + 16 * 196 * KB
WEND = W2 + 14 * 112 * KB
KV0 = 0x800000
GRP0 = 0x1000000
GSZ = 0x100000
GX = [0, 112 * KB, 224 * KB]
GST = [336 * KB, 364 * KB, 392 * KB]
GO = 420 * KB
GH = 548 * KB
SLOWD = 0x1000000
DBG = 0x3000000
def pi(i):
    return (i & ~12) | ((i & 4) << 1) | ((i & 8) >> 1)
assert WEND <= KV0
```

```python
import sys
from asmlib import *
from layout import *

KNAME = "interleave_layers__sliding_block__glu_gated_swiglu__prompt"

def kd(name, vgpr, sgpr, accum, **kw):
    return f""".p2align 6
.amdhsa_kernel {name}
  .amdhsa_next_free_vgpr {vgpr}
  .amdhsa_next_free_sgpr {sgpr}
  .amdhsa_accum_offset {accum}
  .amdhsa_group_segment_fixed_size 0
  .amdhsa_kernarg_size 80
  .amdhsa_user_sgpr_count 2
  .amdhsa_user_sgpr_kernarg_segment_ptr 1
  .amdhsa_system_sgpr_workgroup_id_x 1
.end_amdhsa_kernel"""

def build(kernels, path):
    hdr = ["; generated by dev/gen.py (hand-written generator)"]
    body = []; kds = []
    for name, txt, k in kernels:
        import os
        if os.environ.get("PLAIN"):
            hdr.append(f"; @launch grid=({k['grid']},1,1) block=({k['block']},1,1) lds={k['lds']}")
        else:
          hdr.append(f"; @launch kernel={name} grid=({k['grid']},1,1) block=({k['block']},1,1) lds={k['lds']}")
        body.append(f".globl {name}\n.p2align 8\n.type {name},@function\n{txt}")
        kds.append(kd(name, **k))
    out = "\n".join(hdr) + '\n.amdgcn_target "amdgcn-amd-amdhsa--gfx950"\n.text\n' + "\n".join(body) + '\n.section .rodata,"a"\n' + "\n".join(kds) + "\n"
    open(path, "w").write(out)

if __name__ == "__main__":
    from gen_main import gen_main, MAIN_KD
    kernels = [(KNAME + "_kernel", gen_main(), MAIN_KD)]
    build(kernels, sys.argv[1] if len(sys.argv) > 1 else "k.s")
```

```python
import math, struct, os
from asmlib import *
from layout import *

STOP = int(os.environ.get("STOP", "99"))
TS = int(os.environ.get("TS", "0"))
NOFAST = int(os.environ.get("NOFAST", "0"))

DTS = int(os.environ.get("DTS", "0"))
XD = int(os.environ.get("XD", "8"))
SPOS = int(os.environ.get("SPOS", "16"))
KD = int(os.environ.get("KD", "10"))
KP = float(os.environ.get("KP", "2"))
KNAME = "interleave_layers__sliding_block__glu_gated_swiglu__prompt_kernel"
def f32(x):
    return "0x%08x" % struct.unpack("<I", struct.pack("<f", x))[0]

MISC = 154 * 1024
L_AUG = MISC
L_ST = MISC + 5120
LDS_BYTES = 160 * 1024
WQ_BLK = {0: 98, 1: 126, 2: 70}

def w13_blk(q):
    return 48 + q if q < 106 else (q - 106 if q < 154 else 48 + q - 154)

SRD = "s[4:7]"
MF = "v_mfma_f32_32x32x16_bf16"

def vr(b, n=4):
    return f"v[{b}:{b+n-1}]"

def ar(b, n=4):
    return f"a[{b}:{b+n-1}]"

def lds_blk(b):
    return f"v{b // 64}", (b % 64) * 1024

def w2_frag(i, b):
    return ar((2 * i + b) * 4)

def wo_frag(i, b):
    k = 2 * i + b
    return ar(224 + 4 * k) if k < 8 else vr(224 + 4 * (k - 8))

class G:
    def __init__(self):
        self.a = Asm()
        self.nl = 0
        self.nts = 0
        self.ndts = 0

    def label(self, base):
        self.nl += 1
        return f"L{base}_{self.nl}"

    def ts(self, lvl=1):
        if TS < lvl:
            return
        a = self.a
        k = self.nts
        self.nts += 1
        unc = a.uncounted
        a("s_memrealtime s[42:43]")
        a("s_memtime s[44:45]")
        a("s_waitcnt lgkmcnt(0)")
        a.uncounted = True
        a("v_mov_b32 v222, s42")
        a("v_mov_b32 v223, s44")
        a(f"s_add_u32 s42, s51, {k*8}")
        a("s_mov_b64 exec, 1")
        a(f"buffer_store_dwordx2 v[222:223], v0, {SRD}, s42 offen")
        a("s_mov_b64 exec, -1")
        a.uncounted = unc

    def dts(self):
        if not DTS:
            return
        a = self.a
        k = self.ndts
        self.ndts += 1
        L = self.label("dts")
        unc = a.uncounted
        a("s_cmp_eq_u32 s51, 0")
        a(f"s_cbranch_scc0 {L}")
        a.uncounted = True
        a("s_memrealtime s[42:43]")
        a("s_waitcnt lgkmcnt(0)")
        a("v_mov_b32 v222, s42")
        a("s_mov_b64 exec, 1")
        a(f"global_store_dword v0, v222, s[44:45] offset:{8+4*k}")
        a("s_mov_b64 exec, -1")
        a.uncounted = unc
        a(f"{L}:")
        a("s_waitcnt lgkmcnt(0)")

    def dma_groups(self, sg, goff, slds, loff, n, flags="", per=4):
        out = []
        for i0 in range(0, n, per):
            g = [f"s_add_u32 s34, {sg}, {goff + i0*1024}", f"s_add_u32 m0, {slds}, {loff + i0*1024}"]
            for i in range(i0, min(n, i0 + per)):
                g.append(f"buffer_load_dwordx4 v0, {SRD}, s34 offen offset:{(i-i0)*1024} {flags} lds")
            out.append(g)
        return out

    def dma(self, sg, goff, slds, loff, n, tok=None, flags=""):
        for g in self.dma_groups(sg, goff, slds, loff, n, flags):
            for t in g:
                self.a(t, tok=tok)

    def grp(self, texts, tok=None):
        def f(a):
            for t in texts:
                a(t, tok=tok)
        return f

    def hstore(self, text):
        def f(a):
            if not NOFAST:
                a(text.replace(SRD, "s[96:99]"))
            a(text.replace(SRD, "s[0:3]") + " sc1")
        return f

    def signal(self, soff_sgpr, const, fast):
        a = self.a
        a(f"s_add_u32 s34, {soff_sgpr}, {const}")
        a("v_mov_b32 v220, s100")
        a("v_mov_b32 v221, s101")
        a("s_mov_b64 exec, 1")
        t = f"buffer_store_dwordx2 v[220:221], v0, {SRD}, s34 offen"
        if fast:
            self.hstore(t)(a)
        else:
            a(t + " sc1")
        a("s_mov_b64 exec, -1")

    def poll(self, soff_sgpr, const, mask, vaddr="v7", hi=None):
        a = self.a
        L = self.label("poll")
        a(f"s_add_u32 s34, {soff_sgpr}, {const}")
        a(f"s_mov_b32 exec_lo, {mask}")
        a(f"s_mov_b32 exec_hi, {hi if hi else 0}")
        a(f"{L}:")
        a(f"buffer_load_dwordx2 v[220:221], {vaddr}, {SRD}, s34 offen sc1")
        a("s_waitcnt vmcnt(0)")
        a("v_cmp_eq_u64 vcc, s[100:101], v[220:221]")
        a("s_sub_u32 s33, s33, 1")
        a("s_cmp_eq_u32 s33, 0")
        a(f"s_cbranch_scc1 main_done")
        a(f"s_cmp_eq_u64 vcc, exec")
        a(f"s_cbranch_scc0 {L}")
        a("s_mov_b64 exec, -1")

    def wave_if(self, cmp, f0, f1):
        a = self.a
        Lo = self.label("oth"); Lj = self.label("join")
        a(cmp)
        a(f"s_cbranch_scc0 {Lo}")
        a.uncounted = True
        f0()
        if f1:
            a(f"s_branch {Lj}")
        a(f"{Lo}:")
        if f1:
            f1()
        a.uncounted = False
        if f1:
            a(f"{Lj}:")

    def wave0_else(self, f0, f1):
        self.wave_if("s_cmp_eq_u32 s14, 0", f0, f1)

    def stats_tree(self, T, n):
        o = []
        idx = list(range(n))
        while len(idx) > 1:
            nxt = []
            for k in range(0, len(idx) - 1, 2):
                x, y = idx[k], idx[k + 1]
                o.append(f"v_add_f32 v{T+2*x}, v{T+2*x}, v{T+2*y}")
                o.append(f"v_add_f32 v{T+2*x+1}, v{T+2*x+1}, v{T+2*y+1}")
                nxt.append(x)
            if len(idx) % 2:
                nxt.append(idx[-1])
            idx = nxt
        return o

    def stats_finish(self, T, AB):
        return [f"v_mov_b32 v{T+2}, v{T}", f"v_mov_b32 v{T+3}, v{T+1}",
              f"v_permlane32_swap_b32 v{T}, v{T+2}", f"v_permlane32_swap_b32 v{T+1}, v{T+3}",
              f"v_add_f32 v{T}, v{T}, v{T+2}", f"v_add_f32 v{T+1}, v{T+1}, v{T+3}",
              f"v_mul_f32 v216, s52, v{T}", f"v_mul_f32 v219, s52, v{T+1}",
              "v_fma_f32 v219, -v216, v216, v219", "v_max_f32 v219, 0, v219", "v_add_f32 v219, s53, v219",
              "v_rsq_f32 v217, v219",
              f"v_cndmask_b32 v{T}, -v216, 0, s[40:41]",
              f"v_cvt_pk_bf16_f32 v{T+1}, v{T}, v{T}",
              f"v_and_b32 v{T+1}, 0xffff0000, v{T+1}",
              f"v_sub_f32 v{T+1}, v{T}, v{T+1}",
              f"v_cvt_pk_bf16_f32 v{AB}, v{T}, v{T+1}",
              f"v_and_b32 v{T+2}, 0xffff0000, v{AB}",
              f"v_sub_f32 v{T+2}, v{T+1}, v{T+2}",
              f"v_cvt_pk_bf16_f32 v{AB+1}, v{T}, v{T+2}",
              f"v_mov_b32 v{AB+2}, v{AB}", f"v_mov_b32 v{AB+3}, 0"]

    def xload(self, sx, const, X, ks):
        o = []
        if ks % 4 == 0:
            o.append(f"s_add_u32 s36, {sx}, {const + ks*1024}")
        o.append(f"buffer_load_dwordx4 {vr(X+4*ks)}, v0, {SRD}, s36 offen offset:{(ks%4)*1024} sc1")
        return o

    def priv_groups(self, frag, sb0, sb1, i0, i1):
        out = []
        for b, sb in ((0, sb0), (1, sb1)):
            for i in range(i0, i1, 2):
                out.append([f"s_add_u32 s34, {sb}, {i*1024}",
                            f"buffer_load_dwordx4 {frag(i,b)}, v0, {SRD}, s34 offen sc1",
                            f"buffer_load_dwordx4 {frag(i+1,b)}, v0, {SRD}, s34 offen offset:1024 sc1"])
        return out

    def touch(self, sbase, const, nlines, dst):
        mask = (1 << nlines) - 1
        o = [f"s_add_u32 s34, {sbase}, {const}", "v_lshlrev_b32 v218, 3, v0"]
        if nlines <= 32:
            o.append(f"s_mov_b64 exec, {hex(mask)}")
        else:
            o += [f"s_mov_b32 exec_lo, -1", f"s_mov_b32 exec_hi, {hex(mask >> 32)}"]
        o += [f"!buffer_load_dword v{dst}, v218, {SRD}, s34 offen sc1", "s_mov_b64 exec, -1"]
        return o

    def prologue(self):
        a = self.a
        X = 16
        a(f"{KNAME}:")
        a("s_load_dwordx16 s[64:79], s[0:1], 0")
        a("s_load_dwordx4 s[80:83], s[0:1], 64")
        a("s_cmp_ge_u32 s2, 256")
        a("s_cbranch_scc1 main_done")
        a("v_lshrrev_b32 v1, 6, v0")
        a("v_and_b32 v7, 63, v0")
        a("v_readfirstlane_b32 s14, v1")
        a("s_and_b32 s12, s2, 7"); a("s_lshl_b32 s12, s12, 1"); a("s_bfe_u32 s34, s2, 0x10003"); a("s_add_u32 s12, s12, s34")
        a("s_lshr_b32 s13, s2, 4")
        a("v_and_b32 v196, 7, v0")
        a("v_lshrrev_b32 v197, 3, v0")
        a("v_lshlrev_b32 v204, 4, v0")
        a("v_lshlrev_b32 v0, 4, v7")
        Lw2, Lwo, Lq, Lu = (self.label(x) for x in ("uw2", "uwo", "uq", "uend"))
        a("s_mov_b32 s38, 7"); a("s_mov_b32 s39, 0"); a("s_mov_b32 s40, 8"); a("s_mov_b32 s42, 28672"); a("s_mov_b32 s44, 0"); a("s_mov_b32 s43, 0")
        a("s_cmp_lt_u32 s13, 14"); a("s_cselect_b32 s46, -1, 0")
        a("s_waitcnt lgkmcnt(0)")
        a("s_cmp_ge_u32 s12, 12"); a(f"s_cbranch_scc1 {Lq}")
        a("s_cmp_eq_u32 s12, 11"); a(f"s_cbranch_scc1 {Lwo}")
        a("s_cmp_ge_u32 s12, 7"); a(f"s_cbranch_scc1 {Lw2}")
        a("s_mul_i32 s34, s13, 7"); a("s_add_u32 s34, s34, s12")
        a("s_mov_b32 s36, 3584"); a("s_lshl_b32 s37, s34, 5"); a("s_mov_b32 s38, 3")
        a("s_mul_i32 s41, s34, 28672"); a(f"s_add_u32 s41, s41, {W13}")
        a("s_lshl_b32 s43, s34, 9"); a(f"s_add_u32 s43, s43, {AUG13}"); a("s_mov_b32 s44, 512")
        a(f"s_mov_b32 s45, {448*1792*2}")
        a("s_mov_b64 s[84:85], s[72:73]"); a("s_mov_b64 s[88:89], s[74:75]")
        a(f"s_branch {Lu}")
        a(f"{Lw2}:")
        a("s_sub_u32 s34, s12, 7")
        a("s_mov_b32 s36, 896"); a(f"s_mul_i32 s37, s34, {448*896}"); a("s_lshl_b32 s35, s13, 6"); a("s_add_u32 s37, s37, s35")
        a("s_lshl_b32 s41, s13, 2"); a("s_add_u32 s41, s41, s34"); a("s_mul_i32 s41, s41, 28672"); a(f"s_add_u32 s41, s41, {W2}")
        a(f"s_and_b32 s45, s46, {1792*448*2}"); a("s_and_b32 s42, s42, s46")
        a("s_mov_b64 s[84:85], s[76:77]"); a("s_mov_b64 s[88:89], s[76:77]")
        a(f"s_branch {Lu}")
        a(f"{Lwo}:")
        a("s_mov_b32 s36, 896"); a("s_lshl_b32 s37, s13, 6"); a("s_mov_b32 s39, 4")
        a("s_lshl_b32 s41, s13, 15"); a(f"s_add_u32 s41, s41, {WO}")
        a(f"s_and_b32 s45, s46, {448*448*2}"); a("s_and_b32 s42, s46, 32768")
        a("s_mov_b64 s[84:85], s[68:69]"); a("s_mov_b64 s[88:89], s[68:69]")
        a(f"s_branch {Lu}")
        a(f"{Lq}:")
        a("s_sub_u32 s34, s12, 12")
        a("s_add_u32 s35, s34, 1"); a("s_cmp_ge_u32 s35, 3"); a("s_cselect_b32 s35, 0, s35")
        a("s_mov_b32 s36, 2688"); a("s_mul_i32 s37, s35, 896"); a("s_mul_i32 s35, s13, 56"); a("s_add_u32 s37, s37, s35")
        a("s_mov_b32 s40, 7")
        a("s_mul_i32 s35, s13, 3"); a("s_add_u32 s35, s35, s34")
        a("s_mul_i32 s41, s35, 28672"); a(f"s_add_u32 s41, s41, {WQKV}")
        a("s_lshl_b32 s43, s35, 9"); a(f"s_add_u32 s43, s43, {AUGQ}")
        a("s_cmp_lt_u32 s34, 3"); a("s_cselect_b32 s46, -1, 0")
        a(f"s_and_b32 s45, s46, {448*1344*2}"); a("s_and_b32 s42, s42, s46"); a("s_and_b32 s44, s46, 512")
        a("s_mov_b64 s[84:85], s[66:67]"); a("s_mov_b64 s[88:89], s[66:67]")
        a(f"{Lu}:")
        a("s_mov_b32 s86, s45"); a("s_mov_b32 s87, 0x20000"); a("s_mov_b32 s90, s45"); a("s_mov_b32 s91, 0x20000")
        a("s_mov_b32 s4, s82"); a("s_mov_b32 s5, s83"); a("s_mov_b32 s6, 0x10000000"); a("s_mov_b32 s7, 0x20000")
        a("s_mov_b32 s8, s64"); a("s_mov_b32 s9, s65"); a(f"s_mov_b32 s10, {2048*896}"); a("s_mov_b32 s11, 0x20000")
        a("v_and_b32 v202, s38, v196"); a("v_lshlrev_b32 v202, 3, v202")
        a("v_mov_b32 v203, 0x40000000")
        a("s_lshr_b32 s47, s42, 9")
        for rd in range(2):
            ko = "v197" if rd == 0 else "v205"
            if rd == 1:
                a("v_add_u32 v205, 32, v197")
            o = 198 + 2 * rd
            a(f"v_lshrrev_b32 v{o}, 2, {ko}")
            a(f"v_mul_lo_u32 v{o}, v{o}, s39")
            a(f"v_lshlrev_b32 v{o+1}, 3, {ko}")
            a(f"v_sub_u32 v{o}, v{o+1}, v{o}")
            a(f"v_mul_lo_u32 v{o}, v{o}, s36")
            a(f"v_add_u32 v{o}, v{o}, v202")
            a(f"v_cmp_eq_u32 vcc, s40, v196")
            a(f"v_cndmask_b32 v{o}, v{o}, v203, vcc")
            a(f"v_cmp_le_u32 vcc, s47, {ko}")
            a(f"v_cndmask_b32 v{o}, v{o}, v203, vcc")
            a(f"v_and_b32 v{o+1}, 3, {ko}")
            a(f"v_add_u32 v{o+1}, s39, v{o+1}")
            a(f"v_cmp_eq_u32 vcc, 7, v{o+1}")
            a(f"v_cndmask_b32 v{o+1}, v{o}, v203, vcc")
        a("s_mov_b32 s92, 0x0f0f0f0f"); a("s_mov_b32 s93, 0x0f0f0f0f")
        a("s_mov_b32 s94, 0xf0f0f0f0"); a("s_mov_b32 s95, 0xf0f0f0f0")
        tokR = [a.tok(), a.tok()]
        for rd in range(2):
            for half, (ex, srd) in enumerate((("s[92:93]", "s[84:87]"), ("s[94:95]", "s[88:91]"))):
                a(f"s_mov_b64 exec, {ex}")
                a("s_mov_b32 s34, s37")
                for i in range(8):
                    vo = 198 + 2 * rd + (i >> 2)
                    r0 = 128 + 16 * rd + 2 * i
                    a(f"!buffer_load_dwordx2 {vr(r0, 2)}, v{vo}, {srd}, s34 offen", tok=tokR[rd])
                    if i < 7:
                        a("s_add_u32 s34, s34, s36")
        a("s_mov_b64 exec, -1")
        a("v_and_b32 v206, 31, v7"); a("v_lshrrev_b32 v207, 5, v7")
        a("v_mul_u32_u24 v208, 896, v206"); a("v_lshl_add_u32 v208, v207, 4, v208")
        a("s_lshl_b32 s34, s12, 2"); a("s_add_u32 s34, s34, s14"); a(f"s_mul_i32 s34, s34, {32*896}")
        for ks in range(28):
            a(f"buffer_load_dwordx4 {vr(X+4*ks)}, v208, s[8:11], s34 offen offset:{ks*32}")
        Ln = self.label("nonce")
        a("s_cmp_eq_u32 s2, 0"); a(f"s_cbranch_scc0 {Ln}")
        a("s_cmp_eq_u32 s14, 0"); a(f"s_cbranch_scc0 {Ln}")
        a.uncounted = True
        a("s_memrealtime s[34:35]")
        a("s_waitcnt lgkmcnt(0)")
        a("s_or_b32 s34, s34, 1")
        a("v_mov_b32 v210, s34"); a("v_mov_b32 v211, s35")
        a("s_mov_b64 exec, 1")
        a("global_store_dwordx2 v0, v[210:211], s[80:81] sc1")
        a("s_mov_b64 exec, -1")
        a.uncounted = False
        a(f"{Ln}:")
        a("s_add_u32 s92, s82, s41"); a("s_addc_u32 s93, s83, 0"); a("s_mov_b32 s94, s42"); a("s_mov_b32 s95, 0x20000")
        a("s_add_u32 s96, s82, s43"); a("s_addc_u32 s97, s83, 0"); a("s_mov_b32 s98, s44"); a("s_mov_b32 s99, 0x20000")
        if TS:
            a("s_lshl_b32 s51, s2, 2"); a("s_add_u32 s51, s51, s14"); a("s_lshl_b32 s51, s51, 9"); a(f"s_add_u32 s51, s51, {DBG}")
        a("v_add_u32 v1, 0x10000, v0")
        a("v_add_u32 v2, 0x20000, v0")
        a("v_lshlrev_b32 v7, 3, v7")
        a(f"s_mul_i32 s48, s13, {84*1024}"); a(f"s_add_u32 s48, s48, {WQKV}")
        a(f"s_mul_i32 s49, s13, {196*1024}"); a(f"s_add_u32 s49, s49, {W13}")
        a("s_mov_b32 s33, 0x40000")
        a("s_getreg_b32 s63, hwreg(HW_REG_XCC_ID, 0, 4)")
        a("s_cmp_ge_u32 s13, 7"); a("s_cselect_b32 s40, 1, 0")
        a("s_mul_i32 s41, s40, 7"); a("s_sub_u32 s41, s13, s41")
        a("s_min_u32 s41, s41, 6")
        a("s_lshr_b32 s42, s14, 1"); a("s_and_b32 s43, s14, 1")
        a("s_lshl_b32 s44, s40, 1")
        a("s_add_u32 s45, s44, s42")
        a("s_sub_u32 s44, s44, s42"); a("s_add_u32 s44, s44, 1")
        a("s_lshl_b32 s16, s12, 20"); a(f"s_add_u32 s16, s16, {GRP0}")
        a("s_lshl_b32 s41, s41, 1")
        a("s_add_u32 s46, s41, s43")
        a("s_sub_u32 s47, s41, s43"); a("s_add_u32 s47, s47, 1")
        a(f"s_mul_i32 s17, s14, {28*1024}"); a("s_add_u32 s17, s17, s16"); a("s_mov_b32 s15, s17")
        a(f"s_mul_i32 s18, s14, {14*256}"); a("s_add_u32 s18, s18, s16"); a("s_mov_b32 s32, s18")
        a("s_lshl_b32 s19, s12, 5"); a("s_add_u32 s19, s19, s13"); a("s_lshl_b32 s19, s19, 14"); a(f"s_add_u32 s19, s19, {KV0}")
        a("s_add_u32 s20, s14, 1"); a("s_lshl_b32 s20, s20, 19"); a("s_sub_u32 s20, s19, s20")
        a("s_lshl_b32 s34, s14, 12"); a("s_add_u32 s19, s19, s34")
        a("s_lshl_b32 s21, s14, 4"); a("s_add_u32 s21, s21, s13"); a("s_lshl_b32 s21, s21, 11"); a("s_add_u32 s21, s21, s16"); a(f"s_add_u32 s21, s21, {GO}")
        a("s_lshl_b32 s34, s14, 13"); a("s_add_u32 s34, s34, s16"); a(f"s_add_u32 s34, s34, {GO}")
        a("s_lshl_b32 s22, s45, 15"); a("s_add_u32 s22, s22, s34")
        a("s_lshl_b32 s23, s44, 15"); a("s_add_u32 s23, s23, s34")
        a(f"s_add_u32 s34, s17, {GH}")
        a(f"s_mul_i32 s24, s45, {112*1024}"); a("s_add_u32 s24, s24, s34")
        a(f"s_mul_i32 s25, s44, {112*1024}"); a("s_add_u32 s25, s25, s34")
        a("s_mul_i32 s34, s45, 14"); a("s_add_u32 s34, s34, s46")
        a("s_lshl_b32 s26, s34, 11"); a("s_add_u32 s26, s26, s16")
        a("s_lshl_b32 s27, s34, 8"); a("s_add_u32 s27, s27, s16")
        a("s_lshl_b32 s28, s14, 4"); a("s_add_u32 s28, s28, s13"); a(f"s_mul_i32 s28, s28, {7*1024}"); a("s_add_u32 s28, s28, s16"); a(f"s_add_u32 s28, s28, {GH}")
        a("s_lshl_b32 s34, s12, 2"); a("s_add_u32 s34, s34, s45")
        a(f"s_mul_i32 s57, s34, {32*896}"); a("s_lshl_b32 s34, s46, 6"); a("s_add_u32 s57, s57, s34")
        a("s_lshl_b32 s34, s14, 13"); a(f"s_add_u32 s34, s34, {WO}")
        a("s_lshl_b32 s58, s46, 15"); a("s_add_u32 s58, s58, s34")
        a("s_lshl_b32 s59, s47, 15"); a("s_add_u32 s59, s59, s34")
        a(f"s_mul_i32 s34, s14, {28*1024}"); a(f"s_add_u32 s34, s34, {W2}")
        a(f"s_mul_i32 s60, s46, {112*1024}"); a("s_add_u32 s60, s60, s34")
        a(f"s_mul_i32 s61, s47, {112*1024}"); a("s_add_u32 s61, s61, s34")
        a("s_sub_u32 s3, s41, 1")
        a("buffer_load_dwordx4 v[8:11], v208, s[8:11], s57 offen")
        a("buffer_load_dwordx4 v[12:15], v208, s[8:11], s57 offen offset:32")
        for sb_, c_, n_ in (("s21", 0, 16), ("s26", GX[1], 16), ("s26", GX[2], 16), ("s27", GST[1], 2), ("s27", GST[2], 2), ("s28", 0, 56)):
            for t in self.touch(sb_, c_, n_, 221):
                a(t)
        a("s_lshl_b32 s29, s12, 8")
        a("s_lshl_b32 s34, s13, 3"); a("s_add_u32 s30, s29, s34")
        a("s_lshl_b32 s62, s12, 4"); a("s_add_u32 s62, s62, s13"); a("s_lshl_b32 s62, s62, 7"); a(f"s_add_u32 s62, s62, {F1}")
        a("s_add_u32 s34, s14, 1"); a("s_lshl_b32 s34, s34, 11"); a("s_sub_u32 s31, s62, s34")
        a("s_sub_u32 s50, s14, 1")
        a(f"s_mov_b32 s52, {f32(1.0/448)}"); a(f"s_mov_b32 s53, {f32(1e-5)}")
        a(f"s_mov_b32 s54, {f32(28**-0.5 * math.log2(math.e))}"); a(f"s_mov_b32 s55, {f32(-math.log2(math.e))}")
        a(f"s_mov_b32 s56, {f32(-2.0**100)}")
        a("s_mov_b32 s40, 0"); a("s_mov_b32 s41, -1")
        a("s_mov_b32 s36, 0x05040100"); a("s_mov_b32 s37, 0x07060302")
        if DTS:
            a("s_lshl_b32 s51, s2, 2"); a("s_add_u32 s51, s51, s14"); a(f"s_sub_u32 s51, s51, {DTS*4}")
            a("s_mov_b64 s[44:45], s[80:81]")
            self.dts()
        if TS:
            sv = self.nts; self.nts = 31; self.ts(); self.nts = sv
        a("v_lshlrev_b32 v4, 4, v206"); a(f"v_add_u32 v4, {MISC}, v4")
        a("v_cmp_eq_u32 vcc, 28, v206")
        a("v_cndmask_b32 v5, 0, 1.0, vcc")
        a("s_lshl_b32 s34, s14, 7"); a(f"s_add_u32 s34, s34, {L_ST}")
        a("v_lshl_add_u32 v3, v206, 2, s34")
        a("v_lshl_add_u32 v6, v207, 4, s34")
        a("v_and_b32 v202, 4, v196"); a("v_and_b32 v203, 1, v196"); a("v_lshl_or_b32 v202, v203, 1, v202")
        a("v_bfe_u32 v203, v196, 1, 1"); a("v_or_b32 v202, v202, v203"); a("v_lshlrev_b32 v202, 6, v202")
        a("v_lshl_add_u32 v202, v197, 9, v202")
        a("v_mov_b32 v209, 0x3f803f80")
        for e in range(4):
            a(f"v_mov_b32 v{192+e}, 0")
        for rd in range(2):
            a.wait_tok(tokR[rd])
            R, O = 128 + 16 * rd, 160 + 16 * rd
            for e in range(4):
                sel = "s36" if e % 2 == 0 else "s37"
                for m in range(4):
                    a(f"v_perm_b32 v{O+4*e+m}, v{R+2*(2*m+1)+(e>>1)}, v{R+2*(2*m)+(e>>1)}, {sel}")
                a(f"ds_write_b128 v202, {vr(O+4*e)} offset:{rd*16384 + 16*e}")
            for m in range(4):
                for e in range(4):
                    a(f"v_dot2_f32_bf16 v{192+e}, v{O+4*e+m}, v209, v{192+e}")
        a(f"ds_write_b128 v204, v[192:195] offset:{32*1024}")
        a.drain(vm=False)
        a("s_barrier")
        a("s_lshl_b32 s34, s14, 13")
        a("v_add_u32 v202, s34, v0")
        for i in range(8):
            a(f"ds_read_b128 {vr(128+4*i)}, v202 offset:{i*1024}")
        tokP = a.tok()
        for i in range(8):
            if i == 4:
                a("v_add_u32 v202, 4096, v202")
            a(f"buffer_store_dwordx4 {vr(128+4*i)}, v202, s[92:95], 0 offen offset:{(i%4)*1024} sc1", tok=tokP)
        def aug():
            a(f"v_lshlrev_b32 v202, 11, v207"); a("v_lshl_add_u32 v202, v206, 2, v202")
            for i in range(16):
                a(f"ds_read_b32 v{160+i}, v202 offset:{32*1024 + i*128}")
            a("s_waitcnt lgkmcnt(0)")
            for st in (8, 4, 2, 1):
                for i in range(st):
                    a(f"v_add_f32 v{160+i}, v{160+i}, v{160+i+st}")
            a("v_mov_b32 v161, v160")
            a("v_permlane32_swap_b32 v160, v161")
            a("v_add_f32 v160, v160, v161")
            a("v_cvt_pk_bf16_f32 v164, v160, v160")
            a("v_and_b32 v161, 0xffff0000, v164")
            a("v_sub_f32 v161, v160, v161")
            a("v_cvt_pk_bf16_f32 v165, v161, v160")
            a("v_lshlrev_b32 v162, 16, v165")
            a("v_sub_f32 v162, v161, v162")
            a("v_cvt_pk_bf16_f32 v166, v162, v161")
            a("v_mov_b32 v167, 0")
            a("v_and_b32 v202, 19, v206")
            a("v_bfe_u32 v203, v206, 2, 1"); a("v_lshl_or_b32 v202, v203, 3, v202")
            a("v_bfe_u32 v203, v206, 3, 1"); a("v_lshl_or_b32 v202, v203, 2, v202")
            a("v_lshlrev_b32 v202, 4, v202")
            a("buffer_store_dwordx4 v[164:167], v202, s[96:99], 0 offen sc1")
        self.wave_if("s_cmp_eq_u32 s14, 3", aug, None)
        Lt = self.label("tag")
        a("v_mov_b32 v203, 0")
        a(f"{Lt}:")
        a("global_load_dwordx2 v[210:211], v203, s[80:81] sc1")
        a("s_waitcnt vmcnt(0)")
        a("v_readfirstlane_b32 s100, v210")
        a("v_readfirstlane_b32 s101, v211")
        a("s_sub_u32 s33, s33, 1")
        a("s_cmp_eq_u32 s33, 0")
        a("s_cbranch_scc1 main_done")
        a("s_cmp_lg_u32 s100, 0")
        a(f"s_cbranch_scc0 {Lt}")
        a.forget()
        a("s_barrier")
        def sig():
            a("s_lshl_b32 s35, s13, 8"); a("s_lshl_b32 s34, s12, 3"); a("s_add_u32 s35, s35, s34")
            self.signal("s35", PKF, False)
            a("s_add_u32 s35, s101, s63")
            a("v_mov_b32 v221, s35")
            a(f"s_add_u32 s34, s30, {XCCT}")
            a("s_mov_b64 exec, 1")
            a(f"buffer_store_dwordx2 v[220:221], v0, {SRD}, s34 offen sc1")
            a("s_mov_b64 exec, -1")
        self.wave0_else(sig, None)
        self.dts()
        self.ts(2)
        for k in range(8):
            a(f"v_mov_b32 v{192+k}, 0")
        for i in range(112):
            o = 192 + 2 * (i % 4)
            a(f"v_dot2_f32_bf16 v{o}, v{X+i}, v209, v{o}")
            a(f"v_dot2_f32_bf16 v{o+1}, v{X+i}, v{X+i}, v{o+1}")
        for t in self.stats_tree(192, 4) + self.stats_finish(192, 212):
            a(t)
        a("s_mov_b32 s8, s78"); a("s_mov_b32 s9, s79")
        a("v_lshlrev_b32 v207, 2, v207")
        a("v_sub_u32 v207, v206, v207")
        for rho in range(16):
            kk = 8 * (rho >> 2) + (rho & 3)
            a(f"v_cmp_le_i32 s[{64+2*rho}:{65+2*rho}], {kk}, v207")
        a("s_mov_b32 s46, s3")
        a("s_lshl_b32 s35, s13, 8")
        self.wave0_else(lambda: self.poll("s35", PKF, "0x7000"), None)
        a(f"s_mul_i32 s37, s14, {14*1024}")
        a(f"s_mul_i32 s39, s14, {7*1024}")
        a("s_barrier")
        self.ts(2)
        a("s_add_u32 s38, s48, s37")
        self.dma("s38", 0, "s37", 98 * 1024, 14, flags="sc1")
        a("s_add_u32 s38, s48, s39")
        self.dma("s38", 56 * 1024, "s39", 70 * 1024, 7, flags="sc1")
        a(f"s_mul_i32 s37, s13, {3*512}"); a(f"s_add_u32 s37, s37, {AUGQ}")
        a("s_lshl_b32 s39, s14, 10")
        a("v_add_u32 v202, s39, v0")
        a(f"buffer_load_dwordx4 v[128:131], v202, {SRD}, s37 offen sc1")
        a(f"v_cmp_gt_u32 vcc, 1536, v202")
        a(f"v_add_u32 v202, {L_AUG}, v202")
        a("s_mov_b64 exec, vcc")
        a("ds_write_b128 v202, v[128:131]")
        a("s_mov_b64 exec, -1")

    def xstream(self, S, a, sx, xoff, sst, stoff, X, T, gaps):
        items = [self.xload(sx, xoff, X, ks) for ks in range(28)]
        sitems = []
        for u in range(7):
            g = []
            if u == 0:
                g.append(f"s_add_u32 s35, {sst}, {stoff}")
            g.append(f"buffer_load_dwordx2 {vr(T+2*u, 2)}, v7, {SRD}, s35 offen offset:{u*512} sc1")
            sitems.append(g)
        order = items[:SPOS] + sitems + items[SPOS:]
        for g in order[:XD]:
            for t in g:
                a(t)
        pos = {}
        for k, g in enumerate(order[XD:]):
            S.post(gaps[k], self.grp(g), cost=1.5)
            pos[XD + k] = gaps[k]
        return pos[SPOS + 6]

    def p1(self, l):
        a = self.a
        X, AK, AV, AQ, WB, RV, AB = 16, 128, 144, 160, 176, 200, 212
        NB = 6
        S = Sched(budget=5)
        seq = []
        for ks in range(29):
            seq.append((0, ks)); seq.append((1, ks))
        for ks in range(29):
            seq.append((2, ks))
        ACC = {0: AK, 1: AV, 2: AQ}
        idx = {}
        for n, (p, ks) in enumerate(seq):
            idx[(p, ks)] = n
            wb = WB + 4 * (n % NB)
            if ks < 28:
                base, off = lds_blk(WQ_BLK[p] + ks)
                S.post(n - NB, f"ds_read_b128 {vr(wb)}, {base} offset:{off}")
                xb = vr(X + 4 * ks)
            else:
                S.post(n - NB, f"ds_read_b128 {vr(wb)}, v4 offset:{p*512}")
                xb = vr(AB)
            ac = vr(ACC[p], 16)
            c = "0" if ks == 0 else ac
            if p == 1:
                S.add_main(f"{MF} {ac}, {xb}, {vr(wb)}, {c}")
            else:
                S.add_main(f"{MF} {ac}, {vr(wb)}, {xb}, {c}")
        dq = idx[(0, 28)]
        if l == 1:
            gaps = [(3 * k) // 2 for k in range(40)]
            gs = self.xstream(S, a, "s17", GX[2], "s18", GST[2], X, AQ, gaps)
            for t in self.stats_tree(AQ, 7) + self.stats_finish(AQ, AB):
                S.fill(t, earliest=gs + 14, deadline=dq)
        a("s_lshl_b32 s34, s14, 12")
        a("v_add_u32 v220, s34, v0")
        S.fill("ds_write_b32 v3, v217", deadline=dq)
        for q in range(3):
            S.fill(f"ds_read_b128 {vr(RV+4*q)}, v6 offset:{q*32}", deadline=dq)
        S.fill("v_mul_f32 v219, s54, v217", deadline=dq)
        e0 = idx[(1, 28)] + 1
        tokS = a.tok()
        f = lambda t, tok=None: S.fill(t, earliest=e0, cost=0.5, tok=tok)
        for i in range(16):
            f(f"v_mul_f32 v{AK+i}, v217, v{AK+i}")
        for i in range(8):
            f(f"v_cvt_pk_bf16_f32 v{AK+i}, v{AK+2*i}, v{AK+2*i+1}")
        f(f"ds_read_b128 {vr(AK+8)}, v6 offset:96")
        f(f"buffer_store_dwordx4 {vr(AK)}, v0, {SRD}, s19 offen sc1", tokS)
        f(f"buffer_store_dwordx4 {vr(AK+4)}, v0, {SRD}, s19 offen offset:1024 sc1", tokS)
        for i in range(16):
            rv = RV + i if i < 12 else AK + 8 + (i - 12)
            f(f"v_fma_f32 v{AV+i}, v{AV+i}, v{rv}, v5")
        for i in range(8):
            f(f"v_cvt_pk_bf16_f32 v{AV+i}, v{AV+2*i}, v{AV+2*i+1}")
        f(f"buffer_store_dwordx4 {vr(AV)}, v0, {SRD}, s19 offen offset:2048 sc1", tokS)
        f(f"buffer_store_dwordx4 {vr(AV+4)}, v0, {SRD}, s19 offen offset:3072 sc1", tokS)
        for k, r in enumerate((AK, AK + 4, AV, AV + 4)):
            S.fill(f"ds_write_b128 v220, {vr(r)} offset:{8*4096+k*1024}", earliest=e0)
        PM = 152
        S.fill("v_mov_b32 v216, 0xffff", earliest=e0); S.fill("v_mov_b32 v218, 0xffff0000", earliest=e0)
        for i in range(8):
            S.fill(f"v_cndmask_b32 v{PM+i}, 0, v216, s[{64+4*i}:{65+4*i}]", earliest=e0)
            S.fill(f"v_cndmask_b32 v221, 0, v218, s[{66+4*i}:{67+4*i}]", earliest=e0)
            S.fill(f"v_or_b32 v{PM+i}, v{PM+i}, v221", earliest=e0)
        S.pre(e0, lambda aa: self.ts(2))
        for k in (0, 1, 20, 40):
            S.pre(k, lambda aa: self.ts(3))
        S.emit(a)
        a("v_mov_b32 v176, v220")
        a.wait_tok(tokS)
        a.drain(vm=False)
        a("s_barrier")
        self.wave0_else(lambda: self.signal("s62", 0, False), None)
        for i in range(16):
            a(f"v_mul_f32 v{AQ+i}, v219, v{AQ+i}")
        a("v_mov_b32 v221, s56")
        a(f"v_cndmask_b32 v{AQ+12}, v{AQ+12}, v221, s[40:41]")
        for i in range(8):
            a(f"v_cvt_pk_bf16_f32 v{AQ+i}, v{AQ+2*i}, v{AQ+2*i+1}")
        a("v_mov_b32 v168, v176")
        if l == 0:
            a("v_bfe_u32 v218, v7, 7, 2")
            a("v_add_u32 v220, s46, v218")
            a("v_mov_b32 v221, s13")
            a("v_cmp_eq_u32 vcc, 0, v218")
            a("v_and_b32 v218, 0x78, v7")
            a("v_cndmask_b32 v220, v220, v221, vcc")
            a("v_lshl_add_u32 v218, v220, 8, v218")
            a("s_mov_b32 s47, 0")
            self.poll("s47", PKF, "0x0f80007f", vaddr="v218", hi="0x0f80")
            L = self.label("xcc")
            a(f"s_add_u32 s34, s29, {XCCT}")
            a("s_mov_b64 exec, 0xffff")
            a(f"{L}:")
            a(f"buffer_load_dwordx2 v[220:221], v7, {SRD}, s34 offen sc1")
            a("s_waitcnt vmcnt(0)")
            a("v_subrev_u32 v218, s101, v221")
            a("v_cmp_eq_u32 s[36:37], s100, v220")
            a("v_cmp_gt_u32 vcc, 16, v218")
            a("s_sub_u32 s33, s33, 1")
            a("s_cmp_eq_u32 s33, 0")
            a("s_cbranch_scc1 main_done")
            a("s_and_b32 s36, s36, vcc_lo")
            a("s_cmp_eq_u32 s36, 0xffff")
            a(f"s_cbranch_scc0 {L}")
            a.forget()
            a("v_cmp_eq_u32 vcc, s63, v218")
            a("s_mov_b64 exec, -1")
            a("s_lshl_b32 s39, s14, 10")
            a("v_add_u32 v218, s39, v0")
            a(f"s_mul_i32 s38, s13, {7*512}"); a(f"s_add_u32 s38, s38, {AUG13}")
            a(f"buffer_load_dwordx4 v[176:179], v218, {SRD}, s38 offen sc1")
            a("s_mov_b32 s96, s4"); a("s_mov_b32 s97, s5"); a("s_mov_b32 s99, 0x20000")
            a("s_mov_b32 s0, s4"); a("s_mov_b32 s1, s5"); a("s_mov_b32 s3, 0x20000")
            if NOFAST:
                a("s_cmp_eq_u32 s4, -1")
            else:
                a("s_cmp_eq_u32 vcc_lo, 0xffff")
            a("s_cselect_b32 s98, 0x10000000, 0")
            a("s_cselect_b32 s2, 0, 0x10000000")
            a(f"s_cselect_b32 s63, 0, {SLOWD}")
            a(f"v_cmp_gt_u32 vcc, 3584, v218")
            a(f"v_add_u32 v218, {L_AUG + 1536}, v218")
            a("s_mov_b64 exec, vcc")
            a("ds_write_b128 v218, v[176:179]")
            a("s_mov_b64 exec, -1")

    def p2(self, l):
        a = self.a
        Q, KF, SB, NM, PM, OA, VB = 160, 16, 88, 136, 152, 176, 192
        def halo():
            Lf = self.label("fill"); Lh = self.label("halo")
            a("s_lshl_b32 s37, s14, 14"); a("s_sub_u32 s37, 16384, s37")
            a("s_cmp_le_u32 s12, s14")
            a(f"s_cbranch_scc1 {Lf}")
            self.poll("s31", 0, "1")
            self.dma("s20", 0, "s37", 0, 16, flags="sc1")
            a(f"s_branch {Lh}")
            a(f"{Lf}:")
            a("v_add_u32 v220, s37, v0")
            for i in range(8):
                a(f"v_mov_b32 v{SB+i}, 0")
            a("v_mov_b32 v221, 0x3f80")
            a(f"v_cndmask_b32 v{SB+6}, 0, v221, s[40:41]")
            for t in range(4):
                a(f"ds_write_b128 v220, {vr(SB)} offset:{t*4096}")
                a(f"ds_write_b128 v220, {vr(SB+4)} offset:{t*4096+1024}")
                a(f"ds_write_b128 v220, {vr(SB)} offset:{t*4096+2048}")
                a(f"ds_write_b128 v220, {vr(SB)} offset:{t*4096+3072}")
            a(f"{Lh}:")
            a("s_waitcnt vmcnt(0) lgkmcnt(0)")
        def pref():
            a("s_sub_u32 s37, s14, 2"); a(f"s_mul_i32 s37, s37, {19*1024}")
            a("s_add_u32 s38, s49, s37")
            self.dma("s38", 0, "s37", 48 * 1024, 19, flags="sc1")
        self.wave_if("s_cmp_lt_u32 s14, 2", halo, pref)
        a(f"s_mul_i32 s37, s14, {17*1024}")
        a("s_add_u32 s38, s49, s37")
        a("s_barrier")
        self.ts()
        order = [8, 0, 1, 2, 3, 4, 5, 6, 7]
        S = Sched(budget=5)
        for n, i in enumerate(order):
            for s in range(2):
                S.post(2 * n + s - 6, f"ds_read_b128 {vr(KF+8*n+4*s)}, v168 offset:{i*4096+s*1024}")
        for n, i in enumerate(order):
            sb = SB + 16 * (n % 3)
            S.add_main(f"{MF} {vr(sb,16)}, {vr(KF+8*n)}, {vr(Q)}, 0")
            S.add_main(f"{MF} {vr(sb,16)}, {vr(KF+8*n+4)}, {vr(Q+4)}, {vr(sb,16)}")
            e = 2 * n + 3
            dl = 2 * (n + 3)
            if n == 0:
                continue
            if n == 1:
                sd = SB
                for k in range(16):
                    S.fill(f"v_cndmask_b32 v{sb+k}, v{sb+k}, v{sd+k}, s[{64+2*k}:{65+2*k}]", earliest=e, deadline=6)
                S.fill(f"v_max_f32 v216, v{sb}, v{sb+1}", earliest=e, deadline=dl)
                for k in range(1, 8):
                    S.fill(f"v_max3_f32 v216, v216, v{sb+2*k}, v{sb+2*k+1}", earliest=e, deadline=dl)
            else:
                for k in range(8):
                    S.fill(f"v_max3_f32 v216, v216, v{sb+2*k}, v{sb+2*k+1}", earliest=e, deadline=dl)
        S.emit(a)
        a("v_mov_b32 v217, v216")
        a("v_permlane32_swap_b32 v216, v217")
        a("v_max_f32 v216, v216, v217")
        for k in range(16):
            a(f"v_sub_f32 v{NM+k}, 0, v216")
        self.ts(2)
        S = Sched(budget=10)
        nv = [0]
        def vread(i, s, gap):
            vb = VB + 4 * (nv[0] % 6); nv[0] += 1
            S.post(gap, f"ds_read_b128 {vr(vb)}, v168 offset:{i*4096+2048+s*1024}")
            return vb
        def smm(n):
            sb = SB + 16 * (n % 3)
            S.add_main(f"{MF} {vr(sb,16)}, {vr(KF+8*n)}, {vr(Q)}, {vr(NM,16)}")
            return S.add_main(f"{MF} {vr(sb,16)}, {vr(KF+8*n+4)}, {vr(Q+4)}, {vr(sb,16)}")
        first = [True]
        def pv(i, pb):
            for s in range(2):
                vb = vread(i, s, len(S.main) - 4)
                c = "0" if first[0] else vr(OA, 16)
                first[0] = False
                S.add_main(f"{MF} {vr(OA,16)}, {vr(vb)}, {vr(pb+4*s)}, {c}")
        def soft(n, e, dl):
            sb = SB + 16 * (n % 3)
            for k in range(8):
                S.fill(f"v_exp_f32 v{sb+2*k}, v{sb+2*k}", earliest=e, deadline=dl)
                S.fill(f"v_exp_f32 v{sb+2*k+1}, v{sb+2*k+1}", earliest=e, deadline=dl)
                if k >= 1:
                    S.fill(f"v_cvt_pk_bf16_f32 v{sb+k-1}, v{sb+2*k-2}, v{sb+2*k-1}", earliest=e, deadline=dl)
            S.fill(f"v_cvt_pk_bf16_f32 v{sb+7}, v{sb+14}, v{sb+15}", earliest=e, deadline=dl)
        smm(0); i1 = smm(1); i2 = smm(2)
        sb1 = SB + 16
        for k in range(16):
            S.fill(f"v_cndmask_b32 v{sb1+k}, v{sb1+k}, v{SB+k}, s[{64+2*k}:{65+2*k}]", earliest=i1 + 1, deadline=6)
        i3 = smm(3)
        soft(1, i1 + 1, 8)
        for k in range(8):
            S.fill(f"v_bfi_b32 v{sb1+8+k}, v{PM+k}, 0, v{sb1+k}", deadline=8)
            S.fill(f"v_and_b32 v{sb1+k}, v{PM+k}, v{sb1+k}", deadline=8)
        pv(8, sb1); pv(0, sb1 + 8)
        send = {2: i2, 3: i3}
        for n in range(2, 9):
            if n + 2 <= 8:
                send[n + 2] = smm(n + 2)
            soft(n, send[n] + 1, len(S.main))
            pv(order[n], SB + 16 * (n % 3))
        for k, g in enumerate(self.dma_groups("s38", 38 * 1024, "s37", (48 + 38) * 1024, 17, per=1, flags="sc1")):
            S.post(2 * k, self.grp(g), cost=1.5)
        if l == 0:
            for k, g in enumerate(self.priv_groups(wo_frag, "s58", "s59", 0, 8)):
                S.post(4 * k + 1, self.grp(g), cost=2)
        S.emit(a)
        a(f"v_mov_b32 v216, v{OA+12}")
        a(f"v_mov_b32 v217, v{OA+12}")
        a("v_permlane32_swap_b32 v216, v217")
        a("v_rcp_f32 v217, v217")
        for k in range(16):
            a(f"v_mul_f32 v{OA+k}, v217, v{OA+k}")
            if k in (7, 15):
                h = k // 8
                for kk in range(4):
                    a(f"v_cvt_pk_bf16_f32 v{OA+8*h+kk}, v{OA+8*h+2*kk}, v{OA+8*h+2*kk+1}")
                self.hstore(f"buffer_store_dwordx4 {vr(OA+8*h)}, v0, {SRD}, s21 offen offset:{h*1024}")(a)

    def ksplit_pre(self):
        a = self.a
        AC = 16
        for k in range(8):
            a(f"v_lshlrev_b32 v{AC+2*k}, 16, v{8+k}")
            a(f"v_and_b32 v{AC+2*k+1}, 0xffff0000, v{8+k}")
        for s in range(1, 4):
            a(f"s_xor_b32 s34, s14, {s}")
            a(f"s_mul_i32 s34, s34, 12288")
            a(f"s_add_u32 s34, s34, {(s-1)*4096}")
            a(f"v_add_u32 v{207+s}, s34, v0")
        a(f"s_mul_i32 s34, s14, 12288")
        a("v_add_u32 v211, s34, v0")
        for k in range(4):
            a(f"v_mov_b32 v{212+k}, 0")
        a("v_mov_b32 v216, 0x3f803f80")
        a("v_and_b32 v217, 0xf8, v7")

    def ksplit(self, n, sa0, sa1, wfrag, final):
        a = self.a
        AC, AB, NBUF = 16, 80, 16
        loads = []
        for i in range(n):
            for s, sa in ((0, sa0), (1, sa1)):
                st = "s36" if s == 0 else "s37"
                g = []
                if i % 4 == 0:
                    g.append(f"s_add_u32 {st}, {sa}, {i*1024}")
                g.append(f"buffer_load_dwordx4 {vr(AB + 8*(i % NBUF) + 4*s)}, v0, {SRD}, {st} offen offset:{(i%4)*1024} sc1")
                loads.append((i, g))
        S = Sched(budget=5)
        for i in range(n):
            for sl in (1, 0, 2, 3) if i < n - 1 else (1, 2, 3, 0):
                aa, bb = sl >> 1, sl & 1
                ac = AC + 16 * sl
                c = vr(ac, 16) if (i > 0 or sl == 0) else "0"
                S.add_main(f"{MF} {vr(ac,16)}, {wfrag(i,bb)}, {vr(AB + 8*(i % NBUF) + 4*aa)}, {c}")
        for k, (i, g) in enumerate(loads):
            pos = -1 if k < KD else max(int(KP * (k - KD)), 4 * (i - NBUF) + 3)
            S.post(pos, self.grp(g), cost=1.5)
        if n == 28:
            for k in (0, 1, 28, 56, 84):
                S.pre(k, lambda aa: self.ts(3))
        S.emit(a)
        self.ts(2)
        for s in range(1, 4):
            for q in range(4):
                a(f"ds_write_b128 v{207+s}, {vr(AC+16*s+4*q)} offset:{q*1024}")
        a.drain(vm=False)
        a("s_barrier")
        for q in range(4):
            for s in range(3):
                a(f"ds_read_b128 {vr(AB+16*s+4*q)}, v211 offset:{s*4096+q*1024}")
        for h in range(2):
            for q in (2 * h, 2 * h + 1):
                for s in range(3):
                    for k in range(4 * q, 4 * q + 4):
                        a(f"v_add_f32 v{AC+k}, v{AC+k}, v{AB+16*s+k}")
            for k in range(4 * h, 4 * h + 4):
                a(f"v_cvt_pk_bf16_f32 v{8+k}, v{AC+2*k}, v{AC+2*k+1}")
            final(h)

    def store_x(self, xoff, stoff):
        a = self.a
        def fin(h):
            if h == 0:
                a(f"s_add_u32 s34, s26, {xoff}")
            self.hstore(f"buffer_store_dwordx4 {vr(8+4*h)}, v0, {SRD}, s34 offen offset:{h*1024}")(a)
            for k in range(4 * h, 4 * h + 4):
                o = 2 * (k & 1)
                a(f"v_dot2_f32_bf16 v{212+o}, v{8+k}, v216, v{212+o}")
                a(f"v_dot2_f32_bf16 v{213+o}, v{8+k}, v{8+k}, v{213+o}")
            if h == 1:
                a(f"s_add_u32 s35, s27, {stoff}")
                a("v_add_f32 v212, v212, v214")
                a("v_add_f32 v213, v213, v215")
                a("v_mov_b32 v214, v212")
                a("v_mov_b32 v215, v213")
                a("v_permlane32_swap_b32 v212, v214")
                a("v_permlane32_swap_b32 v213, v215")
                a("v_add_f32 v212, v212, v214")
                a("v_add_f32 v213, v213, v215")
                self.hstore(f"buffer_store_dwordx2 v[212:213], v217, {SRD}, s35 offen")(a)
        return fin

    def p3(self, l):
        a = self.a
        Le = self.label("p3end")
        a.drain()
        a("s_barrier")
        self.wave0_else(lambda: self.signal("s30", 0 * 4096, True), None)
        a("s_cmp_ge_u32 s13, 14")
        a(f"s_cbranch_scc1 {Le}")
        self.ksplit_pre()
        self.wave0_else(lambda: self.poll("s29", 0 * 4096, "0xffff"), None)
        a("s_barrier")
        self.ts()
        self.ksplit(8, "s22", "s23", wo_frag, self.store_x(GX[1], GST[1]))
        a.drain()
        a("s_barrier")
        self.wave0_else(lambda: self.signal("s30", 1 * 4096, True), None)
        a(f"{Le}:")

    def dma3(self, sbase, q0, n3, lds0):
        a = self.a
        a(f"s_mul_i32 s37, s50, {n3*1024}")
        a(f"s_add_u32 s38, {sbase}, s37")
        self.dma("s38", q0 * 1024, "s37", lds0 * 1024, n3, flags="sc1")

    def p4(self, l):
        a = self.a
        X, AC, WB, NB, AB = 16, 128, 192, 5, 212
        self.wave0_else(lambda: self.poll("s29", 1 * 4096, "0x3fff"), None)
        a.forget()
        a(f"s_mul_i32 s37, s14, {12*1024}")
        a("s_add_u32 s38, s49, s37")
        a("s_barrier")
        self.ts()
        S = Sched(budget=5)
        seq = []
        for ks in range(29):
            for t in range(3):
                seq.append((t, ks))
        for t in range(3, 7):
            for ks in range(29):
                seq.append((t, ks))
        aset = {0: 0, 1: 1, 2: 2, 3: 3, 4: 0, 5: 1, 6: 2}
        idx = {k: n for n, k in enumerate(seq)}
        first = {t: idx[(t, 0)] for t in range(7)}
        last = {t: idx[(t, 28)] for t in range(7)}
        for n, (t, ks) in enumerate(seq):
            wb = WB + 4 * (n % NB)
            if ks < 28:
                base, off = lds_blk(w13_blk(t * 28 + ks))
                S.post(n - NB, f"ds_read_b128 {vr(wb)}, {base} offset:{off}")
                xb = vr(X + 4 * ks)
            else:
                S.post(n - NB, f"ds_read_b128 {vr(wb)}, v4 offset:{(3+t)*512}")
                xb = vr(AB)
            ac = vr(AC + 16 * aset[t], 16)
            S.add_main(f"{MF} {ac}, {vr(wb)}, {xb}, {'0' if ks == 0 else ac}")
        T = AC + 48
        gaps = [2 * k for k in range(40)]
        gs = self.xstream(S, a, "s15", GX[1], "s32", GST[1], X, T, gaps)
        for t in self.stats_tree(T, 7) + self.stats_finish(T, AB):
            S.fill(t, earliest=gs + 20, deadline=idx[(0, 28)])
        S.fill("v_mul_f32 v217, s55, v217", deadline=idx[(0, 28)])
        g0 = gaps[35 - XD]
        for k, g in enumerate(self.dma_groups("s38", 106 * 1024, "s37", 0, 12, per=1, flags="sc1")):
            S.post(g0 + 2 * k, self.grp(g), cost=1.5)
        assert g0 + 24 < first[3]
        def epi(t, earliest, deadline):
            ac = AC + 16 * aset[t]
            f = lambda s, c=None: S.fill(s, earliest=earliest, deadline=deadline, cost=c)
            for i in range(8):
                f(f"v_mul_f32 v{ac+8+i}, v{ac+i}, v{ac+8+i}")
                f(f"v_mul_f32 v{ac+i}, v217, v{ac+i}")
            for i in range(8):
                f(f"v_exp_f32 v{ac+i}, v{ac+i}")
            for i in range(8):
                f(f"v_fma_f32 v{ac+i}, v{ac+i}, v219, v219")
            for i in range(8):
                f(f"v_rcp_f32 v{ac+i}, v{ac+i}")
            for i in range(8):
                f(f"v_mul_f32 v{ac+i}, v{ac+i}, v{ac+8+i}")
            for i in range(4):
                f(f"v_cvt_pk_bf16_f32 v{ac+i}, v{ac+2*i}, v{ac+2*i+1}")
            if t % 4 == 0:
                f(f"s_add_u32 s39, s28, {t*1024}")
            f(self.hstore(f"buffer_store_dwordx4 {vr(ac)}, v0, {SRD}, s39 offen offset:{(t%4)*1024}"), 3)
        tokD = a.tok()
        nmid = first[3] + 12
        def midbar(aa):
            aa.drain(vm=True, lgkm=False)
            self.ts(2)
            aa("s_barrier")
            aa(f"s_mul_i32 s37, s14, {11*1024}")
            aa("s_add_u32 s38, s49, s37")
        assert nmid <= idx[(3, 22)] - NB
        S.pre(nmid, midbar)
        for k, g in enumerate(self.dma_groups("s38", 154 * 1024, "s37", 48 * 1024, 11, per=1, flags="sc1")):
            S.post(nmid + 2 * k, self.grp(g, tok=tokD), cost=1.5)
        def bar2(aa):
            self.ts(2)
            aa.wait_tok(tokD)
            aa("s_barrier")
            aa(f"s_mul_i32 s37, s14, {14*1024}")
            aa("s_add_u32 s38, s48, s37")
        nb2 = idx[(5, 14)] - NB
        S.pre(nb2, bar2)
        if l == 0:
            for k, g in enumerate(self.dma_groups("s38", 0, "s37", 98 * 1024, 14, per=1, flags="sc1")):
                S.post(nb2 + 1 + 3 * k, self.grp(g), cost=1.5)
            gs2 = self.priv_groups(w2_frag, "s60", "s61", 0, 28)
            for k, g in enumerate(gs2):
                p = nmid + 1 + 3 * k + (k // 2)
                if p > nb2 and (p - nb2 - 1) % 3 == 0:
                    p += 1
                S.post(p, self.grp(g), cost=2)
        epi(0, last[2] + 1, first[4])
        epi(1, last[2] + 1, first[5])
        epi(2, last[2] + 1, first[6])
        for t in range(3, 7):
            epi(t, last[t] + 2, None)
        S.pre(len(seq), lambda aa: self.ts(2))
        for k in (0, 1, 21, 42, 63):
            S.pre(k, lambda aa: self.ts(3))
        S.emit(a)

    def p5(self, l):
        a = self.a
        Le = self.label("p5end")
        a.drain()
        a("s_barrier")
        self.wave0_else(lambda: self.signal("s30", 2 * 4096, True),
                        (lambda: self.dma3("s48", 54, 10, 68)) if l == 0 else None)
        a("s_cmp_ge_u32 s13, 14")
        a(f"s_cbranch_scc1 {Le}")
        self.ksplit_pre()
        if l == 1:
            a("v_bfe_u32 v212, v7, 3, 5")
            a("v_mul_u32_u24 v212, 896, v212")
            a("v_bfe_u32 v213, v7, 8, 1")
            a("v_lshl_add_u32 v212, v213, 4, v212")
        self.wave0_else(lambda: self.poll("s29", 2 * 4096, "0xffff"), None)
        a("s_barrier")
        self.ts()
        if l == 0:
            self.ksplit(28, "s24", "s25", w2_frag, self.store_x(GX[2], GST[2]))
            a.drain()
            a("s_barrier")
            self.wave0_else(lambda: self.signal("s30", 3 * 4096, True), None)
        else:
            self.ksplit(28, "s24", "s25", w2_frag,
                        lambda h: a(f"buffer_store_dwordx4 {vr(8+4*h)}, v212, s[8:11], s57 offen offset:{32*h}"))
        a(f"{Le}:")

    def build(self):
        a = self.a
        self.nts = 29
        self.prologue()
        for l in range(2):
            self.nts = 0
            a.drain()
            a("s_barrier")
            self.ts()
            self.dts()
            ph = [self.p1, self.p2, self.p3, self.p4, self.p5]
            for k, p in enumerate(ph):
                p(l)
                self.ts()
                self.dts()
                if STOP == 5 * l + k + 1:
                    a("s_branch main_done")
            if l == 0:
                self.wave0_else(lambda: self.poll("s29", 3 * 4096, "0x3fff"), None)
                for s, d in (("s19", 0x40000), ("s20", 0x40000), ("s29", 4 * 4096), ("s30", 4 * 4096), ("s31", 0x8000), ("s62", 0x8000)):
                    a(f"s_add_u32 {s}, {s}, {d}")
                for s in ("s15", "s32", "s21", "s22", "s23", "s24", "s25", "s26", "s27", "s28"):
                    a(f"s_add_u32 {s}, {s}, s63")
                if TS:
                    a("s_add_u32 s51, s51, 256")
        a("main_done:")
        a("s_endpgm")
        txt, n = a.finish()
        return txt


def gen_main():
    return G().build()

MAIN_KD = dict(vgpr=512, sgpr=102, accum=256, grid=256, block=256, lds=LDS_BYTES)
```

```python
import math, struct, os
from asmlib import *
from layout import *

STOP = int(os.environ.get("STOP", "99"))
TS = int(os.environ.get("TS", "0"))
NOFAST = int(os.environ.get("NOFAST", "0"))

DTS = int(os.environ.get("DTS", "0"))
X0N = int(os.environ.get("X0N", "8"))
CPF = int(os.environ.get("CPF", "1"))
XD = int(os.environ.get("XD", "8"))
SPOS = int(os.environ.get("SPOS", "16"))
KD = int(os.environ.get("KD", "10"))
KP = float(os.environ.get("KP", "2"))
KNAME = "interleave_layers__sliding_block__glu_gated_swiglu__prompt_kernel"
def f32(x):
    return "0x%08x" % struct.unpack("<I", struct.pack("<f", x))[0]

MISC = 154 * 1024
L_AUG = MISC
L_ST = MISC + 5120
LDS_BYTES = 160 * 1024
WQ_BLK = {0: 98, 1: 126, 2: 70}

def w13_blk(q):
    return 48 + q if q < 106 else (q - 106 if q < 154 else 48 + q - 154)

SRD = "s[4:7]"
MF = "v_mfma_f32_32x32x16_bf16"

def vr(b, n=4):
    return f"v[{b}:{b+n-1}]"

def ar(b, n=4):
    return f"a[{b}:{b+n-1}]"

def lds_blk(b):
    return f"v{b // 64}", (b % 64) * 1024

def w2_frag(i, b):
    return ar((2 * i + b) * 4)

def wo_frag(i, b):
    k = 2 * i + b
    return ar(224 + 4 * k) if k < 8 else vr(224 + 4 * (k - 8))

class G:
    def __init__(self):
        self.a = Asm()
        self.nl = 0
        self.nts = 0
        self.ndts = 0

    def label(self, base):
        self.nl += 1
        return f"L{base}_{self.nl}"

    def ts(self, lvl=1):
        if TS < lvl:
            return
        a = self.a
        k = self.nts
        self.nts += 1
        unc = a.uncounted
        a("s_memrealtime s[42:43]")
        a("s_memtime s[44:45]")
        a("s_waitcnt lgkmcnt(0)")
        a.uncounted = True
        a("v_mov_b32 v222, s42")
        a("v_mov_b32 v223, s44")
        a(f"s_add_u32 s42, s51, {k*8}")
        a("s_mov_b64 exec, 1")
        a(f"buffer_store_dwordx2 v[222:223], v0, {SRD}, s42 offen")
        a("s_mov_b64 exec, -1")
        a.uncounted = unc

    def dts(self):
        if not DTS:
            return
        a = self.a
        k = self.ndts
        self.ndts += 1
        L = self.label("dts")
        unc = a.uncounted
        a("s_cmp_eq_u32 s51, 0")
        a(f"s_cbranch_scc0 {L}")
        a.uncounted = True
        a("s_memrealtime s[42:43]")
        a("s_waitcnt lgkmcnt(0)")
        a("v_mov_b32 v222, s42")
        a("s_mov_b64 exec, 1")
        a(f"global_store_dword v0, v222, s[44:45] offset:{8+4*k}")
        a("s_mov_b64 exec, -1")
        a.uncounted = unc
        a(f"{L}:")
        a("s_waitcnt lgkmcnt(0)")

    def dma_groups(self, sg, goff, slds, loff, n, flags="", per=4):
        out = []
        for i0 in range(0, n, per):
            g = [f"s_add_u32 s34, {sg}, {goff + i0*1024}", f"s_add_u32 m0, {slds}, {loff + i0*1024}"]
            for i in range(i0, min(n, i0 + per)):
                g.append(f"buffer_load_dwordx4 v0, {SRD}, s34 offen offset:{(i-i0)*1024} {flags} lds")
            out.append(g)
        return out

    def dma(self, sg, goff, slds, loff, n, tok=None, flags=""):
        for g in self.dma_groups(sg, goff, slds, loff, n, flags):
            for t in g:
                self.a(t, tok=tok)

    def grp(self, texts, tok=None):
        def f(a):
            for t in texts:
                a(t, tok=tok)
        return f

    def hstore(self, text):
        def f(a):
            if not NOFAST:
                a(text.replace(SRD, "s[96:99]"))
            a(text.replace(SRD, "s[0:3]") + " sc1")
        return f

    def signal(self, soff_sgpr, const, fast):
        a = self.a
        a(f"s_add_u32 s34, {soff_sgpr}, {const}")
        a("v_mov_b32 v220, s100")
        a("v_mov_b32 v221, s101")
        a("s_mov_b64 exec, 1")
        t = f"buffer_store_dwordx2 v[220:221], v0, {SRD}, s34 offen"
        if fast:
            self.hstore(t)(a)
        else:
            a(t + " sc1")
        a("s_mov_b64 exec, -1")

    def poll(self, soff_sgpr, const, mask, vaddr="v7", hi=None):
        a = self.a
        L = self.label("poll")
        a(f"s_add_u32 s34, {soff_sgpr}, {const}")
        a(f"s_mov_b32 exec_lo, {mask}")
        a(f"s_mov_b32 exec_hi, {hi if hi else 0}")
        a(f"{L}:")
        a(f"buffer_load_dwordx2 v[220:221], {vaddr}, {SRD}, s34 offen sc1")
        a("s_waitcnt vmcnt(0)")
        a("v_cmp_eq_u64 vcc, s[100:101], v[220:221]")
        a("s_sub_u32 s33, s33, 1")
        a("s_cmp_eq_u32 s33, 0")
        a(f"s_cbranch_scc1 main_done")
        a(f"s_cmp_eq_u64 vcc, exec")
        a(f"s_cbranch_scc0 {L}")
        a("s_mov_b64 exec, -1")

    def xcc_poll(self):
        a = self.a
        L = self.label("xcc")
        a(f"s_add_u32 s34, s29, {XCCT}")
        a("s_mov_b64 exec, 0xffff")
        a(f"{L}:")
        a(f"buffer_load_dwordx2 v[220:221], v7, {SRD}, s34 offen sc1")
        a("s_waitcnt vmcnt(0)")
        a("v_subrev_u32 v218, s101, v221")
        a("v_cmp_eq_u32 s[36:37], s100, v220")
        a("v_cmp_gt_u32 vcc, 16, v218")
        a("s_sub_u32 s33, s33, 1")
        a("s_cmp_eq_u32 s33, 0")
        a("s_cbranch_scc1 main_done")
        a("s_and_b32 s36, s36, vcc_lo")
        a("s_cmp_eq_u32 s36, 0xffff")
        a(f"s_cbranch_scc0 {L}")

    def wave_if(self, cmp, f0, f1):
        a = self.a
        Lo = self.label("oth"); Lj = self.label("join")
        a(cmp)
        a(f"s_cbranch_scc0 {Lo}")
        a.uncounted = True
        f0()
        if f1:
            a(f"s_branch {Lj}")
        a(f"{Lo}:")
        if f1:
            f1()
        a.uncounted = False
        if f1:
            a(f"{Lj}:")

    def wave0_else(self, f0, f1):
        self.wave_if("s_cmp_eq_u32 s14, 0", f0, f1)

    def stats_tree(self, T, n):
        o = []
        idx = list(range(n))
        while len(idx) > 1:
            nxt = []
            for k in range(0, len(idx) - 1, 2):
                x, y = idx[k], idx[k + 1]
                o.append(f"v_add_f32 v{T+2*x}, v{T+2*x}, v{T+2*y}")
                o.append(f"v_add_f32 v{T+2*x+1}, v{T+2*x+1}, v{T+2*y+1}")
                nxt.append(x)
            if len(idx) % 2:
                nxt.append(idx[-1])
            idx = nxt
        return o

    def stats_finish(self, T, AB):
        return [f"v_mov_b32 v{T+2}, v{T}", f"v_mov_b32 v{T+3}, v{T+1}",
              f"v_permlane32_swap_b32 v{T}, v{T+2}", f"v_permlane32_swap_b32 v{T+1}, v{T+3}",
              f"v_add_f32 v{T}, v{T}, v{T+2}", f"v_add_f32 v{T+1}, v{T+1}, v{T+3}",
              f"v_mul_f32 v216, s52, v{T}", f"v_mul_f32 v219, s52, v{T+1}",
              "v_fma_f32 v219, -v216, v216, v219", "v_max_f32 v219, 0, v219", "v_add_f32 v219, s53, v219",
              "v_rsq_f32 v217, v219",
              f"v_cndmask_b32 v{T}, -v216, 0, s[40:41]",
              f"v_cvt_pk_bf16_f32 v{T+1}, v{T}, v{T}",
              f"v_and_b32 v{T+1}, 0xffff0000, v{T+1}",
              f"v_sub_f32 v{T+1}, v{T}, v{T+1}",
              f"v_cvt_pk_bf16_f32 v{AB}, v{T}, v{T+1}",
              f"v_and_b32 v{T+2}, 0xffff0000, v{AB}",
              f"v_sub_f32 v{T+2}, v{T+1}, v{T+2}",
              f"v_cvt_pk_bf16_f32 v{AB+1}, v{T}, v{T+2}",
              f"v_mov_b32 v{AB+2}, v{AB}", f"v_mov_b32 v{AB+3}, 0"]

    def xload(self, sx, const, X, ks):
        o = []
        if ks % 4 == 0:
            o.append(f"s_add_u32 s36, {sx}, {const + ks*1024}")
        o.append(f"buffer_load_dwordx4 {vr(X+4*ks)}, v0, {SRD}, s36 offen offset:{(ks%4)*1024} sc1")
        return o

    def priv_groups(self, frag, sb0, sb1, i0, i1):
        out = []
        for b, sb in ((0, sb0), (1, sb1)):
            for i in range(i0, i1, 2):
                out.append([f"s_add_u32 s34, {sb}, {i*1024}",
                            f"buffer_load_dwordx4 {frag(i,b)}, v0, {SRD}, s34 offen sc1",
                            f"buffer_load_dwordx4 {frag(i+1,b)}, v0, {SRD}, s34 offen offset:1024 sc1"])
        return out

    def touch(self, sbase, const, nlines, dst):
        mask = (1 << nlines) - 1
        o = [f"s_add_u32 s34, {sbase}, {const}", "v_lshlrev_b32 v218, 3, v0"]
        if nlines <= 32:
            o.append(f"s_mov_b64 exec, {hex(mask)}")
        else:
            o += [f"s_mov_b32 exec_lo, -1", f"s_mov_b32 exec_hi, {hex(mask >> 32)}"]
        o += [f"!buffer_load_dword v{dst}, v218, s[96:99], s34 offen sc1", "s_mov_b64 exec, -1"]
        return o

    def zero_groups(self, Z, big, small):
        zs = []
        for sb_, c_, n_ in big:
            for i in range(n_):
                zs.append([f"s_add_u32 s35, {sb_}, {c_ + i*1024}", f"buffer_store_dwordx4 {vr(Z)}, v0, s[96:99], s35 offen sc1"])
        for c_ in small:
            zs.append(["v_and_b32 v218, 0xf8, v7", f"s_add_u32 s35, s27, {c_}", f"buffer_store_dwordx2 {vr(Z, 2)}, v218, s[96:99], s35 offen sc1"])
        return zs

    def aug_split(self, c, t1, t2, D):
        return [f"v_cvt_pk_bf16_f32 v{D}, v{c}, v{c}", f"v_and_b32 v{t1}, 0xffff0000, v{D}", f"v_sub_f32 v{t1}, v{c}, v{t1}",
                f"v_cvt_pk_bf16_f32 v{D+1}, v{t1}, v{c}", f"v_lshlrev_b32 v{t2}, 16, v{D+1}", f"v_sub_f32 v{t2}, v{t1}, v{t2}",
                f"v_cvt_pk_bf16_f32 v{D+2}, v{t2}, v{t1}", f"v_mov_b32 v{D+3}, 0"]

    def prologue(self):
        a = self.a
        X = 16
        a(f"{KNAME}:")
        a("s_load_dwordx16 s[64:79], s[0:1], 0")
        a("s_load_dwordx4 s[80:83], s[0:1], 64")
        a("s_cmp_ge_u32 s2, 256")
        a("s_cbranch_scc1 main_done")
        a("v_lshrrev_b32 v1, 6, v0")
        a("v_and_b32 v7, 63, v0")
        a("v_readfirstlane_b32 s14, v1")
        a("s_and_b32 s12, s2, 7"); a("s_lshl_b32 s12, s12, 1"); a("s_bfe_u32 s34, s2, 0x10003"); a("s_add_u32 s12, s12, s34")
        a("s_lshr_b32 s13, s2, 4")
        a("s_mul_i32 s16, s13, 5"); a("s_add_u32 s16, s16, s12"); a("s_and_b32 s16, s16, 15")
        if CPF:
            Lp = self.label("cpf")
            a("s_getpc_b64 s[34:35]")
            a("Lpc_base:")
            a("s_cmp_eq_u32 s14, 3"); a(f"s_cbranch_scc0 {Lp}")
            a("s_lshr_b32 s36, s2, 3"); a("s_lshl_b32 s36, s36, 11")
            a("v_lshl_add_u32 v196, v7, 7, s36")
            a("s_mov_b32 s36, main_done - Lpc_base")
            a("v_min_u32 v196, s36, v196")
            a.uncounted = True
            a("s_mov_b64 exec, 0xffff")
            a("!global_load_dword v223, v196, s[34:35]")
            a("s_mov_b64 exec, -1")
            a.uncounted = False
            a(f"{Lp}:")
        a("v_lshrrev_b32 v196, 2, v7")
        a("v_and_b32 v197, 3, v7")
        a("v_lshlrev_b32 v0, 4, v7")
        a("v_and_b32 v206, 31, v7"); a("v_lshrrev_b32 v207, 5, v7")
        a("s_lshr_b32 s34, s16, 2"); a("s_and_b32 s35, s16, 3")
        a("s_add_u32 s36, s34, 1"); a("s_cmp_ge_u32 s36, 3"); a("s_cselect_b32 s36, 0, s36")
        a("s_mul_i32 s36, s36, 896"); a("s_mul_i32 s37, s13, 56"); a("s_add_u32 s36, s36, s37")
        a("s_mul_i32 s37, s35, 7"); a("s_lshl_b32 s38, s14, 1"); a("s_add_u32 s38, s38, s37")
        a(f"s_mul_i32 s39, s38, {16*2688}"); a("s_add_u32 s36, s36, s39")
        a(f"s_add_u32 s39, s36, {16*2688}")
        a("s_cmp_eq_u32 s14, 3"); a("s_cselect_b32 s39, 0x40000000, s39")
        a("s_mul_i32 s40, s13, 3"); a("s_add_u32 s40, s40, s34")
        a("s_mul_i32 s41, s40, 28"); a("s_add_u32 s41, s41, s37"); a("s_lshl_b32 s41, s41, 10"); a(f"s_add_u32 s41, s41, {WQKV}")
        a("s_lshl_b32 s42, s40, 4"); a("s_lshl_b32 s43, s35, 2"); a("s_add_u32 s42, s42, s43"); a("s_add_u32 s42, s42, s14")
        a("s_lshl_b32 s42, s42, 8"); a(f"s_add_u32 s42, s42, {CSP}")
        a("s_cmp_lt_u32 s16, 12"); a("s_cselect_b32 s43, -1, 0")
        a("v_mul_u32_u24 v198, 2688, v196"); a("v_lshl_add_u32 v198, v197, 4, v198")
        a("s_lshl_b32 s44, s14, 11"); a(f"s_add_u32 s44, s44, {32*1024}")
        a("v_lshrrev_b32 v199, 3, v7"); a("v_and_b32 v200, 7, v7")
        a("v_lshrrev_b32 v201, 1, v199"); a("v_xor_b32 v200, v200, v201"); a("v_lshlrev_b32 v200, 4, v200")
        a("v_mul_u32_u24 v201, 896, v199")
        a("v_xor_b32 v202, 64, v200")
        a("v_add_u32 v200, v200, v201"); a("v_add_u32 v202, v202, v201")
        a("s_lshl_b32 s48, s12, 2"); a("s_add_u32 s48, s48, s14"); a(f"s_mul_i32 s48, s48, {32*896}")
        a(f"s_mul_i32 s46, s14, {28*1024}"); a(f"s_add_u32 s46, s46, {40*1024}")
        a("s_lshr_b32 s47, s13, 1"); a("s_min_u32 s47, s47, 6")
        a("s_waitcnt lgkmcnt(0)")
        if TS:
            a("s_memrealtime s[52:53]"); a("s_waitcnt lgkmcnt(0)")
        a("s_mov_b64 s[84:85], s[66:67]"); a(f"s_and_b32 s86, s43, {448*1344*2}"); a("s_mov_b32 s87, 0x20000")
        a("s_mov_b32 s8, s64"); a("s_mov_b32 s9, s65"); a(f"s_mov_b32 s10, {2048*896}"); a("s_mov_b32 s11, 0x20000")
        tokA = a.tok(); tokX0 = a.tok()
        a("s_mov_b32 m0, s44")
        a("buffer_load_dwordx4 v198, s[84:87], s36 offen lds", tok=tokA)
        a("s_add_u32 m0, s44, 1024")
        a("buffer_load_dwordx4 v198, s[84:87], s39 offen lds", tok=tokA)
        a("s_mov_b32 s64, s47")
        def xdma(n0, n1, tok=None):
            for n in range(n0, n1):
                rq = n & 3
                if rq == 0:
                    a("s_lshl_b32 s65, s64, 12"); a("s_add_u32 s65, s65, s46")
                    a("s_lshl_b32 s66, s64, 7"); a("s_add_u32 s66, s66, s48")
                    a("s_add_u32 s64, s64, 1"); a("s_cmp_eq_u32 s64, 7"); a("s_cselect_b32 s64, 0, s64")
                a(f"s_add_u32 m0, s65, {rq*1024}")
                a(f"s_add_u32 s67, s66, {rq*8*896}")
                a(f"buffer_load_dwordx4 {'v200' if rq % 2 == 0 else 'v202'}, s[8:11], s67 offen lds", tok=tok)
        xdma(0, 4, tokX0)
        Ln = self.label("nonce")
        a("s_cmp_eq_u32 s2, 0"); a(f"s_cbranch_scc0 {Ln}")
        a("s_cmp_eq_u32 s14, 0"); a(f"s_cbranch_scc0 {Ln}")
        a.uncounted = True
        a("s_memrealtime s[34:35]")
        a("s_waitcnt lgkmcnt(0)")
        a("s_or_b32 s34, s34, 1")
        a("v_mov_b32 v210, s34"); a("v_mov_b32 v211, s35")
        a("s_mov_b64 exec, 1")
        a("global_store_dwordx2 v0, v[210:211], s[80:81] sc1")
        a("s_mov_b64 exec, -1")
        a.uncounted = False
        a(f"{Ln}:")
        xdma(4, X0N)
        a("s_mov_b32 s4, s82"); a("s_mov_b32 s5, s83"); a("s_mov_b32 s6, 0x10000000"); a("s_mov_b32 s7, 0x20000")
        a("s_add_u32 s92, s82, s41"); a("s_addc_u32 s93, s83, 0"); a("s_and_b32 s94, s43, 7168"); a("s_mov_b32 s95, 0x20000")
        a("s_mov_b32 s96, s82"); a("s_mov_b32 s97, s83"); a("s_and_b32 s98, s43, 0x10000000"); a("s_mov_b32 s99, 0x20000")
        if TS:
            a("s_lshl_b32 s51, s2, 2"); a("s_add_u32 s51, s51, s14"); a("s_lshl_b32 s51, s51, 9"); a(f"s_add_u32 s51, s51, {DBG}")
            a.uncounted = True
            a("s_mov_b64 exec, 1")
            a("v_mov_b32 v222, s52"); a(f"s_add_u32 s34, s51, {24*8}")
            a(f"buffer_store_dword v222, v0, {SRD}, s34 offen")
            a("s_mov_b64 exec, -1")
            a.uncounted = False
        a("v_lshlrev_b32 v7, 3, v7")
        a("v_bfe_u32 v205, v7, 5, 2")
        a("v_lshl_add_u32 v205, v207, 3, v205"); a("v_lshlrev_b32 v205, 6, v205")
        a("v_bfe_u32 v203, v7, 7, 1"); a("v_lshl_add_u32 v205, v203, 5, v205")
        a("v_bfe_u32 v203, v7, 3, 1"); a("v_lshl_add_u32 v205, v203, 4, v205")
        a("v_bfe_u32 v203, v7, 4, 1"); a("v_lshl_add_u32 v205, v203, 3, v205")
        a("v_add_u32 v203, s44, v205")
        a("v_cmp_gt_u32 vcc, 28, v206")
        a("v_cndmask_b32 v201, 0, -1, vcc")
        a("v_mov_b32 v209, 0x3f803f80")
        a("s_lshl_b32 s34, s14, 11"); a("v_add_u32 v199, s34, v0")
        a("v_lshrrev_b32 v198, 1, v7")
        a("v_bfe_u32 v204, v206, 1, 3"); a("v_xor_b32 v204, v204, v207"); a("v_lshlrev_b32 v204, 4, v204")
        a("v_lshl_add_u32 v204, v206, 7, v204"); a("v_add_u32 v204, s46, v204")
        a("s_and_b32 s34, s13, 1"); a("s_lshl_b32 s34, s34, 6"); a("v_xor_b32 v208, s34, v204")
        a("s_lshl_b32 s34, s47, 12"); a("v_add_u32 v208, s34, v208"); a("v_xor_b32 v197, 32, v208")
        for e in range(8):
            a(f"v_mov_b32 v{188+e}, 0")
        a.wait_tok(tokA)
        for b in range(2):
            for m in range(2):
                a(f"ds_read_b64_tr_b16 {vr(128+4*b+2*m, 2)}, v203 offset:{b*1024 + m*256}")
        for b in range(2):
            for k in range(4):
                a(f"v_and_b32 v{128+4*b+k}, v201, v{128+4*b+k}")
            a(f"buffer_store_dwordx4 {vr(128+4*b)}, v199, s[92:95], 0 offen offset:{b*1024} sc1")
        for b in range(2):
            for k in range(4):
                a(f"v_dot2_f32_bf16 v{188+k}, v{128+4*b+k}, v209, v{188+k}")
        a("v_add_f32 v188, v188, v189"); a("v_add_f32 v190, v190, v191"); a("v_add_f32 v188, v188, v190")
        a("buffer_store_dword v188, v198, s[96:99], s42 offen sc1")
        a("s_lshl_b32 s15, s12, 20"); a(f"s_add_u32 s15, s15, {GRP0}")
        a("s_mul_i32 s34, s14, 14"); a("s_add_u32 s34, s34, s13"); a("s_lshl_b32 s34, s34, 8"); a("s_add_u32 s34, s34, s15"); a(f"s_add_u32 s34, s34, {GST[0]}")
        a("s_cmp_lt_u32 s13, 14"); a("s_cselect_b32 s34, s34, 0x40000000")
        a.wait_tok(tokX0)
        a("ds_read_b128 v[136:139], v208")
        a("ds_read_b128 v[140:143], v197")
        for k in range(8):
            o = 192 + 2 * (k & 1)
            a(f"v_dot2_f32_bf16 v{o}, v{136+k}, v209, v{o}")
            a(f"v_dot2_f32_bf16 v{o+1}, v{136+k}, v{136+k}, v{o+1}")
        a("v_add_f32 v192, v192, v194"); a("v_add_f32 v193, v193, v195")
        a("v_mov_b32 v194, v192"); a("v_mov_b32 v195, v193")
        a("v_and_b32 v197, 0xf8, v7")
        a("v_permlane32_swap_b32 v192, v194"); a("v_permlane32_swap_b32 v193, v195")
        a("v_add_f32 v192, v192, v194"); a("v_add_f32 v193, v193, v195")
        a(f"buffer_store_dwordx2 v[192:193], v197, {SRD}, s34 offen sc1")
        self.ts(2)
        Lt = self.label("tag"); Lok = self.label("tagok")
        a("v_mov_b32 v203, 0")
        a("global_load_dwordx2 v[210:211], v203, s[80:81] sc1")
        xdma(X0N, 28)
        Lw2, Lwo, Lu = (self.label(x) for x in ("uw2", "uwo", "uend"))
        a("s_sub_u32 s3, 15, s16"); a("s_lshl_b32 s3, s3, 4"); a("s_add_u32 s3, s3, s13")
        a("s_and_b32 s40, s14, 1"); a("s_lshr_b32 s41, s14, 1")
        a("s_mov_b32 s39, 0"); a("s_mov_b32 s70, 0x40000000"); a("s_mov_b32 s94, 7168"); a("s_mov_b32 s38, 32")
        a(f"s_mul_i32 s67, s14, {7*1024}"); a(f"s_mov_b32 s71, {152*1024}")
        a("s_cmp_ge_u32 s3, 168"); a(f"s_cbranch_scc1 {Lwo}")
        a("s_cmp_ge_u32 s3, 112"); a(f"s_cbranch_scc1 {Lw2}")
        a("s_lshr_b32 s34, s3, 2"); a("s_and_b32 s35, s3, 3")
        a("s_mov_b32 s36, 3584")
        a("s_lshl_b32 s37, s35, 1"); a("s_add_u32 s37, s37, s40"); a(f"s_mul_i32 s37, s37, {56*3584}"); a("s_lshl_b32 s64, s34, 7"); a("s_add_u32 s37, s37, s64")
        a("s_cmp_eq_u32 s41, 0"); a("s_cselect_b32 s84, s72, s74"); a("s_cselect_b32 s85, s73, s75"); a(f"s_mov_b32 s86, {448*1792*2}")
        a("s_lshl_b32 s64, s34, 2"); a("s_add_u32 s64, s64, s14")
        a("s_lshl_b32 s70, s64, 2"); a("s_add_u32 s70, s70, s35")
        a(f"s_mul_i32 s66, s70, {7*1024}"); a(f"s_add_u32 s66, s66, {W13}")
        a("s_lshl_b32 s70, s70, 8"); a(f"s_add_u32 s70, s70, {CSP13}")
        a("s_lshl_b32 s65, s14, 5"); a("s_mov_b32 s38, 14336")
        a(f"s_branch {Lu}")
        a(f"{Lw2}:")
        a("s_sub_u32 s34, s3, 112"); a("s_and_b32 s35, s34, 7"); a("s_lshr_b32 s34, s34, 3")
        a("s_mov_b32 s36, 896")
        a("s_lshl_b32 s37, s35, 2"); a("s_add_u32 s37, s37, s14"); a(f"s_mul_i32 s37, s37, {56*896}"); a("s_lshl_b32 s64, s34, 7"); a("s_add_u32 s37, s37, s64")
        a("s_mov_b64 s[84:85], s[76:77]"); a(f"s_mov_b32 s86, {1792*448*2}")
        a("s_lshl_b32 s64, s34, 1"); a("s_add_u32 s64, s64, s40"); a("s_lshl_b32 s64, s64, 4")
        a("s_lshl_b32 s65, s35, 1"); a("s_add_u32 s64, s64, s65"); a("s_add_u32 s64, s64, s41")
        a(f"s_mul_i32 s66, s64, {7*1024}"); a(f"s_add_u32 s66, s66, {W2}")
        a(f"s_mul_i32 s65, s41, {112*128}"); a("s_lshl_b32 s64, s40, 6"); a("s_add_u32 s65, s65, s64")
        a(f"s_branch {Lu}")
        a(f"{Lwo}:")
        a("s_sub_u32 s34, s3, 168"); a("s_and_b32 s35, s34, 1"); a("s_lshr_b32 s34, s34, 1")
        a("s_mov_b32 s36, 896"); a("s_mov_b32 s39, 4")
        a("s_lshl_b32 s37, s35, 2"); a("s_add_u32 s37, s37, s14"); a(f"s_mul_i32 s37, s37, {56*896}"); a("s_lshl_b32 s64, s34, 7"); a("s_add_u32 s37, s37, s64")
        a("s_mov_b64 s[84:85], s[68:69]")
        a("s_cmp_lt_u32 s3, 182"); a(f"s_cselect_b32 s86, {448*448*2}, 0"); a("s_cselect_b32 s94, 8192, 0")
        a("s_lshl_b32 s64, s34, 1"); a("s_add_u32 s64, s64, s40"); a("s_lshl_b32 s64, s64, 2")
        a("s_lshl_b32 s65, s35, 1"); a("s_add_u32 s64, s64, s65"); a("s_add_u32 s64, s64, s41")
        a("s_lshl_b32 s66, s64, 13"); a(f"s_add_u32 s66, s66, {WO}")
        a("s_lshl_b32 s65, s41, 14"); a("s_lshl_b32 s64, s40, 6"); a("s_add_u32 s65, s65, s64")
        a("s_lshl_b32 s67, s14, 13"); a("s_add_u32 s71, s67, 7168")
        a(f"{Lu}:")
        a("s_add_u32 s92, s82, s66"); a("s_addc_u32 s93, s83, 0")
        a("v_bfe_u32 v196, v7, 6, 3"); a("v_bfe_u32 v197, v7, 3, 3")
        a("v_mul_lo_u32 v198, v196, s36"); a("v_lshl_add_u32 v198, v197, 4, v198")
        a("v_mov_b32 v201, 0x40000000")
        a("v_add_u32 v199, s39, v196")
        a("v_cmp_le_u32 vcc, 8, v199")
        a("v_cndmask_b32 v199, v198, v201, vcc")
        a("s_lshl_b32 s64, s36, 3")
        a("s_sub_u32 s66, 8, s39"); a("s_mul_i32 s66, s66, s36")
        for i in range(8):
            a(f"s_add_u32 m0, s67, {i*1024}" if i < 7 else "s_mov_b32 m0, s71")
            a(f"buffer_load_dwordx4 {'v199' if (i & 3) == 3 else 'v198'}, s[84:87], s37 offen lds")
            if i < 7:
                a(f"s_add_u32 s37, s37, {'s66' if i == 3 else 's64'}")
        a("v_bfe_u32 v205, v7, 5, 2")
        a("v_lshl_add_u32 v205, v207, 3, v205"); a("v_lshlrev_b32 v205, 7, v205")
        a("v_bfe_u32 v201, v7, 7, 1"); a("v_mul_lo_u32 v201, v201, s38"); a("v_add_u32 v205, v205, v201")
        a("v_bfe_u32 v201, v7, 3, 1"); a("v_lshl_add_u32 v205, v201, 4, v205")
        a("v_bfe_u32 v201, v7, 4, 1"); a("v_lshl_add_u32 v205, v201, 3, v205")
        a("v_add_u32 v205, s65, v205")
        a("s_lshl_b32 s3, s3, 3")
        a("s_lshl_b32 s69, s16, 3")
        a("v_add_u32 v1, 0x10000, v0")
        a("v_add_u32 v2, 0x20000, v0")
        a(f"s_mul_i32 s48, s13, {84*1024}"); a(f"s_add_u32 s48, s48, {WQKV}")
        a(f"s_mul_i32 s49, s13, {196*1024}"); a(f"s_add_u32 s49, s49, {W13}")
        a("s_mov_b32 s33, 0x40000")
        a("s_getreg_b32 s63, hwreg(HW_REG_XCC_ID, 0, 4)")
        a("s_mov_b32 s16, s15")
        a("s_cmp_ge_u32 s13, 7"); a("s_cselect_b32 s40, 1, 0")
        a("s_mul_i32 s41, s40, 7"); a("s_sub_u32 s41, s13, s41")
        a("s_min_u32 s41, s41, 6")
        a("s_lshr_b32 s36, s14, 1"); a("s_and_b32 s37, s14, 1")
        a("s_lshl_b32 s38, s40, 1")
        a("s_add_u32 s39, s38, s36")
        a("s_sub_u32 s38, s38, s36"); a("s_add_u32 s38, s38, 1")
        a("s_lshl_b32 s41, s41, 1")
        a("s_add_u32 s46, s41, s37")
        a("s_sub_u32 s47, s41, s37"); a("s_add_u32 s47, s47, 1")
        a(f"s_mul_i32 s17, s14, {28*1024}"); a("s_add_u32 s17, s17, s16"); a("s_mov_b32 s15, s17")
        a(f"s_mul_i32 s18, s14, {14*256}"); a("s_add_u32 s18, s18, s16"); a("s_mov_b32 s32, s18")
        a("s_lshl_b32 s19, s12, 5"); a("s_add_u32 s19, s19, s13"); a("s_lshl_b32 s19, s19, 14"); a(f"s_add_u32 s19, s19, {KV0}")
        a("s_add_u32 s20, s14, 1"); a("s_lshl_b32 s20, s20, 19"); a("s_sub_u32 s20, s19, s20")
        a("s_lshl_b32 s34, s14, 12"); a("s_add_u32 s19, s19, s34")
        a("s_lshl_b32 s21, s14, 4"); a("s_add_u32 s21, s21, s13"); a("s_lshl_b32 s21, s21, 11"); a("s_add_u32 s21, s21, s16"); a(f"s_add_u32 s21, s21, {GO}")
        a("s_lshl_b32 s34, s14, 13"); a("s_add_u32 s34, s34, s16"); a(f"s_add_u32 s34, s34, {GO}")
        a("s_lshl_b32 s22, s39, 15"); a("s_add_u32 s22, s22, s34")
        a("s_lshl_b32 s23, s38, 15"); a("s_add_u32 s23, s23, s34")
        a(f"s_add_u32 s34, s17, {GH}")
        a(f"s_mul_i32 s24, s39, {112*1024}"); a("s_add_u32 s24, s24, s34")
        a(f"s_mul_i32 s25, s38, {112*1024}"); a("s_add_u32 s25, s25, s34")
        a("s_mul_i32 s34, s39, 14"); a("s_add_u32 s34, s34, s46")
        a("s_lshl_b32 s26, s34, 11"); a("s_add_u32 s26, s26, s16")
        a("s_lshl_b32 s27, s34, 8"); a("s_add_u32 s27, s27, s16")
        a("s_lshl_b32 s28, s14, 4"); a("s_add_u32 s28, s28, s13"); a(f"s_mul_i32 s28, s28, {7*1024}"); a("s_add_u32 s28, s28, s16"); a(f"s_add_u32 s28, s28, {GH}")
        a("s_lshl_b32 s34, s12, 2"); a("s_add_u32 s34, s34, s39")
        a(f"s_mul_i32 s57, s34, {32*896}"); a("s_lshl_b32 s34, s46, 6"); a("s_add_u32 s57, s57, s34")
        a("s_lshl_b32 s34, s14, 13"); a(f"s_add_u32 s34, s34, {WO}")
        a("s_lshl_b32 s58, s46, 15"); a("s_add_u32 s58, s58, s34")
        a("s_lshl_b32 s59, s47, 15"); a("s_add_u32 s59, s59, s34")
        a(f"s_mul_i32 s34, s14, {28*1024}"); a(f"s_add_u32 s34, s34, {W2}")
        a(f"s_mul_i32 s60, s46, {112*1024}"); a("s_add_u32 s60, s60, s34")
        a(f"s_mul_i32 s61, s47, {112*1024}"); a("s_add_u32 s61, s61, s34")
        a("s_mov_b32 s46, s41")
        a("v_mul_u32_u24 v208, 896, v206"); a("v_lshl_add_u32 v208, v207, 4, v208")
        a("buffer_load_dwordx4 v[8:11], v208, s[8:11], s57 offen")
        a("buffer_load_dwordx4 v[12:15], v208, s[8:11], s57 offen offset:32")
        a("s_lshl_b32 s29, s12, 8")
        a("s_lshl_b32 s34, s13, 3"); a("s_add_u32 s30, s29, s34")
        a("s_lshl_b32 s62, s12, 4"); a("s_add_u32 s62, s62, s13"); a("s_lshl_b32 s62, s62, 7"); a(f"s_add_u32 s62, s62, {F1}")
        a("s_add_u32 s34, s14, 1"); a("s_lshl_b32 s34, s34, 11"); a("s_sub_u32 s31, s62, s34")
        a("s_sub_u32 s50, s14, 1")
        a(f"s_mov_b32 s52, {f32(1.0/448)}"); a(f"s_mov_b32 s53, {f32(1e-5)}")
        a(f"s_mov_b32 s54, {f32(28**-0.5 * math.log2(math.e))}"); a(f"s_mov_b32 s55, {f32(-math.log2(math.e))}")
        a(f"s_mov_b32 s56, {f32(-2.0**100)}")
        a("s_mov_b32 s40, 0"); a("s_mov_b32 s41, -1")
        if DTS:
            a("s_lshl_b32 s51, s2, 2"); a("s_add_u32 s51, s51, s14"); a(f"s_sub_u32 s51, s51, {DTS*4}")
            a("s_mov_b64 s[44:45], s[80:81]")
        a("v_readfirstlane_b32 s100, v210")
        a("v_readfirstlane_b32 s101, v211")
        a("s_cmp_lg_u32 s100, 0")
        a(f"s_cbranch_scc1 {Lok}")
        a.uncounted = True
        a(f"{Lt}:")
        a("global_load_dwordx2 v[210:211], v203, s[80:81] sc1")
        a("s_waitcnt vmcnt(0)")
        a("v_readfirstlane_b32 s100, v210")
        a("v_readfirstlane_b32 s101, v211")
        a("s_sub_u32 s33, s33, 1")
        a("s_cmp_eq_u32 s33, 0")
        a("s_cbranch_scc1 main_done")
        a("s_cmp_lg_u32 s100, 0")
        a(f"s_cbranch_scc0 {Lt}")
        a.uncounted = False
        a(f"{Lok}:")
        a("s_barrier")
        def sig():
            a("s_lshl_b32 s35, s13, 8"); a("s_add_u32 s35, s35, s69")
            self.signal("s35", PKA, False)
            a("s_add_u32 s35, s101, s63")
            a("v_mov_b32 v221, s35")
            a(f"s_add_u32 s34, s30, {XCCT}")
            a("s_mov_b64 exec, 1")
            a(f"buffer_store_dwordx2 v[220:221], v0, {SRD}, s34 offen sc1")
            a("s_mov_b64 exec, -1")
        self.wave0_else(sig, None)
        self.dts()
        self.ts(2)
        a("v_lshlrev_b32 v4, 4, v206"); a(f"v_add_u32 v4, {MISC}, v4")
        a("v_cmp_eq_u32 vcc, 28, v206")
        a("v_cndmask_b32 v5, 0, 1.0, vcc")
        a("s_lshl_b32 s34, s14, 7"); a(f"s_add_u32 s34, s34, {L_ST}")
        a("v_lshl_add_u32 v3, v206, 2, s34")
        a("v_lshl_add_u32 v6, v207, 4, s34")
        for k in range(1, 4):
            a(f"v_xor_b32 v{196+k}, {32*k}, v204")
        a.drain(lgkm=False)
        a("s_barrier")
        for i in range(8):
            for m in range(2):
                a(f"ds_read_b64_tr_b16 {vr(224+4*i+2*m, 2)}, v205 offset:{i*2048 + m*512}")
        for k in range(4):
            a(f"v_mov_b32 v{188+k}, 0")
        for i in range(7):
            for k in range(4):
                a(f"v_dot2_f32_bf16 v{188+k}, v{224+4*i+k}, v209, v{188+k}")
        a("v_add_f32 v188, v188, v189"); a("v_add_f32 v190, v190, v191"); a("v_add_f32 v5, v188, v190")
        a("s_mov_b64 s[96:97], s[92:93]"); a("s_mov_b32 s98, s94"); a("s_mov_b32 s47, s70")
        for ks in range(28):
            a(f"ds_read_b128 {vr(X+4*ks)}, {'v204' if ks % 4 == 0 else 'v%d' % (196 + ks % 4)} offset:{(ks >> 2)*4096}")
        a("s_mov_b32 s8, s78"); a("s_mov_b32 s9, s79")
        a("v_lshlrev_b32 v207, 2, v207")
        a("v_sub_u32 v207, v206, v207")
        for rho in range(16):
            kk = 8 * (rho >> 2) + (rho & 3)
            a(f"v_cmp_le_i32 s[{64+2*rho}:{65+2*rho}], {kk}, v207")
        a("s_lshl_b32 s35, s13, 8")
        def polls():
            Lb = self.label("pb"); Lc = self.label("pc")
            a("s_cmp_eq_u32 s14, 0"); a(f"s_cbranch_scc0 {Lb}")
            self.poll("s35", PKA, "0xfff")
            a(f"s_branch {Lc}")
            a(f"{Lb}:")
            self.xcc_poll()
            a("s_mov_b64 exec, -1")
            a(f"{Lc}:")
        self.wave_if("s_cmp_lt_u32 s14, 2", polls, None)
        a("s_lshr_b32 s37, s14, 1"); a(f"s_mul_i32 s37, s37, {28*1024}")
        a("s_and_b32 s39, s14, 1"); a(f"s_mul_i32 s39, s39, {7*1024}"); a("s_add_u32 s37, s37, s39")
        a(f"s_mul_i32 s39, s14, {7*1024}")
        a.drain()
        a("s_barrier")
        self.ts(2)
        self.tokW = [a.tok(), a.tok(), a.tok()]
        a("s_add_u32 s38, s48, s37")
        self.dma("s38", 0, "s37", 98 * 1024, 7, flags="sc1", tok=self.tokW[0])
        self.dma("s38", 14 * 1024, "s37", 112 * 1024, 7, flags="sc1", tok=self.tokW[1])

    def xstream(self, S, a, sx, xoff, sst, stoff, X, T, gaps):
        items = [self.xload(sx, xoff, X, ks) for ks in range(28)]
        sitems = []
        for u in range(7):
            g = []
            if u == 0:
                g.append(f"s_add_u32 s35, {sst}, {stoff}")
            g.append(f"buffer_load_dwordx2 {vr(T+2*u, 2)}, v7, {SRD}, s35 offen offset:{u*512} sc1")
            sitems.append(g)
        order = items[:SPOS] + sitems + items[SPOS:]
        for g in order[:XD]:
            for t in g:
                a(t)
        pos = {}
        for k, g in enumerate(order[XD:]):
            S.post(gaps[k], self.grp(g), cost=1.5)
            pos[XD + k] = gaps[k]
        return pos[SPOS + 6]

    def p1(self, l):
        a = self.a
        X, AK, AV, AQ, WB, RV, AB = 16, 128, 144, 160, 176, 200, 212
        NB = 6
        S = Sched(budget=5)
        seq = []
        for ks in range(29):
            seq.append((0, ks)); seq.append((1, ks))
        for ks in range(29):
            seq.append((2, ks))
        ACC = {0: AK, 1: AV, 2: AQ}
        idx = {}
        for n, (p, ks) in enumerate(seq):
            idx[(p, ks)] = n
            wb = WB + 4 * (n % NB)
            if ks < 28:
                base, off = lds_blk(WQ_BLK[p] + ks)
                S.post(n - NB, f"ds_read_b128 {vr(wb)}, {base} offset:{off}")
                xb = vr(X + 4 * ks)
            else:
                S.post(n - NB, f"ds_read_b128 {vr(wb)}, v4 offset:{p*512}")
                xb = vr(AB)
            ac = vr(ACC[p], 16)
            c = "0" if ks == 0 else ac
            if p == 1:
                S.add_main(f"{MF} {ac}, {xb}, {vr(wb)}, {c}")
            else:
                S.add_main(f"{MF} {ac}, {vr(wb)}, {xb}, {c}")
        dq = idx[(0, 28)]
        e0 = idx[(1, 28)] + 1
        if l == 1:
            gaps = [(3 * k) // 2 for k in range(40)]
            gs = self.xstream(S, a, "s17", GX[2], "s18", GST[2], X, AQ, gaps)
            for t in self.stats_tree(AQ, 7) + self.stats_finish(AQ, AB):
                S.fill(t, earliest=gs + 14, deadline=dq)
        a("s_lshl_b32 s34, s14, 12")
        a("v_add_u32 v220, s34, v0")
        if l == 0:
            U, C = 224, 240
            n2, n3 = idx[(0, 14)] - NB, idx[(0, 28)] - NB
            C = RV
            a(f"v_lshrrev_b32 v{AQ+14}, 1, v7"); a(f"v_add_u32 v{AQ+15}, 4096, v0")
            l4 = f"v{AQ+14}"
            g = [[f"s_add_u32 s35, s18, {GST[0]}"] + [f"buffer_load_dwordx2 {vr(AQ+2*u, 2)}, v7, {SRD}, s35 offen offset:{u*512} sc1" for u in range(2)]]
            g += [[f"buffer_load_dwordx2 {vr(AQ+2*u, 2)}, v7, {SRD}, s35 offen offset:{u*512} sc1" for u in us] for us in ((2, 3), (4, 5), (6,))]
            g[-1] += ["s_min_u32 s36, s14, 2", "s_mul_i32 s35, s13, 3", "s_add_u32 s35, s35, s36", "s_lshl_b32 s35, s35, 12", f"s_add_u32 s35, s35, {CSP}"]
            cr = [C + k for k in range(12)] + [216, 217, 218, 219]
            g += [[f"buffer_load_dword v{cr[k]}, {l4}, {SRD}, s35 offen offset:{k*256} sc1" for k in (k0, k0 + 1)] for k0 in range(0, 16, 2)]
            for k, gg in enumerate(g):
                S.post(k, self.grp(gg), cost=2)
            a("s_add_u32 s38, s48, s39")
            for k, gg in enumerate(self.dma_groups("s38", 56 * 1024, "s39", 70 * 1024, 7, per=1, flags="sc1")):
                S.post(12 + k, self.grp(gg, tok=self.tokW[2]), cost=1.5)
            for i in range(8):
                S.post(20 + 3 * i, f"buffer_store_dwordx4 {vr(224+4*i)}, {'v0' if i < 4 else 'v%d' % (AQ+15)}, s[96:99], 0 offen offset:{(i%4)*1024} sc1", cost=2)
            S.post(44, self.grp([f"buffer_store_dword v5, {l4}, {SRD}, s47 offen sc1", "v_bfe_u32 v221, v7, 3, 5", "v_cmp_eq_u32 vcc, 28, v221", "v_cndmask_b32 v5, 0, 1.0, vcc"]), cost=3)
            def st2(aa):
                aa.wait_tok(self.tokW[1])
                aa("s_barrier")
            def st3(aa):
                aa.wait_tok(self.tokW[2])
                aa.drain(vm=False)
                aa("s_barrier")
            S.pre(n2, st2)
            S.pre(n3, st3)
            o = []
            for st in (8, 4, 2, 1):
                o += [f"v_add_f32 v{cr[i]}, v{cr[i]}, v{cr[i+st]}" for i in range(st)]
            o += [f"v_mov_b32 v{C+1}, v{C}", "s_lshl_b32 s36, s36, 9", f"v_add_u32 v{C+8}, s36, v4", f"v_permlane32_swap_b32 v{C}, v{C+1}", f"v_add_f32 v{C}, v{C}, v{C+1}"]
            o += self.aug_split(C, C + 1, C + 2, C + 4) + [f"ds_write_b128 v{C+8}, {vr(C+4)}"]
            for t in o:
                S.fill(t, earliest=n2 + 4, deadline=n3)
            for t in self.stats_tree(AQ, 7) + self.stats_finish(AQ, AB):
                S.fill(t, earliest=n2, deadline=dq)
        S.fill("ds_write_b32 v3, v217", earliest=30, deadline=e0)
        for q in range(3):
            S.fill(f"ds_read_b128 {vr(RV+4*q)}, v6 offset:{q*32}", deadline=e0)
        S.fill("v_mul_f32 v219, s54, v217", deadline=e0)
        tokS = a.tok()
        f = lambda t, tok=None: S.fill(t, earliest=e0, cost=0.5, tok=tok)
        for i in range(16):
            f(f"v_mul_f32 v{AK+i}, v217, v{AK+i}")
        for i in range(8):
            f(f"v_cvt_pk_bf16_f32 v{AK+i}, v{AK+2*i}, v{AK+2*i+1}")
        f(f"ds_read_b128 {vr(AK+8)}, v6 offset:96")
        f(f"buffer_store_dwordx4 {vr(AK)}, v0, {SRD}, s19 offen sc1", tokS)
        f(f"buffer_store_dwordx4 {vr(AK+4)}, v0, {SRD}, s19 offen offset:1024 sc1", tokS)
        for i in range(16):
            rv = RV + i if i < 12 else AK + 8 + (i - 12)
            f(f"v_fma_f32 v{AV+i}, v{AV+i}, v{rv}, v5")
        for i in range(8):
            f(f"v_cvt_pk_bf16_f32 v{AV+i}, v{AV+2*i}, v{AV+2*i+1}")
        f(f"buffer_store_dwordx4 {vr(AV)}, v0, {SRD}, s19 offen offset:2048 sc1", tokS)
        f(f"buffer_store_dwordx4 {vr(AV+4)}, v0, {SRD}, s19 offen offset:3072 sc1", tokS)
        for k, r in enumerate((AK, AK + 4, AV, AV + 4)):
            S.fill(f"ds_write_b128 v220, {vr(r)} offset:{8*4096+k*1024}", earliest=e0)
        PM = 152
        S.fill("v_mov_b32 v216, 0xffff", earliest=e0); S.fill("v_mov_b32 v218, 0xffff0000", earliest=e0)
        for i in range(8):
            S.fill(f"v_cndmask_b32 v{PM+i}, 0, v216, s[{64+4*i}:{65+4*i}]", earliest=e0)
            S.fill(f"v_cndmask_b32 v221, 0, v218, s[{66+4*i}:{67+4*i}]", earliest=e0)
            S.fill(f"v_or_b32 v{PM+i}, v{PM+i}, v221", earliest=e0)
        S.pre(e0, lambda aa: self.ts(2))
        for k in (0, 1, 20, 40):
            S.pre(k, lambda aa: self.ts(3))
        S.emit(a)
        a("v_mov_b32 v176, v220")
        a.wait_tok(tokS)
        a.drain(vm=False)
        a("s_barrier")
        def sg():
            self.signal("s62", 0, False)
            if l == 0:
                self.signal("s3", PKF, False)
        self.wave0_else(sg, None)
        for i in range(16):
            a(f"v_mul_f32 v{AQ+i}, v219, v{AQ+i}")
        a("v_mov_b32 v221, s56")
        a(f"v_cndmask_b32 v{AQ+12}, v{AQ+12}, v221, s[40:41]")
        for i in range(8):
            a(f"v_cvt_pk_bf16_f32 v{AQ+i}, v{AQ+2*i}, v{AQ+2*i+1}")
        a("v_mov_b32 v168, v176")
        if l == 0:
            self.xcc_poll()
            a.forget()
            a("v_cmp_eq_u32 vcc, s63, v218")
            a("s_mov_b64 exec, -1")
            a("s_mov_b32 s96, s4"); a("s_mov_b32 s97, s5"); a("s_mov_b32 s99, 0x20000")
            a("s_mov_b32 s0, s4"); a("s_mov_b32 s1, s5"); a("s_mov_b32 s3, 0x20000")
            if NOFAST:
                a("s_cmp_eq_u32 s4, -1")
            else:
                a("s_cmp_eq_u32 vcc_lo, 0xffff")
            a("s_cselect_b32 s98, 0x10000000, 0")
            a("s_cselect_b32 s2, 0, 0x10000000")
            a(f"s_cselect_b32 s63, 0, {SLOWD}")

    def p2(self, l):
        a = self.a
        Q, KF, SB, NM, PM, OA, VB = 160, 16, 88, 136, 152, 176, 192
        def halo():
            Lf = self.label("fill"); Lh = self.label("halo")
            a("s_lshl_b32 s37, s14, 14"); a("s_sub_u32 s37, 16384, s37")
            a("s_cmp_le_u32 s12, s14")
            a(f"s_cbranch_scc1 {Lf}")
            self.poll("s31", 0, "1")
            self.dma("s20", 0, "s37", 0, 16, flags="sc1")
            a(f"s_branch {Lh}")
            a(f"{Lf}:")
            a("v_add_u32 v220, s37, v0")
            for i in range(8):
                a(f"v_mov_b32 v{SB+i}, 0")
            a("v_mov_b32 v221, 0x3f80")
            a(f"v_cndmask_b32 v{SB+6}, 0, v221, s[40:41]")
            for t in range(4):
                a(f"ds_write_b128 v220, {vr(SB)} offset:{t*4096}")
                a(f"ds_write_b128 v220, {vr(SB+4)} offset:{t*4096+1024}")
                a(f"ds_write_b128 v220, {vr(SB)} offset:{t*4096+2048}")
                a(f"ds_write_b128 v220, {vr(SB)} offset:{t*4096+3072}")
            a(f"{Lh}:")
            a("s_waitcnt vmcnt(0) lgkmcnt(0)")
        def pref():
            if l == 0:
                a("s_mul_i32 s35, s13, 7"); a("s_add_u32 s36, s35, 6"); a("s_lshr_b32 s35, s35, 2"); a("s_lshr_b32 s36, s36, 2")
                a("s_sub_u32 s36, s36, s35"); a("s_cmp_eq_u32 s36, 2"); a("s_cselect_b32 s47, 0xf00, 0"); a("s_or_b32 s47, s47, 0x00ff00ff")
                a("s_lshl_b32 s35, s35, 5")
                a("s_lshl_b32 s36, s46, 5"); a(f"s_add_u32 s36, s36, {112*8}")
                a("s_lshl_b32 s37, s46, 3"); a(f"s_add_u32 s37, s37, {168*8}")
                a("v_bfe_u32 v218, v7, 7, 2")
                a("v_mov_b32 v220, s35"); a("v_mov_b32 v221, s36"); a("v_mov_b32 v219, s37")
                a("v_cmp_eq_u32 vcc, 1, v218"); a("v_cndmask_b32 v220, v220, v221, vcc")
                a("v_cmp_eq_u32 vcc, 2, v218"); a("v_cndmask_b32 v220, v220, v219, vcc")
                a("v_and_b32 v218, 0x78, v7"); a("v_add_u32 v218, v218, v220")
                a("s_mov_b32 s35, 0")
                self.poll("s35", PKF, "s47", vaddr="v218", hi="3")
                a("s_sub_u32 s37, s14, 2"); a("s_mul_i32 s37, s37, 3")
                a("s_mul_i32 s38, s13, 7"); a("s_add_u32 s38, s38, s37"); a("s_lshl_b32 s38, s38, 10"); a(f"s_add_u32 s38, s38, {CSP13}")
                a("v_lshrrev_b32 v218, 1, v7")
                for k in range(16):
                    a(f"!buffer_load_dword v{SB+k}, v218, {SRD}, s38 offen offset:{k*256} sc1")
                a("s_lshl_b32 s37, s37, 9"); a("v_add_u32 v218, s37, v4")
            a("s_sub_u32 s37, s14, 2"); a(f"s_mul_i32 s37, s37, {19*1024}")
            a("s_add_u32 s38, s49, s37")
            self.dma("s38", 0, "s37", 48 * 1024, 19, flags="sc1")
            if l == 0:
                a("s_waitcnt vmcnt(19)")
                for t in range(4):
                    c = SB + 4 * t
                    for tt in (f"v_add_f32 v{c}, v{c}, v{c+1}", f"v_add_f32 v{c+2}, v{c+2}, v{c+3}", f"v_add_f32 v{c}, v{c}, v{c+2}",
                               f"v_mov_b32 v{c+1}, v{c}", "s_nop 1", f"v_permlane32_swap_b32 v{c}, v{c+1}", f"v_add_f32 v{c}, v{c}, v{c+1}"):
                        a("!" + tt if False else tt)
                    for tt in self.aug_split(c, c + 1, c + 2, SB + 16 + 4 * t):
                        a(tt)
                    a(f"ds_write_b128 v218, {vr(SB+16+4*t)} offset:{(3+t)*512}")
                a("s_waitcnt lgkmcnt(0)")
        self.wave_if("s_cmp_lt_u32 s14, 2", halo, pref)
        a(f"s_mul_i32 s37, s14, {17*1024}")
        a("s_add_u32 s38, s49, s37")
        a("s_barrier")
        self.ts()
        order = [8, 0, 1, 2, 3, 4, 5, 6, 7]
        S = Sched(budget=5)
        for n, i in enumerate(order):
            for s in range(2):
                S.post(2 * n + s - 6, f"ds_read_b128 {vr(KF+8*n+4*s)}, v168 offset:{i*4096+s*1024}")
        for n, i in enumerate(order):
            sb = SB + 16 * (n % 3)
            S.add_main(f"{MF} {vr(sb,16)}, {vr(KF+8*n)}, {vr(Q)}, 0")
            S.add_main(f"{MF} {vr(sb,16)}, {vr(KF+8*n+4)}, {vr(Q+4)}, {vr(sb,16)}")
            e = 2 * n + 3
            dl = 2 * (n + 3)
            if n == 0:
                continue
            if n == 1:
                sd = SB
                for k in range(16):
                    S.fill(f"v_cndmask_b32 v{sb+k}, v{sb+k}, v{sd+k}, s[{64+2*k}:{65+2*k}]", earliest=e, deadline=6)
                S.fill(f"v_max_f32 v216, v{sb}, v{sb+1}", earliest=e, deadline=dl)
                for k in range(1, 8):
                    S.fill(f"v_max3_f32 v216, v216, v{sb+2*k}, v{sb+2*k+1}", earliest=e, deadline=dl)
            else:
                for k in range(8):
                    S.fill(f"v_max3_f32 v216, v216, v{sb+2*k}, v{sb+2*k+1}", earliest=e, deadline=dl)
        if l == 0:
            for k in range(4):
                a(f"v_mov_b32 v{VB+k}, 0")
            for k, g in enumerate(self.zero_groups(VB, (("s21", 0, 2), ("s26", GX[1], 2), ("s28", 5120, 2), ("s26", GX[2], 2)), (GST[1], GST[2]))):
                S.post((3 * k) // 2, self.grp(g), cost=1.5)
        S.emit(a)
        a("v_mov_b32 v217, v216")
        a("v_permlane32_swap_b32 v216, v217")
        a("v_max_f32 v216, v216, v217")
        for k in range(16):
            a(f"v_sub_f32 v{NM+k}, 0, v216")
        self.ts(2)
        S = Sched(budget=10)
        nv = [0]
        def vread(i, s, gap):
            vb = VB + 4 * (nv[0] % 6); nv[0] += 1
            S.post(gap, f"ds_read_b128 {vr(vb)}, v168 offset:{i*4096+2048+s*1024}")
            return vb
        def smm(n):
            sb = SB + 16 * (n % 3)
            S.add_main(f"{MF} {vr(sb,16)}, {vr(KF+8*n)}, {vr(Q)}, {vr(NM,16)}")
            return S.add_main(f"{MF} {vr(sb,16)}, {vr(KF+8*n+4)}, {vr(Q+4)}, {vr(sb,16)}")
        first = [True]
        def pv(i, pb):
            for s in range(2):
                vb = vread(i, s, len(S.main) - 4)
                c = "0" if first[0] else vr(OA, 16)
                first[0] = False
                S.add_main(f"{MF} {vr(OA,16)}, {vr(vb)}, {vr(pb+4*s)}, {c}")
        def soft(n, e, dl):
            sb = SB + 16 * (n % 3)
            for k in range(8):
                S.fill(f"v_exp_f32 v{sb+2*k}, v{sb+2*k}", earliest=e, deadline=dl)
                S.fill(f"v_exp_f32 v{sb+2*k+1}, v{sb+2*k+1}", earliest=e, deadline=dl)
                if k >= 1:
                    S.fill(f"v_cvt_pk_bf16_f32 v{sb+k-1}, v{sb+2*k-2}, v{sb+2*k-1}", earliest=e, deadline=dl)
            S.fill(f"v_cvt_pk_bf16_f32 v{sb+7}, v{sb+14}, v{sb+15}", earliest=e, deadline=dl)
        smm(0); i1 = smm(1); i2 = smm(2)
        sb1 = SB + 16
        for k in range(16):
            S.fill(f"v_cndmask_b32 v{sb1+k}, v{sb1+k}, v{SB+k}, s[{64+2*k}:{65+2*k}]", earliest=i1 + 1, deadline=6)
        i3 = smm(3)
        soft(1, i1 + 1, 8)
        for k in range(8):
            S.fill(f"v_bfi_b32 v{sb1+8+k}, v{PM+k}, 0, v{sb1+k}", deadline=8)
            S.fill(f"v_and_b32 v{sb1+k}, v{PM+k}, v{sb1+k}", deadline=8)
        pv(8, sb1); pv(0, sb1 + 8)
        send = {2: i2, 3: i3}
        for n in range(2, 9):
            if n + 2 <= 8:
                send[n + 2] = smm(n + 2)
            soft(n, send[n] + 1, len(S.main))
            pv(order[n], SB + 16 * (n % 3))
        for k, g in enumerate(self.dma_groups("s38", 38 * 1024, "s37", (48 + 38) * 1024, 17, per=1, flags="sc1")):
            S.post(2 * k, self.grp(g), cost=1.5)
        if l == 0:
            for k, g in enumerate(self.priv_groups(wo_frag, "s58", "s59", 0, 8)):
                S.post(4 * k + 1, self.grp(g), cost=2)
        S.emit(a)
        a(f"v_mov_b32 v216, v{OA+12}")
        a(f"v_mov_b32 v217, v{OA+12}")
        a("v_permlane32_swap_b32 v216, v217")
        a("v_rcp_f32 v217, v217")
        for k in range(16):
            a(f"v_mul_f32 v{OA+k}, v217, v{OA+k}")
            if k in (7, 15):
                h = k // 8
                for kk in range(4):
                    a(f"v_cvt_pk_bf16_f32 v{OA+8*h+kk}, v{OA+8*h+2*kk}, v{OA+8*h+2*kk+1}")
                self.hstore(f"buffer_store_dwordx4 {vr(OA+8*h)}, v0, {SRD}, s21 offen offset:{h*1024}")(a)

    def ksplit_pre(self):
        a = self.a
        AC = 16
        for k in range(8):
            a(f"v_lshlrev_b32 v{AC+2*k}, 16, v{8+k}")
            a(f"v_and_b32 v{AC+2*k+1}, 0xffff0000, v{8+k}")
        for s in range(1, 4):
            a(f"s_xor_b32 s34, s14, {s}")
            a(f"s_mul_i32 s34, s34, 12288")
            a(f"s_add_u32 s34, s34, {(s-1)*4096}")
            a(f"v_add_u32 v{207+s}, s34, v0")
        a(f"s_mul_i32 s34, s14, 12288")
        a("v_add_u32 v211, s34, v0")
        for k in range(4):
            a(f"v_mov_b32 v{212+k}, 0")
        a("v_mov_b32 v216, 0x3f803f80")
        a("v_and_b32 v217, 0xf8, v7")

    def ksplit(self, n, sa0, sa1, wfrag, final, extra=None):
        a = self.a
        AC, AB, NBUF = 16, 80, 16
        loads = []
        for i in range(n):
            for s, sa in ((0, sa0), (1, sa1)):
                st = "s36" if s == 0 else "s37"
                g = []
                if i % 4 == 0:
                    g.append(f"s_add_u32 {st}, {sa}, {i*1024}")
                g.append(f"buffer_load_dwordx4 {vr(AB + 8*(i % NBUF) + 4*s)}, v0, {SRD}, {st} offen offset:{(i%4)*1024} sc1")
                loads.append((i, g))
        S = Sched(budget=5)
        for i in range(n):
            for sl in (1, 0, 2, 3) if i < n - 1 else (1, 2, 3, 0):
                aa, bb = sl >> 1, sl & 1
                ac = AC + 16 * sl
                c = vr(ac, 16) if (i > 0 or sl == 0) else "0"
                S.add_main(f"{MF} {vr(ac,16)}, {wfrag(i,bb)}, {vr(AB + 8*(i % NBUF) + 4*aa)}, {c}")
        for k, (i, g) in enumerate(loads):
            pos = -1 if k < KD else max(int(KP * (k - KD)), 4 * (i - NBUF) + 3)
            S.post(pos, self.grp(g), cost=1.5)
        if extra:
            for k, g in enumerate(extra):
                S.post(13 + k, self.grp(g), cost=1.5)
        if n == 28:
            for k in (0, 1, 28, 56, 84):
                S.pre(k, lambda aa: self.ts(3))
        S.emit(a)
        self.ts(2)
        for s in range(1, 4):
            for q in range(4):
                a(f"ds_write_b128 v{207+s}, {vr(AC+16*s+4*q)} offset:{q*1024}")
        a.drain(vm=False)
        a("s_barrier")
        for q in range(4):
            for s in range(3):
                a(f"ds_read_b128 {vr(AB+16*s+4*q)}, v211 offset:{s*4096+q*1024}")
        for h in range(2):
            for q in (2 * h, 2 * h + 1):
                for s in range(3):
                    for k in range(4 * q, 4 * q + 4):
                        a(f"v_add_f32 v{AC+k}, v{AC+k}, v{AB+16*s+k}")
            for k in range(4 * h, 4 * h + 4):
                a(f"v_cvt_pk_bf16_f32 v{8+k}, v{AC+2*k}, v{AC+2*k+1}")
            final(h)

    def store_x(self, xoff, stoff):
        a = self.a
        def fin(h):
            if h == 0:
                a(f"s_add_u32 s34, s26, {xoff}")
            self.hstore(f"buffer_store_dwordx4 {vr(8+4*h)}, v0, {SRD}, s34 offen offset:{h*1024}")(a)
            for k in range(4 * h, 4 * h + 4):
                o = 2 * (k & 1)
                a(f"v_dot2_f32_bf16 v{212+o}, v{8+k}, v216, v{212+o}")
                a(f"v_dot2_f32_bf16 v{213+o}, v{8+k}, v{8+k}, v{213+o}")
            if h == 1:
                a(f"s_add_u32 s35, s27, {stoff}")
                a("v_add_f32 v212, v212, v214")
                a("v_add_f32 v213, v213, v215")
                a("v_mov_b32 v214, v212")
                a("v_mov_b32 v215, v213")
                a("v_permlane32_swap_b32 v212, v214")
                a("v_permlane32_swap_b32 v213, v215")
                a("v_add_f32 v212, v212, v214")
                a("v_add_f32 v213, v213, v215")
                self.hstore(f"buffer_store_dwordx2 v[212:213], v217, {SRD}, s35 offen")(a)
        return fin

    def p3(self, l):
        a = self.a
        Le = self.label("p3end")
        a.drain()
        a("s_barrier")
        self.wave0_else(lambda: self.signal("s30", 0 * 4096, True), None)
        a("s_cmp_ge_u32 s13, 14")
        a(f"s_cbranch_scc1 {Le}")
        self.ksplit_pre()
        self.wave0_else(lambda: self.poll("s29", 0 * 4096, "0xffff"), None)
        a("s_barrier")
        self.ts()
        self.ksplit(8, "s22", "s23", wo_frag, self.store_x(GX[1], GST[1]))
        a.drain()
        a("s_barrier")
        self.wave0_else(lambda: self.signal("s30", 1 * 4096, True), None)
        a(f"{Le}:")

    def dma3(self, sbase, q0, n3, lds0):
        a = self.a
        a(f"s_mul_i32 s37, s50, {n3*1024}")
        a(f"s_add_u32 s38, {sbase}, s37")
        self.dma("s38", q0 * 1024, "s37", lds0 * 1024, n3, flags="sc1")

    def p4(self, l):
        a = self.a
        X, AC, WB, NB, AB = 16, 128, 192, 5, 212
        self.wave0_else(lambda: self.poll("s29", 1 * 4096, "0x3fff"), None)
        a.forget()
        a(f"s_mul_i32 s37, s14, {12*1024}")
        a("s_add_u32 s38, s49, s37")
        a("s_barrier")
        self.ts()
        S = Sched(budget=5)
        seq = []
        for ks in range(29):
            for t in range(3):
                seq.append((t, ks))
        for t in range(3, 7):
            for ks in range(29):
                seq.append((t, ks))
        aset = {0: 0, 1: 1, 2: 2, 3: 3, 4: 0, 5: 1, 6: 2}
        idx = {k: n for n, k in enumerate(seq)}
        first = {t: idx[(t, 0)] for t in range(7)}
        last = {t: idx[(t, 28)] for t in range(7)}
        for n, (t, ks) in enumerate(seq):
            wb = WB + 4 * (n % NB)
            if ks < 28:
                base, off = lds_blk(w13_blk(t * 28 + ks))
                S.post(n - NB, f"ds_read_b128 {vr(wb)}, {base} offset:{off}")
                xb = vr(X + 4 * ks)
            else:
                S.post(n - NB, f"ds_read_b128 {vr(wb)}, v4 offset:{(3+t)*512}")
                xb = vr(AB)
            ac = vr(AC + 16 * aset[t], 16)
            S.add_main(f"{MF} {ac}, {vr(wb)}, {xb}, {'0' if ks == 0 else ac}")
        T = AC + 48
        gaps = [2 * k for k in range(40)]
        gs = self.xstream(S, a, "s15", GX[1], "s32", GST[1], X, T, gaps)
        for t in self.stats_tree(T, 7) + self.stats_finish(T, AB):
            S.fill(t, earliest=gs + 20, deadline=idx[(0, 28)])
        S.fill("v_mul_f32 v217, s55, v217", deadline=idx[(0, 28)])
        g0 = gaps[35 - XD]
        for k, g in enumerate(self.dma_groups("s38", 106 * 1024, "s37", 0, 12, per=1, flags="sc1")):
            S.post(g0 + 2 * k, self.grp(g), cost=1.5)
        assert g0 + 24 < first[3]
        def epi(t, earliest, deadline):
            ac = AC + 16 * aset[t]
            f = lambda s, c=None: S.fill(s, earliest=earliest, deadline=deadline, cost=c)
            for i in range(8):
                f(f"v_mul_f32 v{ac+8+i}, v{ac+i}, v{ac+8+i}")
                f(f"v_mul_f32 v{ac+i}, v217, v{ac+i}")
            for i in range(8):
                f(f"v_exp_f32 v{ac+i}, v{ac+i}")
            for i in range(8):
                f(f"v_fma_f32 v{ac+i}, v{ac+i}, v219, v219")
            for i in range(8):
                f(f"v_rcp_f32 v{ac+i}, v{ac+i}")
            for i in range(8):
                f(f"v_mul_f32 v{ac+i}, v{ac+i}, v{ac+8+i}")
            for i in range(4):
                f(f"v_cvt_pk_bf16_f32 v{ac+i}, v{ac+2*i}, v{ac+2*i+1}")
            if t % 4 == 0:
                f(f"s_add_u32 s39, s28, {t*1024}")
            st_ = f"buffer_store_dwordx4 {vr(ac)}, v0, {SRD}, s39 offen offset:{(t%4)*1024}"
            if t >= 5:
                f(self.hstore(st_), 3)
            else:
                f(st_ + " sc1", 2)
        tokD = a.tok()
        nmid = first[3] + 12
        def midbar(aa):
            aa.drain(vm=True, lgkm=False)
            self.ts(2)
            aa("s_barrier")
            aa(f"s_mul_i32 s37, s14, {11*1024}")
            aa("s_add_u32 s38, s49, s37")
        assert nmid <= idx[(3, 22)] - NB
        S.pre(nmid, midbar)
        for k, g in enumerate(self.dma_groups("s38", 154 * 1024, "s37", 48 * 1024, 11, per=1, flags="sc1")):
            S.post(nmid + 2 * k, self.grp(g, tok=tokD), cost=1.5)
        def bar2(aa):
            self.ts(2)
            aa.wait_tok(tokD)
            aa("s_barrier")
            aa(f"s_mul_i32 s37, s14, {14*1024}")
            aa("s_add_u32 s38, s48, s37")
        nb2 = idx[(5, 14)] - NB
        S.pre(nb2, bar2)
        if l == 0:
            for k, g in enumerate(self.dma_groups("s38", 0, "s37", 98 * 1024, 14, per=1, flags="sc1")):
                S.post(nb2 + 1 + 3 * k, self.grp(g), cost=1.5)
            gs2 = self.priv_groups(w2_frag, "s60", "s61", 0, 28)
            for k, g in enumerate(gs2):
                p = nmid + 1 + 3 * k + (k // 2)
                if p > nb2 and (p - nb2 - 1) % 3 == 0:
                    p += 1
                S.post(p, self.grp(g), cost=2)
        epi(0, last[2] + 1, first[4])
        epi(1, last[2] + 1, first[5])
        epi(2, last[2] + 1, first[6])
        for t in range(3, 7):
            epi(t, last[t] + 2, None)
        S.pre(len(seq), lambda aa: self.ts(2))
        for k in (0, 1, 21, 42, 63):
            S.pre(k, lambda aa: self.ts(3))
        S.emit(a)

    def p5(self, l):
        a = self.a
        Le = self.label("p5end")
        a.drain()
        a("s_barrier")
        self.wave0_else(lambda: self.signal("s30", 2 * 4096, True),
                        (lambda: self.dma3("s48", 54, 10, 68)) if l == 0 else None)
        a("s_cmp_ge_u32 s13, 14")
        a(f"s_cbranch_scc1 {Le}")
        self.ksplit_pre()
        if l == 1:
            a("v_bfe_u32 v212, v7, 3, 5")
            a("v_mul_u32_u24 v212, 896, v212")
            a("v_bfe_u32 v213, v7, 8, 1")
            a("v_lshl_add_u32 v212, v213, 4, v212")
        self.wave0_else(lambda: self.poll("s29", 2 * 4096, "0xffff"), None)
        a("s_barrier")
        self.ts()
        if l == 0:
            self.ksplit(28, "s24", "s25", w2_frag, self.store_x(GX[2], GST[2]))
            a.drain()
            a("s_barrier")
            self.wave0_else(lambda: self.signal("s30", 3 * 4096, True), None)
        else:
            self.ksplit(28, "s24", "s25", w2_frag,
                        lambda h: a(f"buffer_store_dwordx4 {vr(8+4*h)}, v212, s[8:11], s57 offen offset:{32*h}"))
        a(f"{Le}:")

    def build(self):
        a = self.a
        self.nts = 28
        self.prologue()
        for l in range(2):
            self.nts = 0
            if l == 0:
                a.wait_tok(self.tokW[0])
            else:
                a.drain()
            a("s_barrier")
            self.ts()
            self.dts()
            ph = [self.p1, self.p2, self.p3, self.p4, self.p5]
            for k, p in enumerate(ph):
                p(l)
                self.ts()
                self.dts()
                if STOP == 5 * l + k + 1:
                    a("s_branch main_done")
            if l == 0:
                self.wave0_else(lambda: self.poll("s29", 3 * 4096, "0x3fff"), None)
                for s, d in (("s19", 0x40000), ("s20", 0x40000), ("s29", 4 * 4096), ("s30", 4 * 4096), ("s31", 0x8000), ("s62", 0x8000)):
                    a(f"s_add_u32 {s}, {s}, {d}")
                for s in ("s15", "s32", "s21", "s22", "s23", "s24", "s25", "s26", "s27", "s28"):
                    a(f"s_add_u32 {s}, {s}, s63")
                if TS:
                    a("s_add_u32 s51, s51, 256")
        a("main_done:")
        a("s_endpgm")
        txt, n = a.finish()
        return txt


def gen_main():
    return G().build()

MAIN_KD = dict(vgpr=512, sgpr=102, accum=256, grid=256, block=256, lds=LDS_BYTES)
```

```python
import re

REG_RE = re.compile(r'^(-|abs\()?([vas])(\d+)\)?$')
RNG_RE = re.compile(r'^(-)?([vas])\[(\d+):(\d+)\]$')

TRANS = ('v_exp_f32', 'v_log_f32', 'v_rcp_f32', 'v_rsq_f32', 'v_sqrt_f32', 'v_sin_f32', 'v_cos_f32')


def parse_operand(op):
    op = op.strip()
    m = REG_RE.match(op)
    if m:
        return [(m.group(2), int(m.group(3)))]
    m = RNG_RE.match(op)
    if m:
        return [(m.group(2), i) for i in range(int(m.group(3)), int(m.group(4)) + 1)]
    if op == 'vcc':
        return [('s', 106), ('s', 107)]
    if op == 'vcc_lo':
        return [('s', 106)]
    if op == 'vcc_hi':
        return [('s', 107)]
    if op == 'exec':
        return [('s', 126), ('s', 127)]
    if op == 'exec_lo':
        return [('s', 126)]
    if op == 'exec_hi':
        return [('s', 127)]
    if op == 'm0':
        return [('s', 124)]
    return []


class Ins:
    __slots__ = ('text', 'mn', 'ops', 'mods', 'reads', 'writes', 'kind', 'tok', 'counted', 'srcc', 'comment', 'ghost')

    def __init__(self, text, tok=None, counted=True):
        self.text = text
        self.tok = tok
        self.counted = counted
        self.srcc = []
        self.ghost = False
        t = text.split(';')[0].strip()
        if t.endswith(':') or t.startswith('.') or t.startswith('@'):
            self.mn = t
            self.kind = 'label' if t.endswith(':') else ('pseudo' if t.startswith('@') else 'dir')
            self.ops = []
            self.reads = []
            self.writes = []
            return
        parts = t.split(None, 1)
        self.mn = mn = parts[0]
        rest = parts[1] if len(parts) > 1 else ''
        ops = []
        cur = ''
        depth = 0
        for ch in rest:
            if ch == '[':
                depth += 1
            if ch == ']':
                depth -= 1
            if ch == ',' and depth == 0:
                ops.append(cur.strip())
                cur = ''
            else:
                cur += ch
        last = cur.strip()
        mods = ''
        if last:
            lp = last.split(None, 1)
            ops.append(lp[0])
            mods = lp[1] if len(lp) > 1 else ''
        self.ops = ops
        self.mods = mods
        R = [parse_operand(o) for o in ops]
        flat = lambda l: [x for y in l for x in y]
        reads, writes = [], []
        if mn.startswith('v_mfma'):
            self.kind = 'mfma'
            writes = R[0]
            reads = flat(R[1:])
            self.srcc = R[3]
        elif mn.startswith('buffer_load') or mn.startswith('global_load'):
            self.kind = 'vmem'
            if ' lds' in (' ' + mods) or mn.startswith('global_load_lds'):
                reads = flat(R) + [('s', 124)]
                self.kind = 'vmem_lds'
            else:
                writes = R[0]
                reads = flat(R[1:])
                if 'd16' in mn:
                    reads = reads + R[0]
        elif mn.startswith('buffer_store') or mn.startswith('global_store') or mn.startswith('global_atomic') or mn.startswith('buffer_atomic'):
            self.kind = 'vmem_st'
            reads = flat(R)
        elif mn.startswith('buffer_'):
            self.kind = 'vmem_st'
        elif mn.startswith('ds_read') or mn.startswith('ds_bpermute') or mn.startswith('ds_swizzle'):
            self.kind = 'ds'
            writes = R[0]
            reads = flat(R[1:])
        elif mn.startswith('ds_'):
            self.kind = 'ds_st'
            reads = flat(R)
        elif mn.startswith('s_load') or mn.startswith('s_memtime') or mn.startswith('s_memrealtime'):
            self.kind = 'smem'
            writes = R[0]
            reads = flat(R[1:])
        elif mn.startswith('s_'):
            self.kind = 'salu'
            if mn in ('s_waitcnt', 's_barrier', 's_nop', 's_endpgm', 's_branch', 's_sleep', 's_setprio') or mn.startswith('s_cbranch'):
                pass
            elif mn.startswith('s_cmp'):
                reads = flat(R)
            else:
                writes = R[0]
                reads = flat(R[1:])
                if 'saveexec' in mn:
                    writes = writes + [('s', 126), ('s', 127)]
        elif mn.startswith('v_'):
            self.kind = 'valu'
            if mn.startswith('v_cmp'):
                writes = R[0]
                reads = flat(R[1:])
            elif mn.startswith('v_permlane32_swap') or mn.startswith('v_permlane16_swap') or mn.startswith('v_swap'):
                writes = flat(R)
                reads = flat(R)
            elif mn in ('v_add_co_u32', 'v_sub_co_u32', 'v_addc_co_u32', 'v_mad_u64_u32'):
                writes = R[0] + R[1]
                reads = flat(R[2:])
            else:
                writes = R[0]
                reads = flat(R[1:])
                if mn.startswith('v_fmac') or mn.startswith('v_dot2c') or '_dpp' in mn:
                    reads = reads + R[0]
                if mn.startswith('v_cndmask') and len(ops) == 3:
                    reads = reads + [('s', 106), ('s', 107)]
        else:
            raise ValueError('unknown instr ' + text)
        self.reads = reads
        self.writes = writes


def mfma_passes(mn):
    if '32x32x16' in mn:
        return 8
    if '16x16x32' in mn:
        return 4
    raise ValueError(mn)


class Asm:
    def __init__(self):
        self.ins = []
        self.ntok = 0
        self.uncounted = False

    def __call__(self, text, tok=None):
        for line in text.split('\n'):
            line = line.strip()
            if not line:
                continue
            nowr = line.startswith('!')
            if nowr:
                line = line[1:]
            self.ins.append(Ins(line, tok=tok, counted=not self.uncounted))
            if nowr:
                self.ins[-1].writes = []

    def tok(self):
        self.ntok += 1
        return self.ntok

    def wait_tok(self, *toks):
        self.ins.append(Ins('@waittok ' + ' '.join(str(t) for t in toks)))

    def drain(self, vm=True, lgkm=True):
        self.ins.append(Ins('@drain %d %d' % (vm, lgkm)))

    def forget(self):
        self.ins.append(Ins('@forget'))

    def extend(self, ins):
        self.ins.extend(ins)

    def insert_waits(self):
        out = []
        vmq = []
        lgq = []

        def emit_wait(vm=None, lg=None):
            parts = []
            if vm is not None:
                parts.append('vmcnt(%d)' % min(vm, 63))
            if lg is not None:
                parts.append('lgkmcnt(%d)' % min(lg, 15))
            out.append(Ins('s_waitcnt ' + ' '.join(parts)))

        def vm_need(idx):
            n = sum(1 for e in vmq[idx + 1:] if e['counted'])
            return n

        for I in self.ins:
            if I.kind == 'pseudo':
                w = I.text.split()
                if w[0] == '@waittok':
                    toks = set(int(x) for x in w[1:])
                    idx = -1
                    for k, e in enumerate(vmq):
                        if e['tok'] in toks:
                            idx = k
                    if idx >= 0:
                        n = vm_need(idx)
                        assert n <= 63, 'vmcnt overflow in waittok'
                        emit_wait(vm=n)
                        del vmq[:idx + 1]
                elif w[0] == '@drain':
                    vm = 0 if int(w[1]) else None
                    lg = 0 if int(w[2]) else None
                    emit_wait(vm, lg)
                    if vm is not None:
                        vmq.clear()
                    if lg is not None:
                        lgq.clear()
                elif w[0] == '@forget':
                    vmq.clear()
                    lgq.clear()
                continue
            if I.kind in ('label', 'dir'):
                out.append(I)
                continue
            touched = set(I.reads) | set(I.writes)
            vi = -1
            for k, e in enumerate(vmq):
                if e['writes'] & touched:
                    vi = k
            li = -1
            for k, e in enumerate(lgq):
                if e['writes'] & touched:
                    li = k
            vm = lg = None
            if vi >= 0:
                vm = vm_need(vi)
                assert vm <= 63, 'vmcnt overflow at ' + I.text
                del vmq[:vi + 1]
            if li >= 0:
                if any(e['smem'] for e in lgq):
                    lg = 0
                    lgq.clear()
                else:
                    lg = len(lgq) - li - 1
                    if lg > 15:
                        lg = 15
                        del lgq[:len(lgq) - 15]
                    else:
                        del lgq[:li + 1]
            if vm is not None or lg is not None:
                emit_wait(vm, lg)
            if I.mn == 's_waitcnt':
                m = re.search(r'vmcnt\((\d+)\)', I.text)
                if m and int(m.group(1)) == 0 and I.counted:
                    vmq.clear()
                m = re.search(r'lgkmcnt\((\d+)\)', I.text)
                if m and int(m.group(1)) == 0 and I.counted:
                    lgq.clear()
            out.append(I)
            if I.ghost:
                pass
            elif I.kind in ('vmem', 'vmem_lds', 'vmem_st'):
                vmq.append(dict(writes=set(I.writes), tok=I.tok, counted=I.counted))
            elif I.kind in ('ds', 'ds_st'):
                assert I.counted or True
                lgq.append(dict(writes=set(I.writes), smem=False))
            elif I.kind == 'smem':
                lgq.append(dict(writes=set(I.writes), smem=True))
        self.ins = out

    def insert_hazard_nops(self):
        out = []
        pos = 0
        valu_w = {}
        trans_w = {}
        dot_w = {}
        mfma_w = {}
        mfma_c = {}
        st_data = {}
        salu_m0 = -100
        nops_inserted = 0
        br_pos = {}
        for I in self.ins:
            if I.kind in ('label', 'dir'):
                if I.kind == 'label':
                    name = I.mn[:-1]
                    if name in br_pos and br_pos[name] < pos:
                        pos = br_pos[name]
                        for d in (valu_w, trans_w, st_data):
                            for r in d:
                                d[r] = min(d[r], pos - 1)
                        for d in (dot_w, mfma_w, mfma_c):
                            for r in d:
                                d[r] = (min(d[r][0], pos - 1),) + tuple(d[r][1:])
                        salu_m0 = min(salu_m0, pos - 1)
                out.append(I)
                continue
            if I.mn == 's_branch' or I.mn.startswith('s_cbranch'):
                t = I.ops[0]
                br_pos[t] = min(br_pos.get(t, 1 << 60), pos + 1)
            need = 0

            def req(p, ws):
                nonlocal need
                need = max(need, p + 1 + ws)

            k = I.kind
            if k == 'mfma':
                P = mfma_passes(I.mn)
                dt = tuple(I.writes)
                ab = [r for o in I.ops[1:3] for r in parse_operand(o)]
                for r in I.reads:
                    if r in valu_w:
                        req(valu_w[r], 2)
                    if r in dot_w:
                        req(dot_w[r][0], 3)
                for r in ab:
                    if r in mfma_w:
                        p, pp, _ = mfma_w[r]
                        req(p, {4: 8, 8: 12}[pp])
                for r in I.srcc:
                    if r in mfma_w:
                        p, pp, d = mfma_w[r]
                        if d == tuple(I.srcc) and pp == P:
                            pass
                        else:
                            req(p, {4: 6, 8: 10}[pp])
                for r in I.writes:
                    if r in mfma_w and r not in I.srcc:
                        p, pp, d = mfma_w[r]
                        req(p, {4: 6, 8: 10}[pp])
                    if r in st_data:
                        req(st_data[r], 2)
            else:
                rw = set(I.reads) | set(I.writes)
                if k in ('valu', 'vmem', 'vmem_lds', 'vmem_st', 'ds', 'ds_st'):
                    for r in rw:
                        if r in mfma_w:
                            p, pp, _ = mfma_w[r]
                            req(p, {4: 8, 8: 12}[pp])
                if k == 'valu':
                    for r in I.writes:
                        if r in mfma_c:
                            p, pp = mfma_c[r]
                            req(p, {4: 3, 8: 7}[pp])
                        if r in st_data:
                            req(st_data[r], 2)
                    for r in I.reads:
                        if r in trans_w and I.mn not in TRANS:
                            req(trans_w[r], 1)
                        if r[0] == 's' and r in valu_w:
                            req(valu_w[r], 2)
                        if r in valu_w and r[0] != 's':
                            if I.mn.startswith('v_readfirstlane') or I.mn.startswith('v_readlane'):
                                req(valu_w[r], 1)
                            if 'permlane' in I.mn or '_dpp' in I.mn:
                                req(valu_w[r], 2)
                    for r in rw:
                        if r in dot_w:
                            p, mn = dot_w[r]
                            same_c = (mn == I.mn) and (r in I.writes) and not any(r in parse_operand(o) for o in I.ops[1:3])
                            if not same_c:
                                req(p, 3)
                if k in ('vmem', 'ds'):
                    for r in I.writes:
                        if r in st_data:
                            req(st_data[r], 1)
                        if r in mfma_c:
                            p, pp = mfma_c[r]
                            req(p, {4: 3, 8: 7}[pp])
                if k in ('vmem', 'vmem_lds', 'vmem_st'):
                    for r in I.reads:
                        if r[0] == 's' and r in valu_w:
                            req(valu_w[r], 5)
                if k in ('vmem', 'vmem_lds', 'vmem_st', 'ds', 'ds_st'):
                    for r in I.reads:
                        if r in dot_w:
                            req(dot_w[r][0], 3)
                        if r in trans_w:
                            req(trans_w[r], 1)
                if k == 'vmem_lds':
                    req(salu_m0, 1)
                if k == 'salu':
                    for r in I.reads:
                        if r in valu_w and r[0] == 's':
                            req(valu_w[r], 1)
            if need > pos:
                n = need - pos
                nops_inserted += n
                while n > 0:
                    c = min(n, 16)
                    out.append(Ins('s_nop %d' % (c - 1)))
                    pos += c
                    n -= c
            for r in I.writes:
                for d in (valu_w, trans_w, dot_w, mfma_w):
                    d.pop(r, None)
            if k == 'valu':
                for r in I.writes:
                    valu_w[r] = pos
                    if I.mn in TRANS:
                        trans_w[r] = pos
                    if I.mn.startswith('v_dot2'):
                        dot_w[r] = (pos, I.mn)
            elif k == 'mfma':
                P = mfma_passes(I.mn)
                for r in I.writes:
                    mfma_w[r] = (pos, P, tuple(I.writes))
                for r in I.srcc:
                    mfma_c[r] = (pos, P)
            elif k in ('vmem_st', 'ds_st') and ('x4' in I.mn or 'x3' in I.mn or 'b128' in I.mn or 'b96' in I.mn):
                for r in I.reads:
                    if r[0] != 's':
                        st_data[r] = pos
            if k == 'salu' and ('s', 124) in I.writes:
                salu_m0 = pos
            out.append(I)
            if I.mn == 's_nop':
                pos += int(I.ops[0]) + 1
            else:
                pos += 1
        self.ins = out
        return nops_inserted

    def finish(self):
        self.insert_waits()
        n = self.insert_hazard_nops()
        return '\n'.join(('' if i.kind == 'label' else '    ') + i.text for i in self.ins), n


def interleave(main, fill, start=0, per=None):
    out = []
    n = len(main) - start
    if n <= 0:
        return list(main) + list(fill)
    done = 0
    for i, m in enumerate(main):
        out.append(m)
        if i >= start:
            if per is None:
                tgt = (len(fill) * (i - start + 1) + n - 1) // n
            else:
                tgt = min(len(fill), done + per)
            while done < tgt:
                out.append(fill[done])
                done += 1
    out.extend(fill[done:])
    return out


class Sched:
    def __init__(self, budget=5.0):
        self.main = []
        self.posts = {}
        self.pres = {}
        self.fifo = []
        self.budget = budget

    def add_main(self, text, tok=None):
        self.main.append((text, tok))
        return len(self.main) - 1

    def post(self, i, text, tok=None, cost=1.0):
        self.posts.setdefault(max(i, -1), []).append((text, tok, cost))

    def pre(self, i, text, tok=None):
        self.pres.setdefault(i, []).append((text, tok))

    def fill(self, text, earliest=0, deadline=None, cost=None, tok=None):
        if cost is None:
            if callable(text):
                cost = 1.0
            else:
                mn = text.split()[0]
                cost = 2.0 if mn in TRANS else (0.25 if mn.startswith('s_') else 1.0)
        self.fifo.append((text, earliest, deadline, cost, tok))

    def emit(self, a):
        fi = 0
        n = len(self.main)
        for (t, tok, c) in self.posts.get(-1, []):
            self._put(a, t, tok)
        for i in range(n + 1):
            last = -1
            for k in range(fi, len(self.fifo)):
                d = self.fifo[k][2]
                if d is not None and d <= i:
                    last = k
            while fi <= last:
                self._put(a, self.fifo[fi][0], self.fifo[fi][4])
                fi += 1
            for (t, tok) in self.pres.get(i, []):
                self._put(a, t, tok)
            if i == n:
                break
            self._put(a, self.main[i][0], self.main[i][1])
            used = 0.0
            for (t, tok, c) in self.posts.get(i, []):
                self._put(a, t, tok)
                used += c
            while fi < len(self.fifo) and self.fifo[fi][1] <= i and used + self.fifo[fi][3] <= self.budget + 1e-9:
                self._put(a, self.fifo[fi][0], self.fifo[fi][4])
                used += self.fifo[fi][3]
                fi += 1
        for k in sorted(self.posts):
            if k >= n:
                for (t, tok, c) in self.posts[k]:
                    self._put(a, t, tok)
        while fi < len(self.fifo):
            self._put(a, self.fifo[fi][0], self.fifo[fi][4])
            fi += 1

    def _put(self, a, text, tok):
        if callable(text):
            text(a)
        else:
            a(text, tok=tok)
```

```python
import math, struct, os
from asmlib import *
from layout import *

STOP = int(os.environ.get("STOP", "99"))
TS = int(os.environ.get("TS", "0"))
NOFAST = int(os.environ.get("NOFAST", "0"))

DTS = int(os.environ.get("DTS", "0"))
X0N = int(os.environ.get("X0N", "8"))
CPF = int(os.environ.get("CPF", "1"))
KTL = int(os.environ.get("KTL", "1"))
W2A = int(os.environ.get("W2A", "4"))
W2B = int(os.environ.get("W2B", "16"))
NTW = " nt" if int(os.environ.get("NTW", "0")) else ""
NTA = " nt" if int(os.environ.get("NTA", "0")) else ""
EXP = int(os.environ.get("EXP", "0"))
UST = int(os.environ.get("UST", "12"))
G4 = float(os.environ.get("G4", "2"))
G1 = float(os.environ.get("G1", "1.5"))
XD = int(os.environ.get("XD", "8"))
SPOS = int(os.environ.get("SPOS", "16"))
KD = int(os.environ.get("KD", "10"))
KP = float(os.environ.get("KP", "2"))
KNAME = "interleave_layers__sliding_block__glu_gated_swiglu__prompt_kernel"
def f32(x):
    return "0x%08x" % struct.unpack("<I", struct.pack("<f", x))[0]

MISC = 154 * 1024
L_AUG = MISC
L_ST = MISC + 5120
LDS_BYTES = 160 * 1024
WQ_BLK = {0: 98, 1: 126, 2: 70}

def w13_blk(q):
    return 48 + q if q < 106 else (q - 106 if q < 154 else 48 + q - 154)

SRD = "s[4:7]"
MF = "v_mfma_f32_32x32x16_bf16"

def vr(b, n=4):
    return f"v[{b}:{b+n-1}]"

def ar(b, n=4):
    return f"a[{b}:{b+n-1}]"

def lds_blk(b):
    return f"v{b // 64}", (b % 64) * 1024

def w2_frag(i, b):
    return ar((2 * i + b) * 4)

def wo_frag(i, b):
    k = 2 * i + b
    return ar(224 + 4 * k) if k < 8 else vr(224 + 4 * (k - 8))

class G:
    def __init__(self):
        self.a = Asm()
        self.nl = 0
        self.nts = 0
        self.ndts = 0

    def label(self, base):
        self.nl += 1
        return f"L{base}_{self.nl}"

    def ts(self, lvl=1):
        if TS < lvl:
            return
        a = self.a
        k = self.nts
        self.nts += 1
        unc = a.uncounted
        a("s_memrealtime s[42:43]")
        a("s_memtime s[44:45]")
        a("s_waitcnt lgkmcnt(0)")
        a.uncounted = True
        a("v_mov_b32 v222, s42")
        a("v_mov_b32 v223, s44")
        a(f"s_add_u32 s42, s51, {k*8}")
        a("s_mov_b64 exec, 1")
        a(f"buffer_store_dwordx2 v[222:223], v0, {SRD}, s42 offen")
        a("s_mov_b64 exec, -1")
        a.uncounted = unc

    def dts(self):
        if not DTS:
            return
        a = self.a
        k = self.ndts
        self.ndts += 1
        L = self.label("dts")
        unc = a.uncounted
        a("s_cmp_eq_u32 s51, 0")
        a(f"s_cbranch_scc0 {L}")
        a.uncounted = True
        a("s_memrealtime s[42:43]")
        a("s_waitcnt lgkmcnt(0)")
        a("v_mov_b32 v222, s42")
        a("s_mov_b64 exec, 1")
        a(f"global_store_dword v0, v222, s[44:45] offset:{8+4*k}")
        a("s_mov_b64 exec, -1")
        a.uncounted = unc
        a(f"{L}:")
        a("s_waitcnt lgkmcnt(0)")

    def dma_groups(self, sg, goff, slds, loff, n, flags="", per=4):
        out = []
        for i0 in range(0, n, per):
            g = [f"s_add_u32 s34, {sg}, {goff + i0*1024}", f"s_add_u32 m0, {slds}, {loff + i0*1024}"]
            for i in range(i0, min(n, i0 + per)):
                g.append(f"buffer_load_dwordx4 v0, {SRD}, s34 offen offset:{(i-i0)*1024} {flags} lds")
            out.append(g)
        return out

    def dma(self, sg, goff, slds, loff, n, tok=None, flags=""):
        for g in self.dma_groups(sg, goff, slds, loff, n, flags):
            for t in g:
                self.a(t, tok=tok)

    def grp(self, texts, tok=None):
        def f(a):
            for t in texts:
                a(t, tok=tok)
        return f

    def hstore(self, text):
        def f(a):
            if not NOFAST:
                a(text.replace(SRD, "s[96:99]"))
            a(text.replace(SRD, "s[0:3]") + " sc1")
        return f

    def signal(self, soff_sgpr, const, fast):
        a = self.a
        a(f"s_add_u32 s34, {soff_sgpr}, {const}")
        a("v_mov_b32 v220, s100")
        a("v_mov_b32 v221, s101")
        a("s_mov_b64 exec, 1")
        t = f"buffer_store_dwordx2 v[220:221], v0, {SRD}, s34 offen"
        if fast:
            self.hstore(t)(a)
        else:
            a(t + " sc1")
        a("s_mov_b64 exec, -1")

    def poll(self, soff_sgpr, const, mask, vaddr="v7", hi=None):
        a = self.a
        L = self.label("poll")
        a(f"s_add_u32 s34, {soff_sgpr}, {const}")
        a(f"s_mov_b32 exec_lo, {mask}")
        a(f"s_mov_b32 exec_hi, {hi if hi else 0}")
        a(f"{L}:")
        a(f"buffer_load_dwordx2 v[220:221], {vaddr}, {SRD}, s34 offen sc1")
        a("s_waitcnt vmcnt(0)")
        a("v_cmp_eq_u64 vcc, s[100:101], v[220:221]")
        a("s_sub_u32 s33, s33, 1")
        a("s_cmp_eq_u32 s33, 0")
        a(f"s_cbranch_scc1 main_done")
        a(f"s_cmp_eq_u64 vcc, exec")
        a(f"s_cbranch_scc0 {L}")
        a("s_mov_b64 exec, -1")

    def xcc_poll(self):
        a = self.a
        L = self.label("xcc")
        a(f"s_add_u32 s34, s29, {XCCT}")
        a("s_mov_b64 exec, 0xffff")
        a(f"{L}:")
        a(f"buffer_load_dwordx2 v[220:221], v7, {SRD}, s34 offen sc1")
        a("s_waitcnt vmcnt(0)")
        a("v_subrev_u32 v218, s101, v221")
        a("v_cmp_eq_u32 s[36:37], s100, v220")
        a("v_cmp_gt_u32 vcc, 16, v218")
        a("s_sub_u32 s33, s33, 1")
        a("s_cmp_eq_u32 s33, 0")
        a("s_cbranch_scc1 main_done")
        a("s_and_b32 s36, s36, vcc_lo")
        a("s_cmp_eq_u32 s36, 0xffff")
        a(f"s_cbranch_scc0 {L}")

    def wave_if(self, cmp, f0, f1):
        a = self.a
        Lo = self.label("oth"); Lj = self.label("join")
        a(cmp)
        a(f"s_cbranch_scc0 {Lo}")
        a.uncounted = True
        f0()
        if f1:
            a(f"s_branch {Lj}")
        a(f"{Lo}:")
        if f1:
            f1()
        a.uncounted = False
        if f1:
            a(f"{Lj}:")

    def wave0_else(self, f0, f1):
        self.wave_if("s_cmp_eq_u32 s14, 0", f0, f1)

    def stats_tree(self, T, n):
        o = []
        idx = list(range(n))
        while len(idx) > 1:
            nxt = []
            for k in range(0, len(idx) - 1, 2):
                x, y = idx[k], idx[k + 1]
                o.append(f"v_add_f32 v{T+2*x}, v{T+2*x}, v{T+2*y}")
                o.append(f"v_add_f32 v{T+2*x+1}, v{T+2*x+1}, v{T+2*y+1}")
                nxt.append(x)
            if len(idx) % 2:
                nxt.append(idx[-1])
            idx = nxt
        return o

    def stats_finish(self, T, AB):
        return [f"v_mov_b32 v{T+2}, v{T}", f"v_mov_b32 v{T+3}, v{T+1}",
              f"v_permlane32_swap_b32 v{T}, v{T+2}", f"v_permlane32_swap_b32 v{T+1}, v{T+3}",
              f"v_add_f32 v{T}, v{T}, v{T+2}", f"v_add_f32 v{T+1}, v{T+1}, v{T+3}",
              f"v_mul_f32 v216, s52, v{T}", f"v_mul_f32 v219, s52, v{T+1}",
              "v_fma_f32 v219, -v216, v216, v219", "v_max_f32 v219, 0, v219", "v_add_f32 v219, s53, v219",
              "v_rsq_f32 v217, v219",
              f"v_cndmask_b32 v{T}, -v216, 0, s[40:41]",
              f"v_cvt_pk_bf16_f32 v{T+1}, v{T}, v{T}",
              f"v_and_b32 v{T+1}, 0xffff0000, v{T+1}",
              f"v_sub_f32 v{T+1}, v{T}, v{T+1}",
              f"v_cvt_pk_bf16_f32 v{AB}, v{T}, v{T+1}",
              f"v_and_b32 v{T+2}, 0xffff0000, v{AB}",
              f"v_sub_f32 v{T+2}, v{T+1}, v{T+2}",
              f"v_cvt_pk_bf16_f32 v{AB+1}, v{T}, v{T+2}",
              f"v_mov_b32 v{AB+2}, v{AB}", f"v_mov_b32 v{AB+3}, 0"]

    def xload(self, sx, const, X, ks):
        o = []
        if ks % 4 == 0:
            o.append(f"s_add_u32 s36, {sx}, {const + ks*1024}")
        o.append(f"buffer_load_dwordx4 {vr(X+4*ks)}, v0, {SRD}, s36 offen offset:{(ks%4)*1024} sc1")
        return o

    def priv_groups(self, frag, sb0, sb1, i0, i1):
        out = []
        for b, sb in ((0, sb0), (1, sb1)):
            for i in range(i0, i1, 2):
                out.append([f"s_add_u32 s34, {sb}, {i*1024}",
                            f"buffer_load_dwordx4 {frag(i,b)}, v0, {SRD}, s34 offen sc1{NTW}",
                            f"buffer_load_dwordx4 {frag(i+1,b)}, v0, {SRD}, s34 offen offset:1024 sc1{NTW}"])
        return out

    def touch(self, sbase, const, nlines, dst):
        mask = (1 << nlines) - 1
        o = [f"s_add_u32 s34, {sbase}, {const}", "v_lshlrev_b32 v218, 3, v0"]
        if nlines <= 32:
            o.append(f"s_mov_b64 exec, {hex(mask)}")
        else:
            o += [f"s_mov_b32 exec_lo, -1", f"s_mov_b32 exec_hi, {hex(mask >> 32)}"]
        o += [f"!buffer_load_dword v{dst}, v218, s[96:99], s34 offen sc1", "s_mov_b64 exec, -1"]
        return o

    def zero_groups(self, Z, big, small):
        zs = []
        for sb_, c_, n_ in big:
            for i in range(n_):
                zs.append([f"s_add_u32 s35, {sb_}, {c_ + i*1024}", f"buffer_store_dwordx4 {vr(Z)}, v0, s[96:99], s35 offen sc1"])
        for c_ in small:
            zs.append(["v_and_b32 v218, 0xf8, v7", f"s_add_u32 s35, s27, {c_}", f"buffer_store_dwordx2 {vr(Z, 2)}, v218, s[96:99], s35 offen sc1"])
        return zs

    def aug_split(self, c, t1, t2, D):
        return [f"v_cvt_pk_bf16_f32 v{D}, v{c}, v{c}", f"v_and_b32 v{t1}, 0xffff0000, v{D}", f"v_sub_f32 v{t1}, v{c}, v{t1}",
                f"v_cvt_pk_bf16_f32 v{D+1}, v{t1}, v{c}", f"v_lshlrev_b32 v{t2}, 16, v{D+1}", f"v_sub_f32 v{t2}, v{t1}, v{t2}",
                f"v_cvt_pk_bf16_f32 v{D+2}, v{t2}, v{t1}", f"v_mov_b32 v{D+3}, 0"]

    def prologue(self):
        a = self.a
        X = 16
        a(f"{KNAME}:")
        a("s_load_dwordx16 s[64:79], s[0:1], 0")
        a("s_load_dwordx4 s[80:83], s[0:1], 64")
        a("s_cmp_ge_u32 s2, 256")
        a("s_cbranch_scc1 main_done")
        a("v_lshrrev_b32 v1, 6, v0")
        a("v_and_b32 v7, 63, v0")
        a("v_readfirstlane_b32 s14, v1")
        a("s_and_b32 s12, s2, 7"); a("s_lshl_b32 s12, s12, 1"); a("s_bfe_u32 s34, s2, 0x10003"); a("s_add_u32 s12, s12, s34")
        a("s_lshr_b32 s13, s2, 4")
        a("s_mul_i32 s16, s13, 5"); a("s_add_u32 s16, s16, s12"); a("s_and_b32 s16, s16, 15")
        if CPF:
            Lp = self.label("cpf")
            a("s_getpc_b64 s[34:35]")
            a("Lpc_base:")
            a("s_cmp_eq_u32 s14, 3"); a(f"s_cbranch_scc0 {Lp}")
            a("s_lshr_b32 s36, s2, 3"); a("s_lshl_b32 s36, s36, 11")
            a("v_lshl_add_u32 v196, v7, 7, s36")
            a("s_mov_b32 s36, main_done - Lpc_base")
            a("v_min_u32 v196, s36, v196")
            a.uncounted = True
            a("s_mov_b64 exec, 0xffff")
            a("!global_load_dword v223, v196, s[34:35]")
            a("s_mov_b64 exec, -1")
            a.uncounted = False
            a(f"{Lp}:")
        a("v_lshrrev_b32 v196, 2, v7")
        a("v_and_b32 v197, 3, v7")
        a("v_lshlrev_b32 v0, 4, v7")
        a("v_and_b32 v206, 31, v7"); a("v_lshrrev_b32 v207, 5, v7")
        a("s_lshr_b32 s34, s16, 2"); a("s_and_b32 s35, s16, 3")
        a("s_add_u32 s36, s34, 1"); a("s_cmp_ge_u32 s36, 3"); a("s_cselect_b32 s36, 0, s36")
        a("s_mul_i32 s36, s36, 896"); a("s_mul_i32 s37, s13, 56"); a("s_add_u32 s36, s36, s37")
        a("s_mul_i32 s37, s35, 7"); a("s_lshl_b32 s38, s14, 1"); a("s_add_u32 s38, s38, s37")
        a(f"s_mul_i32 s39, s38, {16*2688}"); a("s_add_u32 s36, s36, s39")
        a(f"s_add_u32 s39, s36, {16*2688}")
        a("s_cmp_eq_u32 s14, 3"); a("s_cselect_b32 s39, 0x40000000, s39")
        a("s_mul_i32 s40, s13, 3"); a("s_add_u32 s40, s40, s34")
        a("s_mul_i32 s41, s40, 28"); a("s_add_u32 s41, s41, s37"); a("s_lshl_b32 s41, s41, 10"); a(f"s_add_u32 s41, s41, {WQKV}")
        a("s_lshl_b32 s42, s40, 4"); a("s_lshl_b32 s43, s35, 2"); a("s_add_u32 s42, s42, s43"); a("s_add_u32 s42, s42, s14")
        a("s_lshl_b32 s42, s42, 8"); a(f"s_add_u32 s42, s42, {CSP}")
        a("s_cmp_lt_u32 s16, 12"); a("s_cselect_b32 s43, -1, 0")
        a("v_mul_u32_u24 v198, 2688, v196"); a("v_lshl_add_u32 v198, v197, 4, v198")
        a("s_lshl_b32 s44, s14, 11"); a(f"s_add_u32 s44, s44, {32*1024}")
        a("v_lshrrev_b32 v199, 3, v7"); a("v_and_b32 v200, 7, v7")
        a("v_lshrrev_b32 v201, 1, v199"); a("v_xor_b32 v200, v200, v201"); a("v_lshlrev_b32 v200, 4, v200")
        a("v_mul_u32_u24 v201, 896, v199")
        a("v_xor_b32 v202, 64, v200")
        a("v_add_u32 v200, v200, v201"); a("v_add_u32 v202, v202, v201")
        a("s_lshl_b32 s48, s12, 2"); a("s_add_u32 s48, s48, s14"); a(f"s_mul_i32 s48, s48, {32*896}")
        a(f"s_mul_i32 s46, s14, {28*1024}"); a(f"s_add_u32 s46, s46, {40*1024}")
        a("s_lshr_b32 s47, s13, 1"); a("s_min_u32 s47, s47, 6")
        a("s_waitcnt lgkmcnt(0)")
        if TS:
            a("s_memrealtime s[52:53]"); a("s_waitcnt lgkmcnt(0)")
        a("s_mov_b64 s[84:85], s[66:67]"); a(f"s_and_b32 s86, s43, {448*1344*2}"); a("s_mov_b32 s87, 0x20000")
        a("s_mov_b32 s8, s64"); a("s_mov_b32 s9, s65"); a(f"s_mov_b32 s10, {2048*896}"); a("s_mov_b32 s11, 0x20000")
        tokA = a.tok(); tokX0 = a.tok()
        a("s_mov_b32 m0, s44")
        a("buffer_load_dwordx4 v198, s[84:87], s36 offen lds", tok=tokA)
        a("s_add_u32 m0, s44, 1024")
        a("buffer_load_dwordx4 v198, s[84:87], s39 offen lds", tok=tokA)
        a("s_mov_b32 s64, s47")
        def xdma(n0, n1, tok=None):
            for n in range(n0, n1):
                rq = n & 3
                if rq == 0:
                    a("s_lshl_b32 s65, s64, 12"); a("s_add_u32 s65, s65, s46")
                    a("s_lshl_b32 s66, s64, 7"); a("s_add_u32 s66, s66, s48")
                    a("s_add_u32 s64, s64, 1"); a("s_cmp_eq_u32 s64, 7"); a("s_cselect_b32 s64, 0, s64")
                a(f"s_add_u32 m0, s65, {rq*1024}")
                a(f"s_add_u32 s67, s66, {rq*8*896}")
                a(f"buffer_load_dwordx4 {'v200' if rq % 2 == 0 else 'v202'}, s[8:11], s67 offen lds", tok=tok)
        xdma(0, 4, tokX0)
        Ln = self.label("nonce")
        a("s_cmp_eq_u32 s2, 0"); a(f"s_cbranch_scc0 {Ln}")
        a("s_cmp_eq_u32 s14, 0"); a(f"s_cbranch_scc0 {Ln}")
        a.uncounted = True
        a("s_memrealtime s[34:35]")
        a("s_waitcnt lgkmcnt(0)")
        a("s_or_b32 s34, s34, 1")
        a("v_mov_b32 v210, s34"); a("v_mov_b32 v211, s35")
        a("s_mov_b64 exec, 1")
        a("global_store_dwordx2 v0, v[210:211], s[80:81] sc1")
        a("s_mov_b64 exec, -1")
        a.uncounted = False
        a(f"{Ln}:")
        xdma(4, X0N)
        a("s_mov_b32 s4, s82"); a("s_mov_b32 s5, s83"); a("s_mov_b32 s6, 0x10000000"); a("s_mov_b32 s7, 0x20000")
        a("s_add_u32 s92, s82, s41"); a("s_addc_u32 s93, s83, 0"); a("s_and_b32 s94, s43, 7168"); a("s_mov_b32 s95, 0x20000")
        a("s_mov_b32 s96, s82"); a("s_mov_b32 s97, s83"); a("s_and_b32 s98, s43, 0x10000000"); a("s_mov_b32 s99, 0x20000")
        if TS:
            a("s_lshl_b32 s51, s2, 2"); a("s_add_u32 s51, s51, s14"); a("s_lshl_b32 s51, s51, 9"); a(f"s_add_u32 s51, s51, {DBG}")
            a.uncounted = True
            a("s_mov_b64 exec, 1")
            a("v_mov_b32 v222, s52"); a(f"s_add_u32 s34, s51, {24*8}")
            a(f"buffer_store_dword v222, v0, {SRD}, s34 offen")
            a("s_mov_b64 exec, -1")
            a.uncounted = False
        a("v_lshlrev_b32 v7, 3, v7")
        a("v_bfe_u32 v205, v7, 5, 2")
        a("v_lshl_add_u32 v205, v207, 3, v205"); a("v_lshlrev_b32 v205, 6, v205")
        a("v_bfe_u32 v203, v7, 7, 1"); a("v_lshl_add_u32 v205, v203, 5, v205")
        a("v_bfe_u32 v203, v7, 3, 1"); a("v_lshl_add_u32 v205, v203, 4, v205")
        a("v_bfe_u32 v203, v7, 4, 1"); a("v_lshl_add_u32 v205, v203, 3, v205")
        a("v_add_u32 v203, s44, v205")
        a("v_cmp_gt_u32 vcc, 28, v206")
        a("v_cndmask_b32 v201, 0, -1, vcc")
        a("v_mov_b32 v209, 0x3f803f80")
        a("s_lshl_b32 s34, s14, 11"); a("v_add_u32 v199, s34, v0")
        a("v_lshrrev_b32 v198, 1, v7")
        a("v_bfe_u32 v204, v206, 1, 3"); a("v_xor_b32 v204, v204, v207"); a("v_lshlrev_b32 v204, 4, v204")
        a("v_lshl_add_u32 v204, v206, 7, v204"); a("v_add_u32 v204, s46, v204")
        a("s_and_b32 s34, s13, 1"); a("s_lshl_b32 s34, s34, 6"); a("v_xor_b32 v208, s34, v204")
        a("s_lshl_b32 s34, s47, 12"); a("v_add_u32 v208, s34, v208"); a("v_xor_b32 v197, 32, v208")
        for e in range(8):
            a(f"v_mov_b32 v{188+e}, 0")
        a.wait_tok(tokA)
        for b in range(2):
            for m in range(2):
                a(f"ds_read_b64_tr_b16 {vr(128+4*b+2*m, 2)}, v203 offset:{b*1024 + m*256}")
        for b in range(2):
            for k in range(4):
                a(f"v_and_b32 v{128+4*b+k}, v201, v{128+4*b+k}")
            a(f"buffer_store_dwordx4 {vr(128+4*b)}, v199, s[92:95], 0 offen offset:{b*1024} sc1")
        for b in range(2):
            for k in range(4):
                a(f"v_dot2_f32_bf16 v{188+k}, v{128+4*b+k}, v209, v{188+k}")
        a("v_add_f32 v188, v188, v189"); a("v_add_f32 v190, v190, v191"); a("v_add_f32 v188, v188, v190")
        a("buffer_store_dword v188, v198, s[96:99], s42 offen sc1")
        a("s_lshl_b32 s15, s12, 20"); a(f"s_add_u32 s15, s15, {GRP0}")
        a("s_mul_i32 s34, s14, 14"); a("s_add_u32 s34, s34, s13"); a("s_lshl_b32 s34, s34, 8"); a("s_add_u32 s34, s34, s15"); a(f"s_add_u32 s34, s34, {GST[0]}")
        a("s_cmp_lt_u32 s13, 14"); a("s_cselect_b32 s34, s34, 0x40000000")
        a.wait_tok(tokX0)
        a("ds_read_b128 v[136:139], v208")
        a("ds_read_b128 v[140:143], v197")
        for k in range(8):
            o = 192 + 2 * (k & 1)
            a(f"v_dot2_f32_bf16 v{o}, v{136+k}, v209, v{o}")
            a(f"v_dot2_f32_bf16 v{o+1}, v{136+k}, v{136+k}, v{o+1}")
        a("v_add_f32 v192, v192, v194"); a("v_add_f32 v193, v193, v195")
        a("v_mov_b32 v194, v192"); a("v_mov_b32 v195, v193")
        a("v_and_b32 v197, 0xf8, v7")
        a("v_permlane32_swap_b32 v192, v194"); a("v_permlane32_swap_b32 v193, v195")
        a("v_add_f32 v192, v192, v194"); a("v_add_f32 v193, v193, v195")
        a(f"buffer_store_dwordx2 v[192:193], v197, {SRD}, s34 offen sc1")
        self.ts(2)
        Lt = self.label("tag"); Lok = self.label("tagok")
        a("v_mov_b32 v203, 0")
        a("global_load_dwordx2 v[210:211], v203, s[80:81] sc1")
        xdma(X0N, 28)
        Lw2, Lwo, Lu = (self.label(x) for x in ("uw2", "uwo", "uend"))
        a("s_sub_u32 s3, 15, s16"); a("s_lshl_b32 s3, s3, 4"); a("s_add_u32 s3, s3, s13")
        a("s_and_b32 s40, s14, 1"); a("s_lshr_b32 s41, s14, 1")
        a("s_mov_b32 s39, 0"); a("s_mov_b32 s70, 0x40000000"); a("s_mov_b32 s94, 7168"); a("s_mov_b32 s38, 32")
        a(f"s_mul_i32 s67, s14, {7*1024}"); a(f"s_mov_b32 s71, {152*1024}")
        a("s_cmp_ge_u32 s3, 168"); a(f"s_cbranch_scc1 {Lwo}")
        a("s_cmp_ge_u32 s3, 112"); a(f"s_cbranch_scc1 {Lw2}")
        a("s_lshr_b32 s34, s3, 2"); a("s_and_b32 s35, s3, 3")
        a("s_mov_b32 s36, 3584")
        a("s_lshl_b32 s37, s35, 1"); a("s_add_u32 s37, s37, s40"); a(f"s_mul_i32 s37, s37, {56*3584}"); a("s_lshl_b32 s64, s34, 7"); a("s_add_u32 s37, s37, s64")
        a("s_cmp_eq_u32 s41, 0"); a("s_cselect_b32 s84, s72, s74"); a("s_cselect_b32 s85, s73, s75"); a(f"s_mov_b32 s86, {448*1792*2}")
        a("s_lshl_b32 s64, s34, 2"); a("s_add_u32 s64, s64, s14")
        a("s_lshl_b32 s70, s64, 2"); a("s_add_u32 s70, s70, s35")
        a(f"s_mul_i32 s66, s70, {7*1024}"); a(f"s_add_u32 s66, s66, {W13}")
        a("s_lshl_b32 s70, s70, 8"); a(f"s_add_u32 s70, s70, {CSP13}")
        a("s_lshl_b32 s65, s14, 5"); a("s_mov_b32 s38, 14336")
        a(f"s_branch {Lu}")
        a(f"{Lw2}:")
        a("s_sub_u32 s34, s3, 112"); a("s_and_b32 s35, s34, 7"); a("s_lshr_b32 s34, s34, 3")
        a("s_mov_b32 s36, 896")
        a("s_lshl_b32 s37, s35, 2"); a("s_add_u32 s37, s37, s14"); a(f"s_mul_i32 s37, s37, {56*896}"); a("s_lshl_b32 s64, s34, 7"); a("s_add_u32 s37, s37, s64")
        a("s_mov_b64 s[84:85], s[76:77]"); a(f"s_mov_b32 s86, {1792*448*2}")
        a("s_lshl_b32 s64, s34, 1"); a("s_add_u32 s64, s64, s40"); a("s_lshl_b32 s64, s64, 4")
        a("s_lshl_b32 s65, s35, 1"); a("s_add_u32 s64, s64, s65"); a("s_add_u32 s64, s64, s41")
        a(f"s_mul_i32 s66, s64, {7*1024}"); a(f"s_add_u32 s66, s66, {W2}")
        a(f"s_mul_i32 s65, s41, {112*128}"); a("s_lshl_b32 s64, s40, 6"); a("s_add_u32 s65, s65, s64")
        a(f"s_branch {Lu}")
        a(f"{Lwo}:")
        a("s_sub_u32 s34, s3, 168"); a("s_and_b32 s35, s34, 1"); a("s_lshr_b32 s34, s34, 1")
        a("s_mov_b32 s36, 896"); a("s_mov_b32 s39, 4")
        a("s_lshl_b32 s37, s35, 2"); a("s_add_u32 s37, s37, s14"); a(f"s_mul_i32 s37, s37, {56*896}"); a("s_lshl_b32 s64, s34, 7"); a("s_add_u32 s37, s37, s64")
        a("s_mov_b64 s[84:85], s[68:69]")
        a("s_cmp_lt_u32 s3, 182"); a(f"s_cselect_b32 s86, {448*448*2}, 0"); a("s_cselect_b32 s94, 8192, 0")
        a("s_lshl_b32 s64, s34, 1"); a("s_add_u32 s64, s64, s40"); a("s_lshl_b32 s64, s64, 2")
        a("s_lshl_b32 s65, s35, 1"); a("s_add_u32 s64, s64, s65"); a("s_add_u32 s64, s64, s41")
        a("s_lshl_b32 s66, s64, 13"); a(f"s_add_u32 s66, s66, {WO}")
        a("s_lshl_b32 s65, s41, 14"); a("s_lshl_b32 s64, s40, 6"); a("s_add_u32 s65, s65, s64")
        a("s_lshl_b32 s67, s14, 13"); a("s_add_u32 s71, s67, 7168")
        a(f"{Lu}:")
        a("s_add_u32 s92, s82, s66"); a("s_addc_u32 s93, s83, 0")
        a("v_bfe_u32 v196, v7, 6, 3"); a("v_bfe_u32 v197, v7, 3, 3")
        a("v_mul_lo_u32 v198, v196, s36"); a("v_lshl_add_u32 v198, v197, 4, v198")
        a("v_mov_b32 v201, 0x40000000")
        a("v_add_u32 v199, s39, v196")
        a("v_cmp_le_u32 vcc, 8, v199")
        a("v_cndmask_b32 v199, v198, v201, vcc")
        a("s_lshl_b32 s64, s36, 3")
        a("s_sub_u32 s66, 8, s39"); a("s_mul_i32 s66, s66, s36")
        for i in range(8):
            a(f"s_add_u32 m0, s67, {i*1024}" if i < 7 else "s_mov_b32 m0, s71")
            a(f"buffer_load_dwordx4 {'v199' if (i & 3) == 3 else 'v198'}, s[84:87], s37 offen lds")
            if i < 7:
                a(f"s_add_u32 s37, s37, {'s66' if i == 3 else 's64'}")
        a("v_bfe_u32 v205, v7, 5, 2")
        a("v_lshl_add_u32 v205, v207, 3, v205"); a("v_lshlrev_b32 v205, 7, v205")
        a("v_bfe_u32 v201, v7, 7, 1"); a("v_mul_lo_u32 v201, v201, s38"); a("v_add_u32 v205, v205, v201")
        a("v_bfe_u32 v201, v7, 3, 1"); a("v_lshl_add_u32 v205, v201, 4, v205")
        a("v_bfe_u32 v201, v7, 4, 1"); a("v_lshl_add_u32 v205, v201, 3, v205")
        a("v_add_u32 v205, s65, v205")
        a("s_lshl_b32 s3, s3, 3")
        a("s_lshl_b32 s69, s16, 3")
        a("v_add_u32 v1, 0x10000, v0")
        a("v_add_u32 v2, 0x20000, v0")
        a(f"s_mul_i32 s48, s13, {84*1024}"); a(f"s_add_u32 s48, s48, {WQKV}")
        a(f"s_mul_i32 s49, s13, {196*1024}"); a(f"s_add_u32 s49, s49, {W13}")
        a("s_mov_b32 s33, 0x40000")
        a("s_getreg_b32 s63, hwreg(HW_REG_XCC_ID, 0, 4)")
        a("s_mov_b32 s16, s15")
        a("s_cmp_ge_u32 s13, 7"); a("s_cselect_b32 s40, 1, 0")
        a("s_mul_i32 s41, s40, 7"); a("s_sub_u32 s41, s13, s41")
        a("s_min_u32 s41, s41, 6")
        a("s_lshr_b32 s36, s14, 1"); a("s_and_b32 s37, s14, 1")
        a("s_lshl_b32 s38, s40, 1")
        a("s_add_u32 s39, s38, s36")
        a("s_sub_u32 s38, s38, s36"); a("s_add_u32 s38, s38, 1")
        a("s_lshl_b32 s41, s41, 1")
        a("s_add_u32 s46, s41, s37")
        a("s_sub_u32 s47, s41, s37"); a("s_add_u32 s47, s47, 1")
        a(f"s_mul_i32 s17, s14, {28*1024}"); a("s_add_u32 s17, s17, s16"); a("s_mov_b32 s15, s17")
        a(f"s_mul_i32 s18, s14, {14*256}"); a("s_add_u32 s18, s18, s16"); a("s_mov_b32 s32, s18")
        a("s_lshl_b32 s19, s12, 5"); a("s_add_u32 s19, s19, s13"); a("s_lshl_b32 s19, s19, 14"); a(f"s_add_u32 s19, s19, {KV0}")
        a("s_add_u32 s20, s14, 1"); a("s_lshl_b32 s20, s20, 19"); a("s_sub_u32 s20, s19, s20")
        a("s_lshl_b32 s34, s14, 12"); a("s_add_u32 s19, s19, s34")
        a("s_lshl_b32 s21, s14, 4"); a("s_add_u32 s21, s21, s13"); a("s_lshl_b32 s21, s21, 11"); a("s_add_u32 s21, s21, s16"); a(f"s_add_u32 s21, s21, {GO}")
        a("s_lshl_b32 s34, s14, 13"); a("s_add_u32 s34, s34, s16"); a(f"s_add_u32 s34, s34, {GO}")
        a("s_lshl_b32 s22, s39, 15"); a("s_add_u32 s22, s22, s34")
        a("s_lshl_b32 s23, s38, 15"); a("s_add_u32 s23, s23, s34")
        a(f"s_add_u32 s34, s17, {GH}")
        a(f"s_mul_i32 s24, s39, {112*1024}"); a("s_add_u32 s24, s24, s34")
        a(f"s_mul_i32 s25, s38, {112*1024}"); a("s_add_u32 s25, s25, s34")
        a("s_mul_i32 s34, s39, 14"); a("s_add_u32 s34, s34, s46")
        a("s_lshl_b32 s26, s34, 11"); a("s_add_u32 s26, s26, s16")
        a("s_lshl_b32 s27, s34, 8"); a("s_add_u32 s27, s27, s16")
        a("s_lshl_b32 s28, s14, 4"); a("s_add_u32 s28, s28, s13"); a(f"s_mul_i32 s28, s28, {7*1024}"); a("s_add_u32 s28, s28, s16"); a(f"s_add_u32 s28, s28, {GH}")
        a("s_lshl_b32 s34, s12, 2"); a("s_add_u32 s34, s34, s39")
        a(f"s_mul_i32 s57, s34, {32*896}"); a("s_lshl_b32 s34, s46, 6"); a("s_add_u32 s57, s57, s34")
        a("s_lshl_b32 s34, s14, 13"); a(f"s_add_u32 s34, s34, {WO}")
        a("s_lshl_b32 s58, s46, 15"); a("s_add_u32 s58, s58, s34")
        a("s_lshl_b32 s59, s47, 15"); a("s_add_u32 s59, s59, s34")
        a(f"s_mul_i32 s34, s14, {28*1024}"); a(f"s_add_u32 s34, s34, {W2}")
        a(f"s_mul_i32 s60, s46, {112*1024}"); a("s_add_u32 s60, s60, s34")
        a(f"s_mul_i32 s61, s47, {112*1024}"); a("s_add_u32 s61, s61, s34")
        a("s_mov_b32 s46, s41")
        a("v_mul_u32_u24 v208, 896, v206"); a("v_lshl_add_u32 v208, v207, 4, v208")
        a("buffer_load_dwordx4 v[8:11], v208, s[8:11], s57 offen")
        a("buffer_load_dwordx4 v[12:15], v208, s[8:11], s57 offen offset:32")
        a("s_lshl_b32 s29, s12, 8")
        a("s_lshl_b32 s34, s13, 3"); a("s_add_u32 s30, s29, s34")
        a("s_lshl_b32 s62, s12, 4"); a("s_add_u32 s62, s62, s13"); a("s_lshl_b32 s62, s62, 7"); a(f"s_add_u32 s62, s62, {F1}")
        a("s_add_u32 s34, s14, 1"); a("s_lshl_b32 s34, s34, 11"); a("s_sub_u32 s31, s62, s34")
        a("s_sub_u32 s50, s14, 1")
        a(f"s_mov_b32 s52, {f32(1.0/448)}"); a(f"s_mov_b32 s53, {f32(1e-5)}")
        a(f"s_mov_b32 s54, {f32(28**-0.5 * math.log2(math.e))}"); a(f"s_mov_b32 s55, {f32(-math.log2(math.e))}")
        a(f"s_mov_b32 s56, {f32(-2.0**100)}")
        a("s_mov_b32 s40, 0"); a("s_mov_b32 s41, -1")
        if DTS:
            a("s_lshl_b32 s51, s2, 2"); a("s_add_u32 s51, s51, s14"); a(f"s_sub_u32 s51, s51, {DTS*4}")
            a("s_mov_b64 s[44:45], s[80:81]")
        a("v_readfirstlane_b32 s100, v210")
        a("v_readfirstlane_b32 s101, v211")
        a("s_cmp_lg_u32 s100, 0")
        a(f"s_cbranch_scc1 {Lok}")
        a.uncounted = True
        a(f"{Lt}:")
        a("global_load_dwordx2 v[210:211], v203, s[80:81] sc1")
        a("s_waitcnt vmcnt(0)")
        a("v_readfirstlane_b32 s100, v210")
        a("v_readfirstlane_b32 s101, v211")
        a("s_sub_u32 s33, s33, 1")
        a("s_cmp_eq_u32 s33, 0")
        a("s_cbranch_scc1 main_done")
        a("s_cmp_lg_u32 s100, 0")
        a(f"s_cbranch_scc0 {Lt}")
        a.uncounted = False
        a(f"{Lok}:")
        a("s_barrier")
        def sig():
            a("s_lshl_b32 s35, s13, 8"); a("s_add_u32 s35, s35, s69")
            self.signal("s35", PKA, False)
            a("s_add_u32 s35, s101, s63")
            a("v_mov_b32 v221, s35")
            a(f"s_add_u32 s34, s30, {XCCT}")
            a("s_mov_b64 exec, 1")
            a(f"buffer_store_dwordx2 v[220:221], v0, {SRD}, s34 offen sc1")
            a("s_mov_b64 exec, -1")
        self.wave0_else(sig, None)
        self.dts()
        self.ts(2)
        a("v_lshlrev_b32 v4, 4, v206"); a(f"v_add_u32 v4, {MISC}, v4")
        a("v_cmp_eq_u32 vcc, 28, v206")
        a("v_cndmask_b32 v5, 0, 1.0, vcc")
        a("s_lshl_b32 s34, s14, 7"); a(f"s_add_u32 s34, s34, {L_ST}")
        a("v_lshl_add_u32 v3, v206, 2, s34")
        a("v_lshl_add_u32 v6, v207, 4, s34")
        for k in range(1, 4):
            a(f"v_xor_b32 v{196+k}, {32*k}, v204")
        a.drain(lgkm=False)
        a("s_barrier")
        for i in range(8):
            for m in range(2):
                a(f"ds_read_b64_tr_b16 {vr(224+4*i+2*m, 2)}, v205 offset:{i*2048 + m*512}")
        for k in range(4):
            a(f"v_mov_b32 v{188+k}, 0")
        for i in range(7):
            for k in range(4):
                a(f"v_dot2_f32_bf16 v{188+k}, v{224+4*i+k}, v209, v{188+k}")
        a("v_add_f32 v188, v188, v189"); a("v_add_f32 v190, v190, v191"); a("v_add_f32 v5, v188, v190")
        a("s_mov_b64 s[96:97], s[92:93]"); a("s_mov_b32 s98, s94"); a("s_mov_b32 s47, s70")
        for ks in range(28):
            a(f"ds_read_b128 {vr(X+4*ks)}, {'v204' if ks % 4 == 0 else 'v%d' % (196 + ks % 4)} offset:{(ks >> 2)*4096}")
        a("s_mov_b32 s8, s78"); a("s_mov_b32 s9, s79")
        a("v_lshlrev_b32 v207, 2, v207")
        a("v_sub_u32 v207, v206, v207")
        for rho in range(16):
            kk = 8 * (rho >> 2) + (rho & 3)
            a(f"v_cmp_le_i32 s[{64+2*rho}:{65+2*rho}], {kk}, v207")
        a("s_lshl_b32 s35, s13, 8")
        def polls():
            Lb = self.label("pb"); Lc = self.label("pc")
            a("s_cmp_eq_u32 s14, 0"); a(f"s_cbranch_scc0 {Lb}")
            self.poll("s35", PKA, "0xfff")
            a(f"s_branch {Lc}")
            a(f"{Lb}:")
            self.xcc_poll()
            a("s_mov_b64 exec, -1")
            a(f"{Lc}:")
        self.wave_if("s_cmp_lt_u32 s14, 2", polls, None)
        a("s_lshr_b32 s37, s14, 1"); a(f"s_mul_i32 s37, s37, {28*1024}")
        a("s_and_b32 s39, s14, 1"); a(f"s_mul_i32 s39, s39, {7*1024}"); a("s_add_u32 s37, s37, s39")
        a(f"s_mul_i32 s39, s14, {7*1024}")
        a.drain()
        a("s_barrier")
        self.ts(2)
        self.tokW = [a.tok(), a.tok(), a.tok()]
        a("s_add_u32 s38, s48, s37")
        self.dma("s38", 0, "s37", 98 * 1024, 7, flags="sc1", tok=self.tokW[0])
        self.dma("s38", 14 * 1024, "s37", 112 * 1024, 7, flags="sc1", tok=self.tokW[1])

    def xstream(self, S, a, sx, xoff, sst, stoff, X, T, gaps):
        items = [self.xload(sx, xoff, X, ks) for ks in range(28)]
        sitems = []
        for u in range(7):
            g = []
            if u == 0:
                g.append(f"s_add_u32 s35, {sst}, {stoff}")
            g.append(f"buffer_load_dwordx2 {vr(T+2*u, 2)}, v7, {SRD}, s35 offen offset:{u*512} sc1")
            sitems.append(g)
        order = items[:SPOS] + sitems + items[SPOS:]
        for g in order[:XD]:
            for t in g:
                a(t)
        pos = {}
        for k, g in enumerate(order[XD:]):
            S.post(gaps[k], self.grp(g), cost=1.5)
            pos[XD + k] = gaps[k]
        return pos[SPOS + 6]

    def p1(self, l):
        a = self.a
        X, AK, AV, AQ, WB, RV, AB = 16, 128, 144, 160, 176, 200, 212
        NB = 6
        S = Sched(budget=5)
        seq = []
        for ks in range(29):
            seq.append((0, ks)); seq.append((1, ks))
        for ks in range(29):
            seq.append((2, ks))
        ACC = {0: AK, 1: AV, 2: AQ}
        idx = {}
        for n, (p, ks) in enumerate(seq):
            idx[(p, ks)] = n
            wb = WB + 4 * (n % NB)
            if ks < 28:
                base, off = lds_blk(WQ_BLK[p] + ks)
                S.post(n - NB, f"ds_read_b128 {vr(wb)}, {base} offset:{off}")
                xb = vr(X + 4 * ks)
            else:
                S.post(n - NB, f"ds_read_b128 {vr(wb)}, v4 offset:{p*512}")
                xb = vr(AB)
            ac = vr(ACC[p], 16)
            c = "0" if ks == 0 else ac
            if p == 1:
                S.add_main(f"{MF} {ac}, {xb}, {vr(wb)}, {c}")
            else:
                S.add_main(f"{MF} {ac}, {vr(wb)}, {xb}, {c}")
        dq = idx[(0, 28)]
        e0 = idx[(1, 28)] + 1
        if l == 1:
            gaps = [int(G1 * k) for k in range(40)]
            gs = self.xstream(S, a, "s17", GX[2], "s18", GST[2], X, AQ, gaps)
            for t in self.stats_tree(AQ, 7) + self.stats_finish(AQ, AB):
                S.fill(t, earliest=gs + 14, deadline=dq)
        a("s_lshl_b32 s34, s14, 12")
        a("v_add_u32 v220, s34, v0")
        if l == 0:
            U, C = 224, 240
            n2, n3 = idx[(0, 14)] - NB, idx[(0, 28)] - NB
            C = RV
            a(f"v_lshrrev_b32 v{AQ+14}, 1, v7"); a(f"v_add_u32 v{AQ+15}, 4096, v0")
            l4 = f"v{AQ+14}"
            g = [[f"s_add_u32 s35, s18, {GST[0]}"] + [f"buffer_load_dwordx2 {vr(AQ+2*u, 2)}, v7, {SRD}, s35 offen offset:{u*512} sc1" for u in range(2)]]
            g += [[f"buffer_load_dwordx2 {vr(AQ+2*u, 2)}, v7, {SRD}, s35 offen offset:{u*512} sc1" for u in us] for us in ((2, 3), (4, 5), (6,))]
            g[-1] += ["s_min_u32 s36, s14, 2", "s_mul_i32 s35, s13, 3", "s_add_u32 s35, s35, s36", "s_lshl_b32 s35, s35, 12", f"s_add_u32 s35, s35, {CSP}"]
            cr = [C + k for k in range(12)] + [216, 217, 218, 219]
            g += [[f"buffer_load_dword v{cr[k]}, {l4}, {SRD}, s35 offen offset:{k*256} sc1" for k in (k0, k0 + 1)] for k0 in range(0, 16, 2)]
            for k, gg in enumerate(g):
                S.post(k, self.grp(gg), cost=2)
            a("s_add_u32 s38, s48, s39")
            for k, gg in enumerate(self.dma_groups("s38", 56 * 1024, "s39", 70 * 1024, 7, per=1, flags="sc1")):
                S.post(12 + k, self.grp(gg, tok=self.tokW[2]), cost=1.5)
            tokU = a.tok()
            for i in range(8):
                S.post(UST + 2 * i, f"buffer_store_dwordx4 {vr(224+4*i)}, {'v0' if i < 4 else 'v%d' % (AQ+15)}, s[96:99], 0 offen offset:{(i%4)*1024} sc1", tok=tokU, cost=2)
            S.post(UST + 16, self.grp([f"buffer_store_dword v5, {l4}, {SRD}, s47 offen sc1", "v_bfe_u32 v221, v7, 3, 5", "v_cmp_eq_u32 vcc, 28, v221", "v_cndmask_b32 v5, 0, 1.0, vcc"], tok=tokU), cost=3)
            def st2(aa):
                aa.wait_tok(self.tokW[1])
                aa("s_barrier")
            def st3(aa):
                aa.wait_tok(self.tokW[2], tokU)
                aa.drain(vm=False)
                aa("s_barrier")
                aa("v_mov_b32 v222, v220")
                self.wave_if("s_cmp_eq_u32 s14, 3", lambda: self.signal("s3", PKF, False), None)
                aa("v_mov_b32 v220, v222")
            S.pre(n2, st2)
            S.pre(n3, st3)
            o = []
            for st in (8, 4, 2, 1):
                o += [f"v_add_f32 v{cr[i]}, v{cr[i]}, v{cr[i+st]}" for i in range(st)]
            o += [f"v_mov_b32 v{C+1}, v{C}", "s_lshl_b32 s36, s36, 9", f"v_add_u32 v{C+8}, s36, v4", f"v_permlane32_swap_b32 v{C}, v{C+1}", f"v_add_f32 v{C}, v{C}, v{C+1}"]
            o += self.aug_split(C, C + 1, C + 2, C + 4) + [f"ds_write_b128 v{C+8}, {vr(C+4)}"]
            for t in o:
                S.fill(t, earliest=n2 + 4, deadline=n3)
            for t in self.stats_tree(AQ, 7) + self.stats_finish(AQ, AB):
                S.fill(t, earliest=n2, deadline=dq)
        S.fill("ds_write_b32 v3, v217", earliest=30, deadline=e0)
        for q in range(3):
            S.fill(f"ds_read_b128 {vr(RV+4*q)}, v6 offset:{q*32}", deadline=e0)
        S.fill("v_mul_f32 v219, s54, v217", deadline=e0)
        tokS = a.tok()
        f = lambda t, tok=None: S.fill(t, earliest=e0, cost=0.5, tok=tok)
        for i in range(16):
            f(f"v_mul_f32 v{AK+i}, v217, v{AK+i}")
        for i in range(8):
            f(f"v_cvt_pk_bf16_f32 v{AK+i}, v{AK+2*i}, v{AK+2*i+1}")
        f(f"ds_read_b128 {vr(AK+8)}, v6 offset:96")
        f(f"buffer_store_dwordx4 {vr(AK)}, v0, {SRD}, s19 offen sc1", tokS)
        f(f"buffer_store_dwordx4 {vr(AK+4)}, v0, {SRD}, s19 offen offset:1024 sc1", tokS)
        for i in range(16):
            rv = RV + i if i < 12 else AK + 8 + (i - 12)
            f(f"v_fma_f32 v{AV+i}, v{AV+i}, v{rv}, v5")
        for i in range(8):
            f(f"v_cvt_pk_bf16_f32 v{AV+i}, v{AV+2*i}, v{AV+2*i+1}")
        f(f"buffer_store_dwordx4 {vr(AV)}, v0, {SRD}, s19 offen offset:2048 sc1", tokS)
        f(f"buffer_store_dwordx4 {vr(AV+4)}, v0, {SRD}, s19 offen offset:3072 sc1", tokS)
        for k, r in enumerate((AK, AK + 4, AV, AV + 4)):
            S.fill(f"ds_write_b128 v220, {vr(r)} offset:{8*4096+k*1024}", earliest=e0)
        PM = 152
        S.fill("v_mov_b32 v216, 0xffff", earliest=e0); S.fill("v_mov_b32 v218, 0xffff0000", earliest=e0)
        for i in range(8):
            S.fill(f"v_cndmask_b32 v{PM+i}, 0, v216, s[{64+4*i}:{65+4*i}]", earliest=e0)
            S.fill(f"v_cndmask_b32 v221, 0, v218, s[{66+4*i}:{67+4*i}]", earliest=e0)
            S.fill(f"v_or_b32 v{PM+i}, v{PM+i}, v221", earliest=e0)
        S.pre(e0, lambda aa: self.ts(2))
        for k in (0, 1, 20, 40):
            S.pre(k, lambda aa: self.ts(3))
        S.emit(a)
        a("v_mov_b32 v176, v220")
        a.wait_tok(tokS)
        a.drain(vm=False)
        a("s_barrier")
        def sg():
            self.signal("s62", 0, False)
        self.wave0_else(sg, None)
        for i in range(16):
            a(f"v_mul_f32 v{AQ+i}, v219, v{AQ+i}")
        a("v_mov_b32 v221, s56")
        a(f"v_cndmask_b32 v{AQ+12}, v{AQ+12}, v221, s[40:41]")
        for i in range(8):
            a(f"v_cvt_pk_bf16_f32 v{AQ+i}, v{AQ+2*i}, v{AQ+2*i+1}")
        a("v_mov_b32 v168, v176")
        if l == 0:
            self.xcc_poll()
            a.forget()
            a("v_cmp_eq_u32 vcc, s63, v218")
            a("s_mov_b64 exec, -1")
            a("s_mov_b32 s96, s4"); a("s_mov_b32 s97, s5"); a("s_mov_b32 s99, 0x20000")
            a("s_mov_b32 s0, s4"); a("s_mov_b32 s1, s5"); a("s_mov_b32 s3, 0x20000")
            if NOFAST:
                a("s_cmp_eq_u32 s4, -1")
            else:
                a("s_cmp_eq_u32 vcc_lo, 0xffff")
            a("s_cselect_b32 s98, 0x10000000, 0")
            a("s_cselect_b32 s2, 0, 0x10000000")
            a(f"s_cselect_b32 s63, 0, {SLOWD}")

    def p2(self, l):
        a = self.a
        Q, KF, SB, NM, PM, OA, VB = 160, 16, 88, 136, 152, 176, 192
        def halo():
            Lf = self.label("fill"); Lh = self.label("halo")
            a("s_lshl_b32 s37, s14, 14"); a("s_sub_u32 s37, 16384, s37")
            a("s_cmp_le_u32 s12, s14")
            a(f"s_cbranch_scc1 {Lf}")
            self.poll("s31", 0, "1")
            for half in range(2):
                for t in range(4):
                    a(f"s_add_u32 s34, s20, {t*4096 + half*2048}")
                    a(f"s_add_u32 m0, s37, {t*4096 + half*2048}")
                    for i in range(2):
                        a(f"buffer_load_dwordx4 v0, {SRD}, s34 offen offset:{i*1024} sc1 lds")
            a("s_waitcnt vmcnt(8)")
            a(f"s_branch {Lh}")
            a(f"{Lf}:")
            a("v_add_u32 v220, s37, v0")
            for i in range(8):
                a(f"v_mov_b32 v{SB+i}, 0")
            a("v_mov_b32 v221, 0x3f80")
            a(f"v_cndmask_b32 v{SB+6}, 0, v221, s[40:41]")
            for t in range(4):
                a(f"ds_write_b128 v220, {vr(SB)} offset:{t*4096}")
                a(f"ds_write_b128 v220, {vr(SB+4)} offset:{t*4096+1024}")
                a(f"ds_write_b128 v220, {vr(SB)} offset:{t*4096+2048}")
                a(f"ds_write_b128 v220, {vr(SB)} offset:{t*4096+3072}")
            a("s_waitcnt lgkmcnt(0)")
            a(f"{Lh}:")
        def pref():
            if l == 0:
                a("s_mul_i32 s35, s13, 7"); a("s_add_u32 s36, s35, 6"); a("s_lshr_b32 s35, s35, 2"); a("s_lshr_b32 s36, s36, 2")
                a("s_sub_u32 s36, s36, s35"); a("s_cmp_eq_u32 s36, 2"); a("s_cselect_b32 s47, 0xf00, 0"); a("s_or_b32 s47, s47, 0x00ff00ff")
                a("s_lshl_b32 s35, s35, 5")
                a("s_lshl_b32 s36, s46, 5"); a(f"s_add_u32 s36, s36, {112*8}")
                a("s_lshl_b32 s37, s46, 3"); a(f"s_add_u32 s37, s37, {168*8}")
                a("v_bfe_u32 v218, v7, 7, 2")
                a("v_mov_b32 v220, s35"); a("v_mov_b32 v221, s36"); a("v_mov_b32 v219, s37")
                a("v_cmp_eq_u32 vcc, 1, v218"); a("v_cndmask_b32 v220, v220, v221, vcc")
                a("v_cmp_eq_u32 vcc, 2, v218"); a("v_cndmask_b32 v220, v220, v219, vcc")
                a("v_and_b32 v218, 0x78, v7"); a("v_add_u32 v218, v218, v220")
                a("s_mov_b32 s35, 0")
                self.poll("s35", PKF, "s47", vaddr="v218", hi="3")
                a("s_sub_u32 s37, s14, 2"); a("s_mul_i32 s37, s37, 3")
                a("s_mul_i32 s38, s13, 7"); a("s_add_u32 s38, s38, s37"); a("s_lshl_b32 s38, s38, 10"); a(f"s_add_u32 s38, s38, {CSP13}")
                a("v_lshrrev_b32 v218, 1, v7")
                for k in range(16):
                    a(f"!buffer_load_dword v{SB+k}, v218, {SRD}, s38 offen offset:{k*256} sc1")
                a("s_lshl_b32 s37, s37, 9"); a("v_add_u32 v218, s37, v4")
            a("s_sub_u32 s37, s14, 2"); a(f"s_mul_i32 s37, s37, {19*1024}")
            a("s_add_u32 s38, s49, s37")
            if not (EXP & 2 and l == 1):
                self.dma("s38", 0, "s37", 48 * 1024, 19, flags="sc1")
            if l == 0:
                a("s_waitcnt vmcnt(19)")
                for t in range(4):
                    c = SB + 4 * t
                    for tt in (f"v_add_f32 v{c}, v{c}, v{c+1}", f"v_add_f32 v{c+2}, v{c+2}, v{c+3}", f"v_add_f32 v{c}, v{c}, v{c+2}",
                               f"v_mov_b32 v{c+1}, v{c}", "s_nop 1", f"v_permlane32_swap_b32 v{c}, v{c+1}", f"v_add_f32 v{c}, v{c}, v{c+1}"):
                        a("!" + tt if False else tt)
                    for tt in self.aug_split(c, c + 1, c + 2, SB + 16 + 4 * t):
                        a(tt)
                    a(f"ds_write_b128 v218, {vr(SB+16+4*t)} offset:{(3+t)*512}")
                a("s_waitcnt lgkmcnt(0)")
        self.wave_if("s_cmp_lt_u32 s14, 2", halo, pref)
        a(f"s_mul_i32 s37, s14, {17*1024}")
        a("s_add_u32 s38, s49, s37")
        a("s_barrier")
        self.ts()
        order = [8, 0, 1, 2, 3, 4, 5, 6, 7]
        S = Sched(budget=5)
        for n, i in enumerate(order):
            for s in range(2):
                S.post(2 * n + s - 6, f"ds_read_b128 {vr(KF+8*n+4*s)}, v168 offset:{i*4096+s*1024}")
        for n, i in enumerate(order):
            sb = SB + 16 * (n % 3)
            S.add_main(f"{MF} {vr(sb,16)}, {vr(KF+8*n)}, {vr(Q)}, 0")
            S.add_main(f"{MF} {vr(sb,16)}, {vr(KF+8*n+4)}, {vr(Q+4)}, {vr(sb,16)}")
            e = 2 * n + 3
            dl = 2 * (n + 3)
            if n == 0:
                continue
            if n == 1:
                sd = SB
                for k in range(16):
                    S.fill(f"v_cndmask_b32 v{sb+k}, v{sb+k}, v{sd+k}, s[{64+2*k}:{65+2*k}]", earliest=e, deadline=6)
                S.fill(f"v_max_f32 v216, v{sb}, v{sb+1}", earliest=e, deadline=dl)
                for k in range(1, 8):
                    S.fill(f"v_max3_f32 v216, v216, v{sb+2*k}, v{sb+2*k+1}", earliest=e, deadline=dl)
            else:
                for k in range(8):
                    S.fill(f"v_max3_f32 v216, v216, v{sb+2*k}, v{sb+2*k+1}", earliest=e, deadline=dl)
        if l == 0:
            for k in range(4):
                a(f"v_mov_b32 v{VB+k}, 0")
            for k, g in enumerate(self.zero_groups(VB, (("s21", 0, 2), ("s26", GX[1], 2), ("s28", 5120, 2), ("s26", GX[2], 2)), (GST[1], GST[2]))):
                S.post((3 * k) // 2, self.grp(g), cost=1.5)
        S.emit(a)
        a("v_mov_b32 v217, v216")
        a("v_permlane32_swap_b32 v216, v217")
        a("v_max_f32 v216, v216, v217")
        for k in range(16):
            a(f"v_sub_f32 v{NM+k}, 0, v216")
        nz = 10 if l == 0 else 0
        self.wave_if("s_cmp_lt_u32 s14, 2", lambda: a(f"s_waitcnt vmcnt({nz})"), None)
        a("s_barrier")
        self.ts(2)
        S = Sched(budget=10)
        nv = [0]
        def vread(i, s, gap):
            vb = VB + 4 * (nv[0] % 6); nv[0] += 1
            S.post(gap, f"ds_read_b128 {vr(vb)}, v168 offset:{i*4096+2048+s*1024}")
            return vb
        def smm(n):
            sb = SB + 16 * (n % 3)
            S.add_main(f"{MF} {vr(sb,16)}, {vr(KF+8*n)}, {vr(Q)}, {vr(NM,16)}")
            return S.add_main(f"{MF} {vr(sb,16)}, {vr(KF+8*n+4)}, {vr(Q+4)}, {vr(sb,16)}")
        first = [True]
        def pv(i, pb):
            for s in range(2):
                vb = vread(i, s, len(S.main) - 4)
                c = "0" if first[0] else vr(OA, 16)
                first[0] = False
                S.add_main(f"{MF} {vr(OA,16)}, {vr(vb)}, {vr(pb+4*s)}, {c}")
        def soft(n, e, dl):
            sb = SB + 16 * (n % 3)
            for k in range(8):
                S.fill(f"v_exp_f32 v{sb+2*k}, v{sb+2*k}", earliest=e, deadline=dl)
                S.fill(f"v_exp_f32 v{sb+2*k+1}, v{sb+2*k+1}", earliest=e, deadline=dl)
                if k >= 1:
                    S.fill(f"v_cvt_pk_bf16_f32 v{sb+k-1}, v{sb+2*k-2}, v{sb+2*k-1}", earliest=e, deadline=dl)
            S.fill(f"v_cvt_pk_bf16_f32 v{sb+7}, v{sb+14}, v{sb+15}", earliest=e, deadline=dl)
        smm(0); i1 = smm(1); i2 = smm(2)
        sb1 = SB + 16
        for k in range(16):
            S.fill(f"v_cndmask_b32 v{sb1+k}, v{sb1+k}, v{SB+k}, s[{64+2*k}:{65+2*k}]", earliest=i1 + 1, deadline=6)
        i3 = smm(3)
        soft(1, i1 + 1, 8)
        for k in range(8):
            S.fill(f"v_bfi_b32 v{sb1+8+k}, v{PM+k}, 0, v{sb1+k}", deadline=8)
            S.fill(f"v_and_b32 v{sb1+k}, v{PM+k}, v{sb1+k}", deadline=8)
        pv(8, sb1); pv(0, sb1 + 8)
        send = {2: i2, 3: i3}
        for n in range(2, 9):
            if n + 2 <= 8:
                send[n + 2] = smm(n + 2)
            soft(n, send[n] + 1, len(S.main))
            pv(order[n], SB + 16 * (n % 3))
        for k, g in enumerate(self.dma_groups("s38", 38 * 1024, "s37", (48 + 38) * 1024, 17, per=1, flags="sc1")):
            if not (EXP & 1 and l == 1):
                S.post(2 * k, self.grp(g), cost=1.5)
        if l == 0:
            for k, g in enumerate(self.priv_groups(wo_frag, "s58", "s59", 0, 8)):
                S.post(4 * k + 1, self.grp(g), cost=2)
        S.emit(a)
        a(f"v_mov_b32 v216, v{OA+12}")
        a(f"v_mov_b32 v217, v{OA+12}")
        a("v_permlane32_swap_b32 v216, v217")
        a("v_rcp_f32 v217, v217")
        for k in range(16):
            a(f"v_mul_f32 v{OA+k}, v217, v{OA+k}")
            if k in (7, 15):
                h = k // 8
                for kk in range(4):
                    a(f"v_cvt_pk_bf16_f32 v{OA+8*h+kk}, v{OA+8*h+2*kk}, v{OA+8*h+2*kk+1}")
                self.hstore(f"buffer_store_dwordx4 {vr(OA+8*h)}, v0, {SRD}, s21 offen offset:{h*1024}")(a)

    def ksplit_pre(self):
        a = self.a
        AC = 16
        for k in range(8):
            a(f"v_lshlrev_b32 v{AC+2*k}, 16, v{8+k}")
            a(f"v_and_b32 v{AC+2*k+1}, 0xffff0000, v{8+k}")
        for s in range(1, 4):
            a(f"s_xor_b32 s34, s14, {s}")
            a(f"s_mul_i32 s34, s34, 12288")
            a(f"s_add_u32 s34, s34, {(s-1)*4096}")
            a(f"v_add_u32 v{207+s}, s34, v0")
        a(f"s_mul_i32 s34, s14, 12288")
        a("v_add_u32 v211, s34, v0")
        for k in range(4):
            a(f"v_mov_b32 v{212+k}, 0")
        a("v_mov_b32 v216, 0x3f803f80")
        a("v_and_b32 v217, 0xf8, v7")

    def ksplit(self, n, sa0, sa1, wfrag, final, extra=None):
        a = self.a
        AC, AB, NBUF = 16, 80, 16
        loads = []
        for i in range(n):
            for s, sa in ((0, sa0), (1, sa1)):
                st = "s36" if s == 0 else "s37"
                g = []
                if i % 4 == 0:
                    g.append(f"s_add_u32 {st}, {sa}, {i*1024}")
                g.append(f"buffer_load_dwordx4 {vr(AB + 8*(i % NBUF) + 4*s)}, v0, {SRD}, {st} offen offset:{(i%4)*1024} sc1{NTA}")
                loads.append((i, g))
        S = Sched(budget=5)
        TL = KTL
        order = [(i, sl) for i in range(n - TL) for sl in (1, 0, 2, 3)]
        order += [(i, sl) for sl in (1, 2, 3, 0) for i in range(n - TL, n)]
        for (i, sl) in order:
            aa, bb = sl >> 1, sl & 1
            ac = AC + 16 * sl
            c = vr(ac, 16) if (i > 0 or sl == 0) else "0"
            m = S.add_main(f"{MF} {vr(ac,16)}, {wfrag(i,bb)}, {vr(AB + 8*(i % NBUF) + 4*aa)}, {c}")
            if i == n - 1 and sl != 0:
                for q in range(4):
                    S.fill(f"ds_write_b128 v{207+sl}, {vr(AC+16*sl+4*q)} offset:{q*1024}", earliest=m + 2, cost=2.5)
        for k, (i, g) in enumerate(loads):
            pos = -1 if k < KD else max(int(KP * (k - KD)), 4 * (i - NBUF) + 3)
            S.post(pos, self.grp(g), cost=1.5)
        if extra:
            for k, g in enumerate(extra):
                S.post(8 + 2 * k, self.grp(g), cost=2)
        if n == 28:
            for k in (0, 1, 28, 56, 84):
                S.pre(k, lambda aa: self.ts(3))
        S.pre(len(order), lambda aa: self.ts(2))
        S.emit(a)
        a.drain(vm=False)
        a("s_barrier")
        for q in range(4):
            for s in range(3):
                a(f"ds_read_b128 {vr(AB+16*s+4*q)}, v211 offset:{s*4096+q*1024}")
        for h in range(2):
            for q in (2 * h, 2 * h + 1):
                for s in range(3):
                    for k in range(4 * q, 4 * q + 4):
                        a(f"v_add_f32 v{AC+k}, v{AC+k}, v{AB+16*s+k}")
            for k in range(4 * h, 4 * h + 4):
                a(f"v_cvt_pk_bf16_f32 v{8+k}, v{AC+2*k}, v{AC+2*k+1}")
            final(h)

    def store_x(self, xoff, stoff):
        a = self.a
        def fin(h):
            if h == 0:
                a(f"s_add_u32 s34, s26, {xoff}")
            self.hstore(f"buffer_store_dwordx4 {vr(8+4*h)}, v0, {SRD}, s34 offen offset:{h*1024}")(a)
            for k in range(4 * h, 4 * h + 4):
                o = 2 * (k & 1)
                a(f"v_dot2_f32_bf16 v{212+o}, v{8+k}, v216, v{212+o}")
                a(f"v_dot2_f32_bf16 v{213+o}, v{8+k}, v{8+k}, v{213+o}")
            if h == 1:
                a(f"s_add_u32 s35, s27, {stoff}")
                a("v_add_f32 v212, v212, v214")
                a("v_add_f32 v213, v213, v215")
                a("v_mov_b32 v214, v212")
                a("v_mov_b32 v215, v213")
                a("v_permlane32_swap_b32 v212, v214")
                a("v_permlane32_swap_b32 v213, v215")
                a("v_add_f32 v212, v212, v214")
                a("v_add_f32 v213, v213, v215")
                self.hstore(f"buffer_store_dwordx2 v[212:213], v217, {SRD}, s35 offen")(a)
        return fin

    def p3(self, l):
        a = self.a
        Le = self.label("p3end")
        a.drain()
        a("s_barrier")
        self.wave0_else(lambda: self.signal("s30", 0 * 4096, True), None)
        a("s_cmp_ge_u32 s13, 14")
        a(f"s_cbranch_scc1 {Le}")
        if l == 0:
            for g in self.priv_groups(w2_frag, "s60", "s61", 0, W2A):
                for t in g:
                    a(t)
        self.ksplit_pre()
        self.wave0_else(lambda: self.poll("s29", 0 * 4096, "0xffff"), None)
        a("s_barrier")
        self.ts()
        self.ksplit(8, "s22", "s23", wo_frag, self.store_x(GX[1], GST[1]),
                    self.priv_groups(w2_frag, "s60", "s61", W2A, W2B) if l == 0 else None)
        a.drain()
        a("s_barrier")
        self.wave0_else(lambda: self.signal("s30", 1 * 4096, True), None)
        a(f"{Le}:")

    def dma3(self, sbase, q0, n3, lds0):
        a = self.a
        a(f"s_mul_i32 s37, s50, {n3*1024}")
        a(f"s_add_u32 s38, {sbase}, s37")
        self.dma("s38", q0 * 1024, "s37", lds0 * 1024, n3, flags="sc1")

    def p4(self, l):
        a = self.a
        X, AC, WB, NB, AB = 16, 128, 192, 5, 212
        self.wave0_else(lambda: self.poll("s29", 1 * 4096, "0x3fff"), None)
        a.forget()
        a(f"s_mul_i32 s37, s14, {12*1024}")
        a("s_add_u32 s38, s49, s37")
        a("s_barrier")
        self.ts()
        S = Sched(budget=5)
        seq = []
        for ks in range(29):
            for t in range(3):
                seq.append((t, ks))
        for t in range(3, 7):
            for ks in range(29):
                seq.append((t, ks))
        aset = {0: 0, 1: 1, 2: 2, 3: 3, 4: 0, 5: 1, 6: 2}
        idx = {k: n for n, k in enumerate(seq)}
        first = {t: idx[(t, 0)] for t in range(7)}
        last = {t: idx[(t, 28)] for t in range(7)}
        for n, (t, ks) in enumerate(seq):
            wb = WB + 4 * (n % NB)
            if ks < 28:
                base, off = lds_blk(w13_blk(t * 28 + ks))
                S.post(n - NB, f"ds_read_b128 {vr(wb)}, {base} offset:{off}")
                xb = vr(X + 4 * ks)
            else:
                S.post(n - NB, f"ds_read_b128 {vr(wb)}, v4 offset:{(3+t)*512}")
                xb = vr(AB)
            ac = vr(AC + 16 * aset[t], 16)
            S.add_main(f"{MF} {ac}, {vr(wb)}, {xb}, {'0' if ks == 0 else ac}")
        T = AC + 48
        gaps = [int(G4 * k) for k in range(40)]
        gs = self.xstream(S, a, "s15", GX[1], "s32", GST[1], X, T, gaps)
        for t in self.stats_tree(T, 7) + self.stats_finish(T, AB):
            S.fill(t, earliest=gs + 20, deadline=idx[(0, 28)])
        S.fill("v_mul_f32 v217, s55, v217", deadline=idx[(0, 28)])
        g0 = gaps[35 - XD]
        for k, g in enumerate(self.dma_groups("s38", 106 * 1024, "s37", 0, 12, per=1, flags="sc1")):
            if not (EXP & 4 and l == 1):
                S.post(g0 + 2 * k, self.grp(g), cost=1.5)
        assert g0 + 24 < first[3]
        def epi(t, earliest, deadline):
            ac = AC + 16 * aset[t]
            f = lambda s, c=None: S.fill(s, earliest=earliest, deadline=deadline, cost=c)
            for i in range(8):
                f(f"v_mul_f32 v{ac+8+i}, v{ac+i}, v{ac+8+i}")
                f(f"v_mul_f32 v{ac+i}, v217, v{ac+i}")
            for i in range(8):
                f(f"v_exp_f32 v{ac+i}, v{ac+i}")
            for i in range(8):
                f(f"v_fma_f32 v{ac+i}, v{ac+i}, v219, v219")
            for i in range(8):
                f(f"v_rcp_f32 v{ac+i}, v{ac+i}")
            for i in range(8):
                f(f"v_mul_f32 v{ac+i}, v{ac+i}, v{ac+8+i}")
            for i in range(4):
                f(f"v_cvt_pk_bf16_f32 v{ac+i}, v{ac+2*i}, v{ac+2*i+1}")
            if t % 4 == 0:
                f(f"s_add_u32 s39, s28, {t*1024}")
            st_ = f"buffer_store_dwordx4 {vr(ac)}, v0, {SRD}, s39 offen offset:{(t%4)*1024}"
            if t >= 5:
                f(self.hstore(st_), 3)
            else:
                f(st_ + " sc1", 2)
        tokD = a.tok()
        nmid = first[3] + 12
        def midbar(aa):
            aa.drain(vm=True, lgkm=False)
            self.ts(2)
            aa("s_barrier")
            aa(f"s_mul_i32 s37, s14, {11*1024}")
            aa("s_add_u32 s38, s49, s37")
        assert nmid <= idx[(3, 22)] - NB
        S.pre(nmid, midbar)
        for k, g in enumerate(self.dma_groups("s38", 154 * 1024, "s37", 48 * 1024, 11, per=1, flags="sc1")):
            if not (EXP & 4 and l == 1):
                S.post(nmid + 2 * k, self.grp(g, tok=tokD), cost=1.5)
        def bar2(aa):
            self.ts(2)
            aa.wait_tok(tokD)
            aa("s_barrier")
            aa(f"s_mul_i32 s37, s14, {14*1024}")
            aa("s_add_u32 s38, s48, s37")
        nb2 = idx[(5, 14)] - NB
        S.pre(nb2, bar2)
        if l == 0:
            for k, g in enumerate(self.dma_groups("s38", 0, "s37", 98 * 1024, 14, per=1, flags="sc1")):
                S.post(nb2 + 1 + 3 * k, self.grp(g), cost=1.5)
            gs2 = self.priv_groups(w2_frag, "s60", "s61", W2B, 28)
            for k, g in enumerate(gs2):
                p = nmid + 23 + (70 // max(len(gs2), 1)) * k
                if p > nb2 and (p - nb2 - 1) % 3 == 0:
                    p += 1
                S.post(p, self.grp(g), cost=2)
        epi(0, last[2] + 1, first[4])
        epi(1, last[2] + 1, first[5])
        epi(2, last[2] + 1, first[6])
        for t in range(3, 7):
            epi(t, last[t] + 2, None)
        S.pre(len(seq), lambda aa: self.ts(2))
        for k in (0, 1, 21, 42, 63):
            S.pre(k, lambda aa: self.ts(3))
        S.emit(a)

    def p5(self, l):
        a = self.a
        Le = self.label("p5end")
        a.drain()
        a("s_barrier")
        self.wave0_else(lambda: self.signal("s30", 2 * 4096, True),
                        (lambda: self.dma3("s48", 54, 10, 68)) if l == 0 else None)
        a("s_cmp_ge_u32 s13, 14")
        a(f"s_cbranch_scc1 {Le}")
        self.ksplit_pre()
        if l == 1:
            a("v_bfe_u32 v212, v7, 3, 5")
            a("v_mul_u32_u24 v212, 896, v212")
            a("v_bfe_u32 v213, v7, 8, 1")
            a("v_lshl_add_u32 v212, v213, 4, v212")
        self.wave0_else(lambda: self.poll("s29", 2 * 4096, "0xffff"), None)
        a("s_barrier")
        self.ts()
        if l == 0:
            self.ksplit(28, "s24", "s25", w2_frag, self.store_x(GX[2], GST[2]))
            a.drain()
            a("s_barrier")
            self.wave0_else(lambda: self.signal("s30", 3 * 4096, True), None)
        else:
            self.ksplit(28, "s24", "s25", w2_frag,
                        lambda h: a(f"buffer_store_dwordx4 {vr(8+4*h)}, v212, s[8:11], s57 offen offset:{32*h}"))
        a(f"{Le}:")

    def build(self):
        a = self.a
        self.nts = 28
        self.prologue()
        for l in range(2):
            self.nts = 0
            if l == 0:
                a.wait_tok(self.tokW[0])
            else:
                a.drain()
            a("s_barrier")
            self.ts()
            self.dts()
            ph = [self.p1, self.p2, self.p3, self.p4, self.p5]
            for k, p in enumerate(ph):
                p(l)
                self.ts()
                self.dts()
                if STOP == 5 * l + k + 1:
                    a("s_branch main_done")
            if l == 0:
                self.wave0_else(lambda: self.poll("s29", 3 * 4096, "0x3fff"), None)
                for s, d in (("s19", 0x40000), ("s20", 0x40000), ("s29", 4 * 4096), ("s30", 4 * 4096), ("s31", 0x8000), ("s62", 0x8000)):
                    a(f"s_add_u32 {s}, {s}, {d}")
                for s in ("s15", "s32", "s21", "s22", "s23", "s24", "s25", "s26", "s27", "s28"):
                    a(f"s_add_u32 {s}, {s}, s63")
                if TS:
                    a("s_add_u32 s51, s51, 256")
        a("main_done:")
        a("s_endpgm")
        txt, n = a.finish()
        return txt


def gen_main():
    return G().build()

MAIN_KD = dict(vgpr=512, sgpr=102, accum=256, grid=256, block=256, lds=LDS_BYTES)
```

```python
import math, struct, os
from asmlib import *
from layout import *

STOP = int(os.environ.get("STOP", "99"))
TS = int(os.environ.get("TS", "0"))
NOFAST = int(os.environ.get("NOFAST", "0"))

DTS = int(os.environ.get("DTS", "0"))
X0N = int(os.environ.get("X0N", "8"))
CPF = int(os.environ.get("CPF", "1"))
KTL = int(os.environ.get("KTL", "1"))
W2A = int(os.environ.get("W2A", "4"))
W2B = int(os.environ.get("W2B", "16"))
NTW = " nt" if int(os.environ.get("NTW", "0")) else ""
NTA = " nt" if int(os.environ.get("NTA", "0")) else ""
EXP = int(os.environ.get("EXP", "0"))
UST = int(os.environ.get("UST", "12"))
G4 = float(os.environ.get("G4", "2"))
G1 = float(os.environ.get("G1", "1.5"))
FA = int(os.environ.get("FA", "2"))
SG5 = int(os.environ.get("SG5", "8"))
H1 = int(os.environ.get("H1", "6"))
H2 = int(os.environ.get("H2", "20"))
APD = int(os.environ.get("APD", "14"))
LATEP = int(os.environ.get("LATEP", "36"))
XD = int(os.environ.get("XD", "8"))
SPOS = int(os.environ.get("SPOS", "16"))
KD = int(os.environ.get("KD", "10"))
KP = float(os.environ.get("KP", "2"))
KNAME = "interleave_layers__sliding_block__glu_gated_swiglu__prompt_kernel"
def f32(x):
    return "0x%08x" % struct.unpack("<I", struct.pack("<f", x))[0]

MISC = 154 * 1024
L_AUG = MISC
L_ST = MISC + 5120
LDS_BYTES = 160 * 1024
WQ_BLK = {0: 98, 1: 126, 2: 70}

def w13_blk(q):
    return 48 + q if q < 106 else (q - 106 if q < 154 else 48 + q - 154)

SRD = "s[4:7]"
MF = "v_mfma_f32_32x32x16_bf16"

def vr(b, n=4):
    return f"v[{b}:{b+n-1}]"

def ar(b, n=4):
    return f"a[{b}:{b+n-1}]"

def lds_blk(b):
    return f"v{b // 64}", (b % 64) * 1024

def w2_frag(i, b):
    return ar((2 * i + b) * 4)

def koff5(i):
    return 7 * (i // 4) + i % 4 if i < 16 else 7 * ((i - 16) // 3) + 4 + (i - 16) % 3

def wo_frag(i, b):
    k = 2 * i + b
    return ar(224 + 4 * k) if k < 8 else vr(224 + 4 * (k - 8))

class G:
    def __init__(self):
        self.a = Asm()
        self.nl = 0
        self.nts = 0
        self.ndts = 0
        self.k_hook = None

    def label(self, base):
        self.nl += 1
        return f"L{base}_{self.nl}"

    def ts(self, lvl=1):
        if TS < lvl:
            return
        a = self.a
        k = self.nts
        self.nts += 1
        unc = a.uncounted
        a("s_memrealtime s[42:43]")
        a("s_memtime s[44:45]")
        a("s_waitcnt lgkmcnt(0)")
        a.uncounted = True
        a("v_mov_b32 v222, s42")
        a("v_mov_b32 v223, s44")
        a(f"s_add_u32 s42, s51, {k*8}")
        a("s_mov_b64 exec, 1")
        a(f"buffer_store_dwordx2 v[222:223], v0, {SRD}, s42 offen")
        a("s_mov_b64 exec, -1")
        a.uncounted = unc

    def dts(self):
        if not DTS:
            return
        a = self.a
        k = self.ndts
        self.ndts += 1
        L = self.label("dts")
        unc = a.uncounted
        a("s_cmp_eq_u32 s51, 0")
        a(f"s_cbranch_scc0 {L}")
        a.uncounted = True
        a("s_memrealtime s[42:43]")
        a("s_waitcnt lgkmcnt(0)")
        a("v_mov_b32 v222, s42")
        a("s_mov_b64 exec, 1")
        a(f"global_store_dword v0, v222, s[44:45] offset:{8+4*k}")
        a("s_mov_b64 exec, -1")
        a.uncounted = unc
        a(f"{L}:")
        a("s_waitcnt lgkmcnt(0)")

    def dma_groups(self, sg, goff, slds, loff, n, flags="", per=4):
        out = []
        for i0 in range(0, n, per):
            g = [f"s_add_u32 s34, {sg}, {goff + i0*1024}", f"s_add_u32 m0, {slds}, {loff + i0*1024}"]
            for i in range(i0, min(n, i0 + per)):
                g.append(f"buffer_load_dwordx4 v0, {SRD}, s34 offen offset:{(i-i0)*1024} {flags} lds")
            out.append(g)
        return out

    def dma(self, sg, goff, slds, loff, n, tok=None, flags=""):
        for g in self.dma_groups(sg, goff, slds, loff, n, flags):
            for t in g:
                self.a(t, tok=tok)

    def grp(self, texts, tok=None):
        def f(a):
            for t in texts:
                a(t, tok=tok)
        return f

    def hstore(self, text):
        def f(a):
            if not NOFAST:
                a(text.replace(SRD, "s[96:99]"))
            a(text.replace(SRD, "s[0:3]") + " sc1")
        return f

    def signal(self, soff_sgpr, const, fast):
        a = self.a
        a(f"s_add_u32 s34, {soff_sgpr}, {const}")
        a("v_mov_b32 v220, s100")
        a("v_mov_b32 v221, s101")
        a("s_mov_b64 exec, 1")
        t = f"buffer_store_dwordx2 v[220:221], v0, {SRD}, s34 offen"
        if fast:
            self.hstore(t)(a)
        else:
            a(t + " sc1")
        a("s_mov_b64 exec, -1")

    def poll(self, soff_sgpr, const, mask, vaddr="v7", hi=None, nowr=False):
        a = self.a
        L = self.label("poll")
        a(f"s_add_u32 s34, {soff_sgpr}, {const}")
        a(f"s_mov_b32 exec_lo, {mask}")
        a(f"s_mov_b32 exec_hi, {hi if hi else 0}")
        a(f"{L}:")
        a(("!" if nowr else "") + f"buffer_load_dwordx2 v[220:221], {vaddr}, {SRD}, s34 offen sc1")
        a("s_waitcnt vmcnt(0)")
        a("v_cmp_eq_u64 vcc, s[100:101], v[220:221]")
        a("s_sub_u32 s33, s33, 1")
        a("s_cmp_eq_u32 s33, 0")
        a(f"s_cbranch_scc1 main_done")
        a(f"s_cmp_eq_u64 vcc, exec")
        a(f"s_cbranch_scc0 {L}")
        a("s_mov_b64 exec, -1")

    def xcc_poll(self):
        a = self.a
        L = self.label("xcc")
        a(f"s_add_u32 s34, s29, {XCCT}")
        a("s_mov_b64 exec, 0xffff")
        a(f"{L}:")
        a(f"buffer_load_dwordx2 v[220:221], v7, {SRD}, s34 offen sc1")
        a("s_waitcnt vmcnt(0)")
        a("v_subrev_u32 v218, s101, v221")
        a("v_cmp_eq_u32 s[36:37], s100, v220")
        a("v_cmp_gt_u32 vcc, 16, v218")
        a("s_sub_u32 s33, s33, 1")
        a("s_cmp_eq_u32 s33, 0")
        a("s_cbranch_scc1 main_done")
        a("s_and_b32 s36, s36, vcc_lo")
        a("s_cmp_eq_u32 s36, 0xffff")
        a(f"s_cbranch_scc0 {L}")

    def wave_if(self, cmp, f0, f1):
        a = self.a
        Lo = self.label("oth"); Lj = self.label("join")
        a(cmp)
        a(f"s_cbranch_scc0 {Lo}")
        a.uncounted = True
        f0()
        if f1:
            a(f"s_branch {Lj}")
        a(f"{Lo}:")
        if f1:
            f1()
        a.uncounted = False
        if f1:
            a(f"{Lj}:")

    def wave0_else(self, f0, f1):
        self.wave_if("s_cmp_eq_u32 s14, 0", f0, f1)

    def stats_tree(self, T, n):
        o = []
        idx = list(range(n))
        while len(idx) > 1:
            nxt = []
            for k in range(0, len(idx) - 1, 2):
                x, y = idx[k], idx[k + 1]
                o.append(f"v_add_f32 v{T+2*x}, v{T+2*x}, v{T+2*y}")
                o.append(f"v_add_f32 v{T+2*x+1}, v{T+2*x+1}, v{T+2*y+1}")
                nxt.append(x)
            if len(idx) % 2:
                nxt.append(idx[-1])
            idx = nxt
        return o

    def stats_finish(self, T, AB):
        return [f"v_mov_b32 v{T+2}, v{T}", f"v_mov_b32 v{T+3}, v{T+1}",
              f"v_permlane32_swap_b32 v{T}, v{T+2}", f"v_permlane32_swap_b32 v{T+1}, v{T+3}",
              f"v_add_f32 v{T}, v{T}, v{T+2}", f"v_add_f32 v{T+1}, v{T+1}, v{T+3}",
              f"v_mul_f32 v216, s52, v{T}", f"v_mul_f32 v219, s52, v{T+1}",
              "v_fma_f32 v219, -v216, v216, v219", "v_max_f32 v219, 0, v219", "v_add_f32 v219, s53, v219",
              "v_rsq_f32 v217, v219",
              f"v_cndmask_b32 v{T}, -v216, 0, s[40:41]",
              f"v_cvt_pk_bf16_f32 v{T+1}, v{T}, v{T}",
              f"v_and_b32 v{T+1}, 0xffff0000, v{T+1}",
              f"v_sub_f32 v{T+1}, v{T}, v{T+1}",
              f"v_cvt_pk_bf16_f32 v{AB}, v{T}, v{T+1}",
              f"v_and_b32 v{T+2}, 0xffff0000, v{AB}",
              f"v_sub_f32 v{T+2}, v{T+1}, v{T+2}",
              f"v_cvt_pk_bf16_f32 v{AB+1}, v{T}, v{T+2}",
              f"v_mov_b32 v{AB+2}, v{AB}", f"v_mov_b32 v{AB+3}, 0"]

    def xload(self, sx, const, X, ks):
        o = []
        if ks % 4 == 0:
            o.append(f"s_add_u32 s36, {sx}, {const + ks*1024}")
        o.append(f"buffer_load_dwordx4 {vr(X+4*ks)}, v0, {SRD}, s36 offen offset:{(ks%4)*1024} sc1")
        return o

    def priv_groups(self, frag, sb0, sb1, i0, i1):
        ko = koff5 if frag is w2_frag else (lambda i: i)
        out = []
        for b, sb in ((0, sb0), (1, sb1)):
            for i in range(i0, i1, 2):
                g = []
                for k in (i, i + 1):
                    g += [f"s_add_u32 s34, {sb}, {ko(k)*1024}", f"buffer_load_dwordx4 {frag(k,b)}, v0, {SRD}, s34 offen sc1"]
                out.append(g)
        return out

    def apoll_issue(self, const, r):
        return [f"s_add_u32 s34, s29, {const}", "s_mov_b64 exec, 0xffff",
                f"buffer_load_dwordx2 {vr(r, 2)}, v7, {SRD}, s34 offen sc1", "s_mov_b64 exec, -1"]

    def apoll_check(self, const, r):
        a = self.a
        L = self.label("apok")
        a("s_mov_b64 exec, 0xffff")
        a(f"v_cmp_eq_u64 vcc, s[100:101], {vr(r, 2)}")
        a("s_mov_b64 exec, -1")
        a("s_cmp_eq_u32 vcc_lo, 0xffff")
        a(f"s_cbranch_scc1 {L}")
        unc = a.uncounted
        a.uncounted = True
        self.poll("s29", const, "0xffff", nowr=True)
        a.uncounted = unc
        a(f"{L}:")

    def touch(self, sbase, const, nlines, dst):
        mask = (1 << nlines) - 1
        o = [f"s_add_u32 s34, {sbase}, {const}", "v_lshlrev_b32 v218, 3, v0"]
        if nlines <= 32:
            o.append(f"s_mov_b64 exec, {hex(mask)}")
        else:
            o += [f"s_mov_b32 exec_lo, -1", f"s_mov_b32 exec_hi, {hex(mask >> 32)}"]
        o += [f"!buffer_load_dword v{dst}, v218, s[96:99], s34 offen sc1", "s_mov_b64 exec, -1"]
        return o

    def zero_groups(self, Z, big, small):
        zs = []
        for sb_, c_, n_ in big:
            for i in range(n_):
                zs.append([f"s_add_u32 s35, {sb_}, {c_ + i*1024}", f"buffer_store_dwordx4 {vr(Z)}, v0, s[96:99], s35 offen sc1"])
        for c_ in small:
            zs.append(["v_and_b32 v218, 0xf8, v7", f"s_add_u32 s35, s27, {c_}", f"buffer_store_dwordx2 {vr(Z, 2)}, v218, s[96:99], s35 offen sc1"])
        return zs

    def aug_split(self, c, t1, t2, D):
        return [f"v_cvt_pk_bf16_f32 v{D}, v{c}, v{c}", f"v_and_b32 v{t1}, 0xffff0000, v{D}", f"v_sub_f32 v{t1}, v{c}, v{t1}",
                f"v_cvt_pk_bf16_f32 v{D+1}, v{t1}, v{c}", f"v_lshlrev_b32 v{t2}, 16, v{D+1}", f"v_sub_f32 v{t2}, v{t1}, v{t2}",
                f"v_cvt_pk_bf16_f32 v{D+2}, v{t2}, v{t1}", f"v_mov_b32 v{D+3}, 0"]

    def prologue(self):
        a = self.a
        X = 16
        a(f"{KNAME}:")
        a("s_load_dwordx16 s[64:79], s[0:1], 0")
        a("s_load_dwordx4 s[80:83], s[0:1], 64")
        a("s_cmp_ge_u32 s2, 256")
        a("s_cbranch_scc1 main_done")
        a("v_lshrrev_b32 v1, 6, v0")
        a("v_and_b32 v7, 63, v0")
        a("v_readfirstlane_b32 s14, v1")
        a("s_and_b32 s12, s2, 7"); a("s_lshl_b32 s12, s12, 1"); a("s_bfe_u32 s34, s2, 0x10003"); a("s_add_u32 s12, s12, s34")
        a("s_lshr_b32 s13, s2, 4")
        a("s_mul_i32 s16, s13, 5"); a("s_add_u32 s16, s16, s12"); a("s_and_b32 s16, s16, 15")
        if CPF:
            Lp = self.label("cpf")
            a("s_getpc_b64 s[34:35]")
            a("Lpc_base:")
            a("s_cmp_eq_u32 s14, 3"); a(f"s_cbranch_scc0 {Lp}")
            a("s_lshr_b32 s36, s2, 3"); a("s_lshl_b32 s36, s36, 11")
            a("v_lshl_add_u32 v196, v7, 7, s36")
            a("s_mov_b32 s36, main_done - Lpc_base")
            a("v_min_u32 v196, s36, v196")
            a.uncounted = True
            a("s_mov_b64 exec, 0xffff")
            a("!global_load_dword v223, v196, s[34:35]")
            a("s_mov_b64 exec, -1")
            a.uncounted = False
            a(f"{Lp}:")
        a("v_lshrrev_b32 v196, 2, v7")
        a("v_and_b32 v197, 3, v7")
        a("v_lshlrev_b32 v0, 4, v7")
        a("v_and_b32 v206, 31, v7"); a("v_lshrrev_b32 v207, 5, v7")
        a("s_lshr_b32 s34, s16, 2"); a("s_and_b32 s35, s16, 3")
        a("s_add_u32 s36, s34, 1"); a("s_cmp_ge_u32 s36, 3"); a("s_cselect_b32 s36, 0, s36")
        a("s_mul_i32 s36, s36, 896"); a("s_mul_i32 s37, s13, 56"); a("s_add_u32 s36, s36, s37")
        a("s_mul_i32 s37, s35, 7"); a("s_lshl_b32 s38, s14, 1"); a("s_add_u32 s38, s38, s37")
        a(f"s_mul_i32 s39, s38, {16*2688}"); a("s_add_u32 s36, s36, s39")
        a(f"s_add_u32 s39, s36, {16*2688}")
        a("s_cmp_eq_u32 s14, 3"); a("s_cselect_b32 s39, 0x40000000, s39")
        a("s_mul_i32 s40, s13, 3"); a("s_add_u32 s40, s40, s34")
        a("s_mul_i32 s41, s40, 28"); a("s_add_u32 s41, s41, s37"); a("s_lshl_b32 s41, s41, 10"); a(f"s_add_u32 s41, s41, {WQKV}")
        a("s_lshl_b32 s42, s40, 4"); a("s_lshl_b32 s43, s35, 2"); a("s_add_u32 s42, s42, s43"); a("s_add_u32 s42, s42, s14")
        a("s_lshl_b32 s42, s42, 8"); a(f"s_add_u32 s42, s42, {CSP}")
        a("s_cmp_lt_u32 s16, 12"); a("s_cselect_b32 s43, -1, 0")
        a("v_mul_u32_u24 v198, 2688, v196"); a("v_lshl_add_u32 v198, v197, 4, v198")
        a("s_lshl_b32 s44, s14, 11"); a(f"s_add_u32 s44, s44, {32*1024}")
        a("v_lshrrev_b32 v199, 3, v7"); a("v_and_b32 v200, 7, v7")
        a("v_lshrrev_b32 v201, 1, v199"); a("v_xor_b32 v200, v200, v201"); a("v_lshlrev_b32 v200, 4, v200")
        a("v_mul_u32_u24 v201, 896, v199")
        a("v_xor_b32 v202, 64, v200")
        a("v_add_u32 v200, v200, v201"); a("v_add_u32 v202, v202, v201")
        a("s_lshl_b32 s48, s12, 2"); a("s_add_u32 s48, s48, s14"); a(f"s_mul_i32 s48, s48, {32*896}")
        a(f"s_mul_i32 s46, s14, {28*1024}"); a(f"s_add_u32 s46, s46, {40*1024}")
        a("s_lshr_b32 s47, s13, 1"); a("s_min_u32 s47, s47, 6")
        a("s_waitcnt lgkmcnt(0)")
        if TS:
            a("s_memrealtime s[52:53]"); a("s_waitcnt lgkmcnt(0)")
        a("s_mov_b64 s[84:85], s[66:67]"); a(f"s_and_b32 s86, s43, {448*1344*2}"); a("s_mov_b32 s87, 0x20000")
        a("s_mov_b32 s8, s64"); a("s_mov_b32 s9, s65"); a(f"s_mov_b32 s10, {2048*896}"); a("s_mov_b32 s11, 0x20000")
        tokA = a.tok(); tokX0 = a.tok()
        a("s_mov_b32 m0, s44")
        a("buffer_load_dwordx4 v198, s[84:87], s36 offen lds", tok=tokA)
        a("s_add_u32 m0, s44, 1024")
        a("buffer_load_dwordx4 v198, s[84:87], s39 offen lds", tok=tokA)
        a("s_mov_b32 s64, s47")
        def xdma(n0, n1, tok=None):
            for n in range(n0, n1):
                rq = n & 3
                if rq == 0:
                    a("s_lshl_b32 s65, s64, 12"); a("s_add_u32 s65, s65, s46")
                    a("s_lshl_b32 s66, s64, 7"); a("s_add_u32 s66, s66, s48")
                    a("s_add_u32 s64, s64, 1"); a("s_cmp_eq_u32 s64, 7"); a("s_cselect_b32 s64, 0, s64")
                a(f"s_add_u32 m0, s65, {rq*1024}")
                a(f"s_add_u32 s67, s66, {rq*8*896}")
                a(f"buffer_load_dwordx4 {'v200' if rq % 2 == 0 else 'v202'}, s[8:11], s67 offen lds", tok=tok)
        xdma(0, 4, tokX0)
        Ln = self.label("nonce")
        a("s_cmp_eq_u32 s2, 0"); a(f"s_cbranch_scc0 {Ln}")
        a("s_cmp_eq_u32 s14, 0"); a(f"s_cbranch_scc0 {Ln}")
        a.uncounted = True
        a("s_memrealtime s[34:35]")
        a("s_waitcnt lgkmcnt(0)")
        a("s_or_b32 s34, s34, 1")
        a("v_mov_b32 v210, s34"); a("v_mov_b32 v211, s35")
        a("s_mov_b64 exec, 1")
        a("global_store_dwordx2 v0, v[210:211], s[80:81] sc1")
        a("s_mov_b64 exec, -1")
        a.uncounted = False
        a(f"{Ln}:")
        xdma(4, X0N)
        a("s_mov_b32 s4, s82"); a("s_mov_b32 s5, s83"); a("s_mov_b32 s6, 0x10000000"); a("s_mov_b32 s7, 0x20000")
        a("s_add_u32 s92, s82, s41"); a("s_addc_u32 s93, s83, 0"); a("s_and_b32 s94, s43, 7168"); a("s_mov_b32 s95, 0x20000")
        a("s_mov_b32 s96, s82"); a("s_mov_b32 s97, s83"); a("s_and_b32 s98, s43, 0x10000000"); a("s_mov_b32 s99, 0x20000")
        if TS:
            a("s_lshl_b32 s51, s2, 2"); a("s_add_u32 s51, s51, s14"); a("s_lshl_b32 s51, s51, 9"); a(f"s_add_u32 s51, s51, {DBG}")
            a.uncounted = True
            a("s_mov_b64 exec, 1")
            a("v_mov_b32 v222, s52"); a(f"s_add_u32 s34, s51, {24*8}")
            a(f"buffer_store_dword v222, v0, {SRD}, s34 offen")
            a("s_mov_b64 exec, -1")
            a.uncounted = False
        a("v_lshlrev_b32 v7, 3, v7")
        a("v_bfe_u32 v205, v7, 5, 2")
        a("v_lshl_add_u32 v205, v207, 3, v205"); a("v_lshlrev_b32 v205, 6, v205")
        a("v_bfe_u32 v203, v7, 7, 1"); a("v_lshl_add_u32 v205, v203, 5, v205")
        a("v_bfe_u32 v203, v7, 3, 1"); a("v_lshl_add_u32 v205, v203, 4, v205")
        a("v_bfe_u32 v203, v7, 4, 1"); a("v_lshl_add_u32 v205, v203, 3, v205")
        a("v_add_u32 v203, s44, v205")
        a("v_cmp_gt_u32 vcc, 28, v206")
        a("v_cndmask_b32 v201, 0, -1, vcc")
        a("v_mov_b32 v209, 0x3f803f80")
        a("s_lshl_b32 s34, s14, 11"); a("v_add_u32 v199, s34, v0")
        a("v_lshrrev_b32 v198, 1, v7")
        a("v_bfe_u32 v204, v206, 1, 3"); a("v_xor_b32 v204, v204, v207"); a("v_lshlrev_b32 v204, 4, v204")
        a("v_lshl_add_u32 v204, v206, 7, v204"); a("v_add_u32 v204, s46, v204")
        a("s_and_b32 s34, s13, 1"); a("s_lshl_b32 s34, s34, 6"); a("v_xor_b32 v208, s34, v204")
        a("s_lshl_b32 s34, s47, 12"); a("v_add_u32 v208, s34, v208"); a("v_xor_b32 v197, 32, v208")
        for e in range(8):
            a(f"v_mov_b32 v{188+e}, 0")
        a.wait_tok(tokA)
        for b in range(2):
            for m in range(2):
                a(f"ds_read_b64_tr_b16 {vr(128+4*b+2*m, 2)}, v203 offset:{b*1024 + m*256}")
        for b in range(2):
            for k in range(4):
                a(f"v_and_b32 v{128+4*b+k}, v201, v{128+4*b+k}")
            a(f"buffer_store_dwordx4 {vr(128+4*b)}, v199, s[92:95], 0 offen offset:{b*1024} sc1")
        for b in range(2):
            for k in range(4):
                a(f"v_dot2_f32_bf16 v{188+k}, v{128+4*b+k}, v209, v{188+k}")
        a("v_add_f32 v188, v188, v189"); a("v_add_f32 v190, v190, v191"); a("v_add_f32 v188, v188, v190")
        a("buffer_store_dword v188, v198, s[96:99], s42 offen sc1")
        a("s_lshl_b32 s15, s12, 20"); a(f"s_add_u32 s15, s15, {GRP0}")
        a("s_mul_i32 s34, s14, 14"); a("s_add_u32 s34, s34, s13"); a("s_lshl_b32 s34, s34, 8"); a("s_add_u32 s34, s34, s15"); a(f"s_add_u32 s34, s34, {GST[0]}")
        a("s_cmp_lt_u32 s13, 14"); a("s_cselect_b32 s34, s34, 0x40000000")
        a.wait_tok(tokX0)
        a("ds_read_b128 v[136:139], v208")
        a("ds_read_b128 v[140:143], v197")
        for k in range(8):
            o = 192 + 2 * (k & 1)
            a(f"v_dot2_f32_bf16 v{o}, v{136+k}, v209, v{o}")
            a(f"v_dot2_f32_bf16 v{o+1}, v{136+k}, v{136+k}, v{o+1}")
        a("v_add_f32 v192, v192, v194"); a("v_add_f32 v193, v193, v195")
        a("v_mov_b32 v194, v192"); a("v_mov_b32 v195, v193")
        a("v_and_b32 v197, 0xf8, v7")
        a("v_permlane32_swap_b32 v192, v194"); a("v_permlane32_swap_b32 v193, v195")
        a("v_add_f32 v192, v192, v194"); a("v_add_f32 v193, v193, v195")
        a(f"buffer_store_dwordx2 v[192:193], v197, {SRD}, s34 offen sc1")
        self.ts(2)
        Lt = self.label("tag"); Lok = self.label("tagok")
        a("v_mov_b32 v203, 0")
        a("global_load_dwordx2 v[210:211], v203, s[80:81] sc1")
        xdma(X0N, 28)
        Lw2, Lwo, Lu = (self.label(x) for x in ("uw2", "uwo", "uend"))
        a("s_sub_u32 s3, 15, s16"); a("s_lshl_b32 s3, s3, 4"); a("s_add_u32 s3, s3, s13")
        a("s_and_b32 s40, s14, 1"); a("s_lshr_b32 s41, s14, 1")
        a("s_mov_b32 s39, 0"); a("s_mov_b32 s70, 0x40000000"); a("s_mov_b32 s94, 7168"); a("s_mov_b32 s38, 32")
        a(f"s_mul_i32 s67, s14, {7*1024}"); a(f"s_mov_b32 s71, {152*1024}")
        a("s_cmp_ge_u32 s3, 168"); a(f"s_cbranch_scc1 {Lwo}")
        a("s_cmp_ge_u32 s3, 112"); a(f"s_cbranch_scc1 {Lw2}")
        a("s_lshr_b32 s34, s3, 2"); a("s_and_b32 s35, s3, 3")
        a("s_mov_b32 s36, 3584")
        a("s_lshl_b32 s37, s35, 1"); a("s_add_u32 s37, s37, s40"); a(f"s_mul_i32 s37, s37, {56*3584}"); a("s_lshl_b32 s64, s34, 7"); a("s_add_u32 s37, s37, s64")
        a("s_cmp_eq_u32 s41, 0"); a("s_cselect_b32 s84, s72, s74"); a("s_cselect_b32 s85, s73, s75"); a(f"s_mov_b32 s86, {448*1792*2}")
        a("s_lshl_b32 s64, s34, 2"); a("s_add_u32 s64, s64, s14")
        a("s_lshl_b32 s70, s64, 2"); a("s_add_u32 s70, s70, s35")
        a(f"s_mul_i32 s66, s70, {7*1024}"); a(f"s_add_u32 s66, s66, {W13}")
        a("s_lshl_b32 s70, s70, 8"); a(f"s_add_u32 s70, s70, {CSP13}")
        a("s_lshl_b32 s65, s14, 5"); a("s_mov_b32 s38, 14336")
        a(f"s_branch {Lu}")
        a(f"{Lw2}:")
        a("s_sub_u32 s34, s3, 112"); a("s_and_b32 s35, s34, 7"); a("s_lshr_b32 s34, s34, 3")
        a("s_mov_b32 s36, 896")
        a("s_lshl_b32 s37, s35, 2"); a("s_add_u32 s37, s37, s14"); a(f"s_mul_i32 s37, s37, {56*896}"); a("s_lshl_b32 s64, s34, 7"); a("s_add_u32 s37, s37, s64")
        a("s_mov_b64 s[84:85], s[76:77]"); a(f"s_mov_b32 s86, {1792*448*2}")
        a("s_lshl_b32 s64, s34, 1"); a("s_add_u32 s64, s64, s40"); a("s_lshl_b32 s64, s64, 4")
        a("s_lshl_b32 s65, s35, 1"); a("s_add_u32 s64, s64, s65"); a("s_add_u32 s64, s64, s41")
        a(f"s_mul_i32 s66, s64, {7*1024}"); a(f"s_add_u32 s66, s66, {W2}")
        a(f"s_mul_i32 s65, s41, {112*128}"); a("s_lshl_b32 s64, s40, 6"); a("s_add_u32 s65, s65, s64")
        a(f"s_branch {Lu}")
        a(f"{Lwo}:")
        a("s_sub_u32 s34, s3, 168"); a("s_and_b32 s35, s34, 1"); a("s_lshr_b32 s34, s34, 1")
        a("s_mov_b32 s36, 896"); a("s_mov_b32 s39, 4")
        a("s_lshl_b32 s37, s35, 2"); a("s_add_u32 s37, s37, s14"); a(f"s_mul_i32 s37, s37, {56*896}"); a("s_lshl_b32 s64, s34, 7"); a("s_add_u32 s37, s37, s64")
        a("s_mov_b64 s[84:85], s[68:69]")
        a("s_cmp_lt_u32 s3, 182"); a(f"s_cselect_b32 s86, {448*448*2}, 0"); a("s_cselect_b32 s94, 8192, 0")
        a("s_lshl_b32 s64, s34, 1"); a("s_add_u32 s64, s64, s40"); a("s_lshl_b32 s64, s64, 2")
        a("s_lshl_b32 s65, s35, 1"); a("s_add_u32 s64, s64, s65"); a("s_add_u32 s64, s64, s41")
        a("s_lshl_b32 s66, s64, 13"); a(f"s_add_u32 s66, s66, {WO}")
        a("s_lshl_b32 s65, s41, 14"); a("s_lshl_b32 s64, s40, 6"); a("s_add_u32 s65, s65, s64")
        a("s_lshl_b32 s67, s14, 13"); a("s_add_u32 s71, s67, 7168")
        a(f"{Lu}:")
        a("s_add_u32 s92, s82, s66"); a("s_addc_u32 s93, s83, 0")
        a("v_bfe_u32 v196, v7, 6, 3"); a("v_bfe_u32 v197, v7, 3, 3")
        a("v_mul_lo_u32 v198, v196, s36"); a("v_lshl_add_u32 v198, v197, 4, v198")
        a("v_mov_b32 v201, 0x40000000")
        a("v_add_u32 v199, s39, v196")
        a("v_cmp_le_u32 vcc, 8, v199")
        a("v_cndmask_b32 v199, v198, v201, vcc")
        a("s_lshl_b32 s64, s36, 3")
        a("s_sub_u32 s66, 8, s39"); a("s_mul_i32 s66, s66, s36")
        for i in range(8):
            a(f"s_add_u32 m0, s67, {i*1024}" if i < 7 else "s_mov_b32 m0, s71")
            a(f"buffer_load_dwordx4 {'v199' if (i & 3) == 3 else 'v198'}, s[84:87], s37 offen lds")
            if i < 7:
                a(f"s_add_u32 s37, s37, {'s66' if i == 3 else 's64'}")
        a("v_bfe_u32 v205, v7, 5, 2")
        a("v_lshl_add_u32 v205, v207, 3, v205"); a("v_lshlrev_b32 v205, 7, v205")
        a("v_bfe_u32 v201, v7, 7, 1"); a("v_mul_lo_u32 v201, v201, s38"); a("v_add_u32 v205, v205, v201")
        a("v_bfe_u32 v201, v7, 3, 1"); a("v_lshl_add_u32 v205, v201, 4, v205")
        a("v_bfe_u32 v201, v7, 4, 1"); a("v_lshl_add_u32 v205, v201, 3, v205")
        a("v_add_u32 v205, s65, v205")
        a("s_lshl_b32 s3, s3, 3")
        a("s_lshl_b32 s69, s16, 3")
        a("v_add_u32 v1, 0x10000, v0")
        a("v_add_u32 v2, 0x20000, v0")
        a(f"s_mul_i32 s48, s13, {84*1024}"); a(f"s_add_u32 s48, s48, {WQKV}")
        a(f"s_mul_i32 s49, s13, {196*1024}"); a(f"s_add_u32 s49, s49, {W13}")
        a("s_mov_b32 s33, 0x40000")
        a("s_getreg_b32 s63, hwreg(HW_REG_XCC_ID, 0, 4)")
        a("s_mov_b32 s16, s15")
        a("s_cmp_ge_u32 s13, 7"); a("s_cselect_b32 s40, 1, 0")
        a("s_mul_i32 s41, s40, 7"); a("s_sub_u32 s41, s13, s41")
        a("s_min_u32 s41, s41, 6")
        a("s_lshr_b32 s36, s14, 1"); a("s_and_b32 s37, s14, 1")
        a("s_lshl_b32 s38, s40, 1")
        a("s_add_u32 s39, s38, s36")
        a("s_sub_u32 s38, s38, s36"); a("s_add_u32 s38, s38, 1")
        a("s_lshl_b32 s41, s41, 1")
        a("s_add_u32 s46, s41, s37")
        a("s_sub_u32 s47, s41, s37"); a("s_add_u32 s47, s47, 1")
        a(f"s_mul_i32 s17, s14, {28*1024}"); a("s_add_u32 s17, s17, s16"); a("s_mov_b32 s15, s17")
        a(f"s_mul_i32 s18, s14, {14*256}"); a("s_add_u32 s18, s18, s16"); a("s_mov_b32 s32, s18")
        a("s_lshl_b32 s19, s12, 5"); a("s_add_u32 s19, s19, s13"); a("s_lshl_b32 s19, s19, 14"); a(f"s_add_u32 s19, s19, {KV0}")
        a("s_add_u32 s20, s14, 1"); a("s_lshl_b32 s20, s20, 19"); a("s_sub_u32 s20, s19, s20")
        a("s_lshl_b32 s34, s14, 12"); a("s_add_u32 s19, s19, s34")
        a("s_lshl_b32 s21, s14, 4"); a("s_add_u32 s21, s21, s13"); a("s_lshl_b32 s21, s21, 11"); a("s_add_u32 s21, s21, s16"); a(f"s_add_u32 s21, s21, {GO}")
        a("s_lshl_b32 s34, s14, 13"); a("s_add_u32 s34, s34, s16"); a(f"s_add_u32 s34, s34, {GO}")
        a("s_lshl_b32 s22, s39, 15"); a("s_add_u32 s22, s22, s34")
        a("s_lshl_b32 s23, s38, 15"); a("s_add_u32 s23, s23, s34")
        a(f"s_add_u32 s34, s17, {GH}")
        a(f"s_mul_i32 s24, s39, {112*1024}"); a("s_add_u32 s24, s24, s34")
        a(f"s_mul_i32 s25, s38, {112*1024}"); a("s_add_u32 s25, s25, s34")
        a("s_mul_i32 s34, s39, 14"); a("s_add_u32 s34, s34, s46")
        a("s_lshl_b32 s26, s34, 11"); a("s_add_u32 s26, s26, s16")
        a("s_lshl_b32 s27, s34, 8"); a("s_add_u32 s27, s27, s16")
        a("s_lshl_b32 s28, s14, 4"); a("s_add_u32 s28, s28, s13"); a(f"s_mul_i32 s28, s28, {7*1024}"); a("s_add_u32 s28, s28, s16"); a(f"s_add_u32 s28, s28, {GH}")
        a("s_lshl_b32 s34, s12, 2"); a("s_add_u32 s34, s34, s39")
        a(f"s_mul_i32 s57, s34, {32*896}"); a("s_lshl_b32 s34, s46, 6"); a("s_add_u32 s57, s57, s34")
        a("s_lshl_b32 s34, s14, 13"); a(f"s_add_u32 s34, s34, {WO}")
        a("s_lshl_b32 s58, s46, 15"); a("s_add_u32 s58, s58, s34")
        a("s_lshl_b32 s59, s47, 15"); a("s_add_u32 s59, s59, s34")
        a(f"s_mul_i32 s34, s14, {28*1024}"); a(f"s_add_u32 s34, s34, {W2}")
        a(f"s_mul_i32 s60, s46, {112*1024}"); a("s_add_u32 s60, s60, s34")
        a(f"s_mul_i32 s61, s47, {112*1024}"); a("s_add_u32 s61, s61, s34")
        a("s_mov_b32 s46, s41")
        a("v_mul_u32_u24 v208, 896, v206"); a("v_lshl_add_u32 v208, v207, 4, v208")
        a("buffer_load_dwordx4 v[8:11], v208, s[8:11], s57 offen")
        a("buffer_load_dwordx4 v[12:15], v208, s[8:11], s57 offen offset:32")
        a("s_lshl_b32 s29, s12, 8")
        a("s_lshl_b32 s34, s13, 3"); a("s_add_u32 s30, s29, s34")
        a("s_lshl_b32 s62, s12, 4"); a("s_add_u32 s62, s62, s13"); a("s_lshl_b32 s62, s62, 7"); a(f"s_add_u32 s62, s62, {F1}")
        a("s_add_u32 s34, s14, 1"); a("s_lshl_b32 s34, s34, 11"); a("s_sub_u32 s31, s62, s34")
        a("s_sub_u32 s50, s14, 1")
        a(f"s_mov_b32 s52, {f32(1.0/448)}"); a(f"s_mov_b32 s53, {f32(1e-5)}")
        a(f"s_mov_b32 s54, {f32(28**-0.5 * math.log2(math.e))}"); a(f"s_mov_b32 s55, {f32(-math.log2(math.e))}")
        a(f"s_mov_b32 s56, {f32(-2.0**100)}")
        a("s_mov_b32 s40, 0"); a("s_mov_b32 s41, -1")
        if DTS:
            a("s_lshl_b32 s51, s2, 2"); a("s_add_u32 s51, s51, s14"); a(f"s_sub_u32 s51, s51, {DTS*4}")
            a("s_mov_b64 s[44:45], s[80:81]")
        a("v_readfirstlane_b32 s100, v210")
        a("v_readfirstlane_b32 s101, v211")
        a("s_cmp_lg_u32 s100, 0")
        a(f"s_cbranch_scc1 {Lok}")
        a.uncounted = True
        a(f"{Lt}:")
        a("global_load_dwordx2 v[210:211], v203, s[80:81] sc1")
        a("s_waitcnt vmcnt(0)")
        a("v_readfirstlane_b32 s100, v210")
        a("v_readfirstlane_b32 s101, v211")
        a("s_sub_u32 s33, s33, 1")
        a("s_cmp_eq_u32 s33, 0")
        a("s_cbranch_scc1 main_done")
        a("s_cmp_lg_u32 s100, 0")
        a(f"s_cbranch_scc0 {Lt}")
        a.uncounted = False
        a(f"{Lok}:")
        a("s_barrier")
        def sig():
            a("s_lshl_b32 s35, s13, 8"); a("s_add_u32 s35, s35, s69")
            self.signal("s35", PKA, False)
            a("s_add_u32 s35, s101, s63")
            a("v_mov_b32 v221, s35")
            a(f"s_add_u32 s34, s30, {XCCT}")
            a("s_mov_b64 exec, 1")
            a(f"buffer_store_dwordx2 v[220:221], v0, {SRD}, s34 offen sc1")
            a("s_mov_b64 exec, -1")
        self.wave0_else(sig, None)
        self.dts()
        self.ts(2)
        a("v_lshlrev_b32 v4, 4, v206"); a(f"v_add_u32 v4, {MISC}, v4")
        a("v_cmp_eq_u32 vcc, 28, v206")
        a("v_cndmask_b32 v5, 0, 1.0, vcc")
        a("s_lshl_b32 s34, s14, 7"); a(f"s_add_u32 s34, s34, {L_ST}")
        a("v_lshl_add_u32 v3, v206, 2, s34")
        a("v_lshl_add_u32 v6, v207, 4, s34")
        for k in range(1, 4):
            a(f"v_xor_b32 v{196+k}, {32*k}, v204")
        a.drain(lgkm=False)
        a("s_barrier")
        for i in range(8):
            for m in range(2):
                a(f"ds_read_b64_tr_b16 {vr(224+4*i+2*m, 2)}, v205 offset:{i*2048 + m*512}")
        for k in range(4):
            a(f"v_mov_b32 v{188+k}, 0")
        for i in range(7):
            for k in range(4):
                a(f"v_dot2_f32_bf16 v{188+k}, v{224+4*i+k}, v209, v{188+k}")
        a("v_add_f32 v188, v188, v189"); a("v_add_f32 v190, v190, v191"); a("v_add_f32 v5, v188, v190")
        a("s_mov_b64 s[96:97], s[92:93]"); a("s_mov_b32 s98, s94"); a("s_mov_b32 s47, s70")
        for ks in range(28):
            a(f"ds_read_b128 {vr(X+4*ks)}, {'v204' if ks % 4 == 0 else 'v%d' % (196 + ks % 4)} offset:{(ks >> 2)*4096}")
        a("s_mov_b32 s8, s78"); a("s_mov_b32 s9, s79")
        a("v_lshlrev_b32 v207, 2, v207")
        a("v_sub_u32 v207, v206, v207")
        for rho in range(16):
            kk = 8 * (rho >> 2) + (rho & 3)
            a(f"v_cmp_le_i32 s[{64+2*rho}:{65+2*rho}], {kk}, v207")
        a("s_lshl_b32 s35, s13, 8")
        def polls():
            Lb = self.label("pb"); Lc = self.label("pc")
            a("s_cmp_eq_u32 s14, 0"); a(f"s_cbranch_scc0 {Lb}")
            self.poll("s35", PKA, "0xfff")
            a(f"s_branch {Lc}")
            a(f"{Lb}:")
            self.xcc_poll()
            a("s_mov_b64 exec, -1")
            a(f"{Lc}:")
        self.wave_if("s_cmp_lt_u32 s14, 2", polls, None)
        a("s_lshr_b32 s37, s14, 1"); a(f"s_mul_i32 s37, s37, {28*1024}")
        a("s_and_b32 s39, s14, 1"); a(f"s_mul_i32 s39, s39, {7*1024}"); a("s_add_u32 s37, s37, s39")
        a(f"s_mul_i32 s39, s14, {7*1024}")
        a.drain()
        a("s_barrier")
        self.ts(2)
        self.tokW = [a.tok(), a.tok(), a.tok()]
        a("s_add_u32 s38, s48, s37")
        self.dma("s38", 0, "s37", 98 * 1024, 7, flags="sc1", tok=self.tokW[0])
        self.dma("s38", 14 * 1024, "s37", 112 * 1024, 7, flags="sc1", tok=self.tokW[1])

    def xstream(self, S, a, sx, xoff, sst, stoff, X, T, gaps):
        items = [self.xload(sx, xoff, X, ks) for ks in range(28)]
        sitems = []
        for u in range(7):
            g = []
            if u == 0:
                g.append(f"s_add_u32 s35, {sst}, {stoff}")
            g.append(f"buffer_load_dwordx2 {vr(T+2*u, 2)}, v7, {SRD}, s35 offen offset:{u*512} sc1")
            sitems.append(g)
        order = items[:SPOS] + sitems + items[SPOS:]
        for g in order[:XD]:
            for t in g:
                a(t)
        pos = {}
        for k, g in enumerate(order[XD:]):
            S.post(gaps[k], self.grp(g), cost=1.5)
            pos[XD + k] = gaps[k]
        return pos[SPOS + 6]

    def p1(self, l):
        a = self.a
        X, AK, AV, AQ, WB, RV, AB = 16, 128, 144, 160, 176, 200, 212
        NB = 6
        S = Sched(budget=5)
        seq = []
        for ks in range(29):
            seq.append((0, ks)); seq.append((1, ks))
        for ks in range(29):
            seq.append((2, ks))
        ACC = {0: AK, 1: AV, 2: AQ}
        idx = {}
        for n, (p, ks) in enumerate(seq):
            idx[(p, ks)] = n
            wb = WB + 4 * (n % NB)
            if ks < 28:
                base, off = lds_blk(WQ_BLK[p] + ks)
                S.post(n - NB, f"ds_read_b128 {vr(wb)}, {base} offset:{off}")
                xb = vr(X + 4 * ks)
            else:
                S.post(n - NB, f"ds_read_b128 {vr(wb)}, v4 offset:{p*512}")
                xb = vr(AB)
            ac = vr(ACC[p], 16)
            c = "0" if ks == 0 else ac
            if p == 1:
                S.add_main(f"{MF} {ac}, {xb}, {vr(wb)}, {c}")
            else:
                S.add_main(f"{MF} {ac}, {vr(wb)}, {xb}, {c}")
        dq = idx[(0, 28)]
        e0 = idx[(1, 28)] + 1
        if l == 1:
            gaps = [int(G1 * k) for k in range(40)]
            gs = self.xstream(S, a, "s17", GX[2], "s18", GST[2], X, AQ, gaps)
            for t in self.stats_tree(AQ, 7) + self.stats_finish(AQ, AB):
                S.fill(t, earliest=gs + 14, deadline=dq)
        a("s_lshl_b32 s34, s14, 12")
        a("v_add_u32 v220, s34, v0")
        if l == 0:
            U, C = 224, 240
            n2, n3 = idx[(0, 14)] - NB, idx[(0, 28)] - NB
            C = RV
            a(f"v_lshrrev_b32 v{AQ+14}, 1, v7"); a(f"v_add_u32 v{AQ+15}, 4096, v0")
            l4 = f"v{AQ+14}"
            g = [[f"s_add_u32 s35, s18, {GST[0]}"] + [f"buffer_load_dwordx2 {vr(AQ+2*u, 2)}, v7, {SRD}, s35 offen offset:{u*512} sc1" for u in range(2)]]
            g += [[f"buffer_load_dwordx2 {vr(AQ+2*u, 2)}, v7, {SRD}, s35 offen offset:{u*512} sc1" for u in us] for us in ((2, 3), (4, 5), (6,))]
            g[-1] += ["s_min_u32 s36, s14, 2", "s_mul_i32 s35, s13, 3", "s_add_u32 s35, s35, s36", "s_lshl_b32 s35, s35, 12", f"s_add_u32 s35, s35, {CSP}"]
            cr = [C + k for k in range(12)] + [216, 217, 218, 219]
            g += [[f"buffer_load_dword v{cr[k]}, {l4}, {SRD}, s35 offen offset:{k*256} sc1" for k in (k0, k0 + 1)] for k0 in range(0, 16, 2)]
            for k, gg in enumerate(g):
                S.post(k, self.grp(gg), cost=2)
            a("s_add_u32 s38, s48, s39")
            for k, gg in enumerate(self.dma_groups("s38", 56 * 1024, "s39", 70 * 1024, 7, per=1, flags="sc1")):
                S.post(12 + k, self.grp(gg, tok=self.tokW[2]), cost=1.5)
            tokU = a.tok()
            for i in range(8):
                S.post(UST + 2 * i, f"buffer_store_dwordx4 {vr(224+4*i)}, {'v0' if i < 4 else 'v%d' % (AQ+15)}, s[96:99], 0 offen offset:{(i%4)*1024} sc1", tok=tokU, cost=2)
            S.post(UST + 16, self.grp([f"buffer_store_dword v5, {l4}, {SRD}, s47 offen sc1", "v_bfe_u32 v221, v7, 3, 5", "v_cmp_eq_u32 vcc, 28, v221", "v_cndmask_b32 v5, 0, 1.0, vcc"], tok=tokU), cost=3)
            def st2(aa):
                aa.wait_tok(self.tokW[1])
                aa("s_barrier")
            def st3(aa):
                aa.wait_tok(self.tokW[2], tokU)
                aa.drain(vm=False)
                aa("s_barrier")
                aa("v_mov_b32 v222, v220")
                self.wave_if("s_cmp_eq_u32 s14, 3", lambda: self.signal("s3", PKF, False), None)
                aa("v_mov_b32 v220, v222")
            S.pre(n2, st2)
            S.pre(n3, st3)
            o = []
            for st in (8, 4, 2, 1):
                o += [f"v_add_f32 v{cr[i]}, v{cr[i]}, v{cr[i+st]}" for i in range(st)]
            o += [f"v_mov_b32 v{C+1}, v{C}", "s_lshl_b32 s36, s36, 9", f"v_add_u32 v{C+8}, s36, v4", f"v_permlane32_swap_b32 v{C}, v{C+1}", f"v_add_f32 v{C}, v{C}, v{C+1}"]
            o += self.aug_split(C, C + 1, C + 2, C + 4) + [f"ds_write_b128 v{C+8}, {vr(C+4)}"]
            for t in o:
                S.fill(t, earliest=n2 + 4, deadline=n3)
            for t in self.stats_tree(AQ, 7) + self.stats_finish(AQ, AB):
                S.fill(t, earliest=n2, deadline=dq)
        S.fill("ds_write_b32 v3, v217", earliest=30, deadline=e0)
        for q in range(3):
            S.fill(f"ds_read_b128 {vr(RV+4*q)}, v6 offset:{q*32}", deadline=e0)
        S.fill("v_mul_f32 v219, s54, v217", deadline=e0)
        tokS = a.tok()
        f = lambda t, tok=None: S.fill(t, earliest=e0, cost=0.5, tok=tok)
        for i in range(16):
            f(f"v_mul_f32 v{AK+i}, v217, v{AK+i}")
        for i in range(8):
            f(f"v_cvt_pk_bf16_f32 v{AK+i}, v{AK+2*i}, v{AK+2*i+1}")
        f(f"ds_read_b128 {vr(AK+8)}, v6 offset:96")
        f(f"buffer_store_dwordx4 {vr(AK)}, v0, {SRD}, s19 offen sc1", tokS)
        f(f"buffer_store_dwordx4 {vr(AK+4)}, v0, {SRD}, s19 offen offset:1024 sc1", tokS)
        for i in range(16):
            rv = RV + i if i < 12 else AK + 8 + (i - 12)
            f(f"v_fma_f32 v{AV+i}, v{AV+i}, v{rv}, v5")
        for i in range(8):
            f(f"v_cvt_pk_bf16_f32 v{AV+i}, v{AV+2*i}, v{AV+2*i+1}")
        f(f"buffer_store_dwordx4 {vr(AV)}, v0, {SRD}, s19 offen offset:2048 sc1", tokS)
        f(f"buffer_store_dwordx4 {vr(AV+4)}, v0, {SRD}, s19 offen offset:3072 sc1", tokS)
        for k, r in enumerate((AK, AK + 4, AV, AV + 4)):
            S.fill(f"ds_write_b128 v220, {vr(r)} offset:{8*4096+k*1024}", earliest=e0)
        PM = 152
        S.fill("v_mov_b32 v216, 0xffff", earliest=e0); S.fill("v_mov_b32 v218, 0xffff0000", earliest=e0)
        for i in range(8):
            S.fill(f"v_cndmask_b32 v{PM+i}, 0, v216, s[{64+4*i}:{65+4*i}]", earliest=e0)
            S.fill(f"v_cndmask_b32 v221, 0, v218, s[{66+4*i}:{67+4*i}]", earliest=e0)
            S.fill(f"v_or_b32 v{PM+i}, v{PM+i}, v221", earliest=e0)
        S.pre(e0, lambda aa: self.ts(2))
        for k in (0, 1, 20, 40):
            S.pre(k, lambda aa: self.ts(3))
        S.emit(a)
        a("v_mov_b32 v176, v220")
        a.wait_tok(tokS)
        a.drain(vm=False)
        a("s_barrier")
        def sg():
            self.signal("s62", 0, False)
        self.wave0_else(sg, None)
        for i in range(16):
            a(f"v_mul_f32 v{AQ+i}, v219, v{AQ+i}")
        a("v_mov_b32 v221, s56")
        a(f"v_cndmask_b32 v{AQ+12}, v{AQ+12}, v221, s[40:41]")
        for i in range(8):
            a(f"v_cvt_pk_bf16_f32 v{AQ+i}, v{AQ+2*i}, v{AQ+2*i+1}")
        a("v_mov_b32 v168, v176")
        if l == 0:
            self.xcc_poll()
            a.forget()
            a("v_cmp_eq_u32 vcc, s63, v218")
            a("s_mov_b64 exec, -1")
            a("s_mov_b32 s96, s4"); a("s_mov_b32 s97, s5"); a("s_mov_b32 s99, 0x20000")
            a("s_mov_b32 s0, s4"); a("s_mov_b32 s1, s5"); a("s_mov_b32 s3, 0x20000")
            if NOFAST:
                a("s_cmp_eq_u32 s4, -1")
            else:
                a("s_cmp_eq_u32 vcc_lo, 0xffff")
            a("s_cselect_b32 s98, 0x10000000, 0")
            a("s_cselect_b32 s2, 0, 0x10000000")
            a(f"s_cselect_b32 s63, 0, {SLOWD}")

    def p2(self, l):
        a = self.a
        Q, KF, SB, NM, PM, OA, VB = 160, 16, 88, 136, 152, 176, 192
        def halo():
            Lf = self.label("fill"); Lh = self.label("halo")
            a("s_lshl_b32 s37, s14, 14"); a("s_sub_u32 s37, 16384, s37")
            a("s_cmp_le_u32 s12, s14")
            a(f"s_cbranch_scc1 {Lf}")
            self.poll("s31", 0, "1")
            for half in range(2):
                for t in range(4):
                    a(f"s_add_u32 s34, s20, {t*4096 + half*2048}")
                    a(f"s_add_u32 m0, s37, {t*4096 + half*2048}")
                    for i in range(2):
                        a(f"buffer_load_dwordx4 v0, {SRD}, s34 offen offset:{i*1024} sc1 lds")
            a("s_waitcnt vmcnt(8)")
            a(f"s_branch {Lh}")
            a(f"{Lf}:")
            a("v_add_u32 v220, s37, v0")
            for i in range(8):
                a(f"v_mov_b32 v{SB+i}, 0")
            a("v_mov_b32 v221, 0x3f80")
            a(f"v_cndmask_b32 v{SB+6}, 0, v221, s[40:41]")
            for t in range(4):
                a(f"ds_write_b128 v220, {vr(SB)} offset:{t*4096}")
                a(f"ds_write_b128 v220, {vr(SB+4)} offset:{t*4096+1024}")
                a(f"ds_write_b128 v220, {vr(SB)} offset:{t*4096+2048}")
                a(f"ds_write_b128 v220, {vr(SB)} offset:{t*4096+3072}")
            a("s_waitcnt lgkmcnt(0)")
            a(f"{Lh}:")
        def pref():
            if l == 0:
                a("s_mul_i32 s35, s13, 7"); a("s_add_u32 s36, s35, 6"); a("s_lshr_b32 s35, s35, 2"); a("s_lshr_b32 s36, s36, 2")
                a("s_sub_u32 s36, s36, s35"); a("s_cmp_eq_u32 s36, 2"); a("s_cselect_b32 s47, 0xf00, 0"); a("s_or_b32 s47, s47, 0x00ff00ff")
                a("s_lshl_b32 s35, s35, 5")
                a("s_lshl_b32 s36, s46, 5"); a(f"s_add_u32 s36, s36, {112*8}")
                a("s_lshl_b32 s37, s46, 3"); a(f"s_add_u32 s37, s37, {168*8}")
                a("v_bfe_u32 v218, v7, 7, 2")
                a("v_mov_b32 v220, s35"); a("v_mov_b32 v221, s36"); a("v_mov_b32 v219, s37")
                a("v_cmp_eq_u32 vcc, 1, v218"); a("v_cndmask_b32 v220, v220, v221, vcc")
                a("v_cmp_eq_u32 vcc, 2, v218"); a("v_cndmask_b32 v220, v220, v219, vcc")
                a("v_and_b32 v218, 0x78, v7"); a("v_add_u32 v218, v218, v220")
                a("s_mov_b32 s35, 0")
                self.poll("s35", PKF, "s47", vaddr="v218", hi="3")
                a("s_sub_u32 s37, s14, 2"); a("s_mul_i32 s37, s37, 3")
                a("s_mul_i32 s38, s13, 7"); a("s_add_u32 s38, s38, s37"); a("s_lshl_b32 s38, s38, 10"); a(f"s_add_u32 s38, s38, {CSP13}")
                a("v_lshrrev_b32 v218, 1, v7")
                for k in range(16):
                    a(f"!buffer_load_dword v{SB+k}, v218, {SRD}, s38 offen offset:{k*256} sc1")
                a("s_lshl_b32 s37, s37, 9"); a("v_add_u32 v218, s37, v4")
            a("s_sub_u32 s37, s14, 2"); a(f"s_mul_i32 s37, s37, {19*1024}")
            a("s_add_u32 s38, s49, s37")
            if not (EXP & 2 and l == 1):
                self.dma("s38", 0, "s37", 48 * 1024, 19, flags="sc1")
            if l == 0:
                a("s_waitcnt vmcnt(19)")
                for t in range(4):
                    c = SB + 4 * t
                    for tt in (f"v_add_f32 v{c}, v{c}, v{c+1}", f"v_add_f32 v{c+2}, v{c+2}, v{c+3}", f"v_add_f32 v{c}, v{c}, v{c+2}",
                               f"v_mov_b32 v{c+1}, v{c}", "s_nop 1", f"v_permlane32_swap_b32 v{c}, v{c+1}", f"v_add_f32 v{c}, v{c}, v{c+1}"):
                        a("!" + tt if False else tt)
                    for tt in self.aug_split(c, c + 1, c + 2, SB + 16 + 4 * t):
                        a(tt)
                    a(f"ds_write_b128 v218, {vr(SB+16+4*t)} offset:{(3+t)*512}")
                a("s_waitcnt lgkmcnt(0)")
        self.wave_if("s_cmp_lt_u32 s14, 2", halo, pref)
        a(f"s_mul_i32 s37, s14, {17*1024}")
        a("s_add_u32 s38, s49, s37")
        a("s_barrier")
        self.ts()
        order = [8, 0, 1, 2, 3, 4, 5, 6, 7]
        S = Sched(budget=5)
        for n, i in enumerate(order):
            for s in range(2):
                S.post(2 * n + s - 6, f"ds_read_b128 {vr(KF+8*n+4*s)}, v168 offset:{i*4096+s*1024}")
        for n, i in enumerate(order):
            sb = SB + 16 * (n % 3)
            S.add_main(f"{MF} {vr(sb,16)}, {vr(KF+8*n)}, {vr(Q)}, 0")
            S.add_main(f"{MF} {vr(sb,16)}, {vr(KF+8*n+4)}, {vr(Q+4)}, {vr(sb,16)}")
            e = 2 * n + 3
            dl = 2 * (n + 3)
            if n == 0:
                continue
            if n == 1:
                sd = SB
                for k in range(16):
                    S.fill(f"v_cndmask_b32 v{sb+k}, v{sb+k}, v{sd+k}, s[{64+2*k}:{65+2*k}]", earliest=e, deadline=6)
                S.fill(f"v_max_f32 v216, v{sb}, v{sb+1}", earliest=e, deadline=dl)
                for k in range(1, 8):
                    S.fill(f"v_max3_f32 v216, v216, v{sb+2*k}, v{sb+2*k+1}", earliest=e, deadline=dl)
            else:
                for k in range(8):
                    S.fill(f"v_max3_f32 v216, v216, v{sb+2*k}, v{sb+2*k+1}", earliest=e, deadline=dl)
        if l == 0:
            for k in range(4):
                a(f"v_mov_b32 v{VB+k}, 0")
            for k, g in enumerate(self.zero_groups(VB, (("s21", 0, 2), ("s26", GX[1], 2), ("s26", GX[2], 2)), (GST[1], GST[2]))):
                S.post((3 * k) // 2, self.grp(g), cost=1.5)
        S.emit(a)
        a("v_mov_b32 v217, v216")
        a("v_permlane32_swap_b32 v216, v217")
        a("v_max_f32 v216, v216, v217")
        for k in range(16):
            a(f"v_sub_f32 v{NM+k}, 0, v216")
        nz = 8 if l == 0 else 0
        self.wave_if("s_cmp_lt_u32 s14, 2", lambda: a(f"s_waitcnt vmcnt({nz})"), None)
        a("s_barrier")
        self.ts(2)
        S = Sched(budget=10)
        nv = [0]
        def vread(i, s, gap):
            vb = VB + 4 * (nv[0] % 6); nv[0] += 1
            S.post(gap, f"ds_read_b128 {vr(vb)}, v168 offset:{i*4096+2048+s*1024}")
            return vb
        def smm(n):
            sb = SB + 16 * (n % 3)
            S.add_main(f"{MF} {vr(sb,16)}, {vr(KF+8*n)}, {vr(Q)}, {vr(NM,16)}")
            return S.add_main(f"{MF} {vr(sb,16)}, {vr(KF+8*n+4)}, {vr(Q+4)}, {vr(sb,16)}")
        first = [True]
        def pv(i, pb):
            for s in range(2):
                vb = vread(i, s, len(S.main) - 4)
                c = "0" if first[0] else vr(OA, 16)
                first[0] = False
                S.add_main(f"{MF} {vr(OA,16)}, {vr(vb)}, {vr(pb+4*s)}, {c}")
        def soft(n, e, dl):
            sb = SB + 16 * (n % 3)
            for k in range(8):
                S.fill(f"v_exp_f32 v{sb+2*k}, v{sb+2*k}", earliest=e, deadline=dl)
                S.fill(f"v_exp_f32 v{sb+2*k+1}, v{sb+2*k+1}", earliest=e, deadline=dl)
                if k >= 1:
                    S.fill(f"v_cvt_pk_bf16_f32 v{sb+k-1}, v{sb+2*k-2}, v{sb+2*k-1}", earliest=e, deadline=dl)
            S.fill(f"v_cvt_pk_bf16_f32 v{sb+7}, v{sb+14}, v{sb+15}", earliest=e, deadline=dl)
        smm(0); i1 = smm(1); i2 = smm(2)
        sb1 = SB + 16
        for k in range(16):
            S.fill(f"v_cndmask_b32 v{sb1+k}, v{sb1+k}, v{SB+k}, s[{64+2*k}:{65+2*k}]", earliest=i1 + 1, deadline=6)
        i3 = smm(3)
        soft(1, i1 + 1, 8)
        for k in range(8):
            S.fill(f"v_bfi_b32 v{sb1+8+k}, v{PM+k}, 0, v{sb1+k}", deadline=8)
            S.fill(f"v_and_b32 v{sb1+k}, v{PM+k}, v{sb1+k}", deadline=8)
        pv(8, sb1); pv(0, sb1 + 8)
        send = {2: i2, 3: i3}
        for n in range(2, 9):
            if n + 2 <= 8:
                send[n + 2] = smm(n + 2)
            soft(n, send[n] + 1, len(S.main))
            pv(order[n], SB + 16 * (n % 3))
        for k, g in enumerate(self.dma_groups("s38", 38 * 1024, "s37", (48 + 38) * 1024, 17, per=1, flags="sc1")):
            if not (EXP & 1 and l == 1):
                S.post(2 * k, self.grp(g), cost=1.5)
        if l == 0:
            for k, g in enumerate(self.priv_groups(wo_frag, "s58", "s59", 0, 8)):
                S.post(4 * k + 1, self.grp(g), cost=2)
        S.emit(a)
        a(f"v_mov_b32 v216, v{OA+12}")
        a(f"v_mov_b32 v217, v{OA+12}")
        a("v_permlane32_swap_b32 v216, v217")
        a("v_rcp_f32 v217, v217")
        for k in range(16):
            a(f"v_mul_f32 v{OA+k}, v217, v{OA+k}")
            if k in (7, 15):
                h = k // 8
                for kk in range(4):
                    a(f"v_cvt_pk_bf16_f32 v{OA+8*h+kk}, v{OA+8*h+2*kk}, v{OA+8*h+2*kk+1}")
                self.hstore(f"buffer_store_dwordx4 {vr(OA+8*h)}, v0, {SRD}, s21 offen offset:{h*1024}")(a)

    def ksplit_pre(self):
        a = self.a
        AC = 16
        for k in range(8):
            a(f"v_lshlrev_b32 v{AC+2*k}, 16, v{8+k}")
            a(f"v_and_b32 v{AC+2*k+1}, 0xffff0000, v{8+k}")
        for s in range(1, 4):
            a(f"s_xor_b32 s34, s14, {s}")
            a(f"s_mul_i32 s34, s34, 12288")
            a(f"s_add_u32 s34, s34, {(s-1)*4096}")
            a(f"v_add_u32 v{207+s}, s34, v0")
        a(f"s_mul_i32 s34, s14, 12288")
        a("v_add_u32 v211, s34, v0")
        for k in range(4):
            a(f"v_mov_b32 v{212+k}, 0")
        a("v_mov_b32 v216, 0x3f803f80")
        a("v_and_b32 v217, 0xf8, v7")

    def kloads(self, n, sa0, sa1):
        AB, NBUF = 80, 16
        ko = koff5 if n == 28 else (lambda i: i)
        loads = []
        base = None
        for i in range(n):
            new = base is None or ko(i) - base > 3 or ko(i) < base
            if new:
                base = ko(i)
            for s, sa in ((0, sa0), (1, sa1)):
                st = "s36" if s == 0 else "s37"
                g = []
                if new:
                    g.append(f"s_add_u32 {st}, {sa}, {base*1024}")
                g.append(f"buffer_load_dwordx4 {vr(AB + 8*(i % NBUF) + 4*s)}, v0, {SRD}, {st} offen offset:{(ko(i)-base)*1024} sc1")
                loads.append((i, g))
        return loads

    def ksplit(self, n, sa0, sa1, wfrag, final, extra=None, issued=0, late=None, xpos=8):
        a = self.a
        AC, AB, NBUF = 16, 80, 16
        loads = self.kloads(n, sa0, sa1)
        S = Sched(budget=5)
        TL = KTL
        order = [(i, sl) for i in range(n - TL) for sl in (1, 0, 2, 3)]
        order += [(i, sl) for sl in (1, 2, 3, 0) for i in range(n - TL, n)]
        for (i, sl) in order:
            aa, bb = sl >> 1, sl & 1
            ac = AC + 16 * sl
            c = vr(ac, 16) if (i > 0 or sl == 0) else "0"
            m = S.add_main(f"{MF} {vr(ac,16)}, {wfrag(i,bb)}, {vr(AB + 8*(i % NBUF) + 4*aa)}, {c}")
            if i == n - 1 and sl != 0:
                for q in range(4):
                    S.fill(f"ds_write_b128 v{207+sl}, {vr(AC+16*sl+4*q)} offset:{q*1024}", earliest=m + 2, cost=2.5)
        for k, (i, g) in enumerate(loads):
            if k < issued:
                continue
            kd = max(KD, issued)
            pos = -1 if k < kd else max(int(KP * (k - kd)), 4 * (i - NBUF) + 3, (LATEP if (late is not None and k >= 32) else 0))
            if late is not None and k == 32:
                S.post(pos - 14, self.grp(self.apoll_issue(late, 218)), cost=1.5)
                S.pre(pos, lambda aa: self.apoll_check(late, 218))
            S.post(pos, self.grp(g), cost=1.5)
        if self.k_hook:
            S.pre(*self.k_hook)
        if extra:
            for k, g in enumerate(extra):
                S.post(xpos + 2 * k, self.grp(g), cost=2)
        if n == 28:
            for k in (0, 1, 28, 56, 84):
                S.pre(k, lambda aa: self.ts(3))
        S.pre(len(order), lambda aa: self.ts(2))
        S.emit(a)
        a.drain(vm=False)
        a("s_barrier")
        for q in range(4):
            for s in range(3):
                a(f"ds_read_b128 {vr(AB+16*s+4*q)}, v211 offset:{s*4096+q*1024}")
        for h in range(2):
            for q in (2 * h, 2 * h + 1):
                for s in range(3):
                    for k in range(4 * q, 4 * q + 4):
                        a(f"v_add_f32 v{AC+k}, v{AC+k}, v{AB+16*s+k}")
            for k in range(4 * h, 4 * h + 4):
                a(f"v_cvt_pk_bf16_f32 v{8+k}, v{AC+2*k}, v{AC+2*k+1}")
            final(h)

    def store_x(self, xoff, stoff):
        a = self.a
        def fin(h):
            if h == 0:
                a(f"s_add_u32 s34, s26, {xoff}")
            self.hstore(f"buffer_store_dwordx4 {vr(8+4*h)}, v0, {SRD}, s34 offen offset:{h*1024}")(a)
            for k in range(4 * h, 4 * h + 4):
                o = 2 * (k & 1)
                a(f"v_dot2_f32_bf16 v{212+o}, v{8+k}, v216, v{212+o}")
                a(f"v_dot2_f32_bf16 v{213+o}, v{8+k}, v{8+k}, v{213+o}")
            if h == 1:
                a(f"s_add_u32 s35, s27, {stoff}")
                a("v_add_f32 v212, v212, v214")
                a("v_add_f32 v213, v213, v215")
                a("v_mov_b32 v214, v212")
                a("v_mov_b32 v215, v213")
                a("v_permlane32_swap_b32 v212, v214")
                a("v_permlane32_swap_b32 v213, v215")
                a("v_add_f32 v212, v212, v214")
                a("v_add_f32 v213, v213, v215")
                self.hstore(f"buffer_store_dwordx2 v[212:213], v217, {SRD}, s35 offen")(a)
        return fin

    def p3(self, l):
        a = self.a
        Le = self.label("p3end")
        a.drain()
        a("s_barrier")
        self.wave0_else(lambda: self.signal("s30", 0 * 4096, True), None)
        a("s_cmp_ge_u32 s13, 14")
        a(f"s_cbranch_scc1 {Le}")
        if l == 0:
            for g in self.priv_groups(w2_frag, "s60", "s61", 0, W2A):
                for t in g:
                    a(t)
        self.ksplit_pre()
        self.wave0_else(lambda: self.poll("s29", 0 * 4096, "0xffff"), None)
        a("s_barrier")
        self.ts()
        self.ksplit(8, "s22", "s23", wo_frag, self.store_x(GX[1], GST[1]),
                    self.priv_groups(w2_frag, "s60", "s61", W2A, W2B) if l == 0 else None)
        a.drain()
        a("s_barrier")
        self.wave0_else(lambda: self.signal("s30", 1 * 4096, True), None)
        a(f"{Le}:")

    def dma3(self, sbase, q0, n3, lds0):
        a = self.a
        a(f"s_mul_i32 s37, s50, {n3*1024}")
        a(f"s_add_u32 s38, {sbase}, s37")
        self.dma("s38", q0 * 1024, "s37", lds0 * 1024, n3, flags="sc1")

    def p4(self, l):
        a = self.a
        X, AC, WB, NB, AB = 16, 128, 192, 5, 212
        self.wave0_else(lambda: self.poll("s29", 1 * 4096, "0x3fff"), None)
        a.forget()
        a(f"s_mul_i32 s37, s14, {12*1024}")
        a("s_add_u32 s38, s49, s37")
        a("s_barrier")
        self.ts()
        S = Sched(budget=5)
        seq = []
        for ks in range(29):
            for t in range(3):
                seq.append((t, ks))
        for t in range(3, 7):
            for ks in range(29):
                seq.append((t, ks))
        aset = {0: 0, 1: 1, 2: 2, 3: 3, 4: 0, 5: 1, 6: 2}
        idx = {k: n for n, k in enumerate(seq)}
        first = {t: idx[(t, 0)] for t in range(7)}
        last = {t: idx[(t, 28)] for t in range(7)}
        for n, (t, ks) in enumerate(seq):
            wb = WB + 4 * (n % NB)
            if ks < 28:
                base, off = lds_blk(w13_blk(t * 28 + ks))
                S.post(n - NB, f"ds_read_b128 {vr(wb)}, {base} offset:{off}")
                xb = vr(X + 4 * ks)
            else:
                S.post(n - NB, f"ds_read_b128 {vr(wb)}, v4 offset:{(3+t)*512}")
                xb = vr(AB)
            ac = vr(AC + 16 * aset[t], 16)
            S.add_main(f"{MF} {ac}, {vr(wb)}, {xb}, {'0' if ks == 0 else ac}")
        T = AC + 48
        gaps = [int(G4 * k) for k in range(40)]
        gs = self.xstream(S, a, "s15", GX[1], "s32", GST[1], X, T, gaps)
        for t in self.stats_tree(T, 7) + self.stats_finish(T, AB):
            S.fill(t, earliest=gs + 20, deadline=idx[(0, 28)])
        S.fill("v_mul_f32 v217, s55, v217", deadline=idx[(0, 28)])
        g0 = gaps[35 - XD]
        for k, g in enumerate(self.dma_groups("s38", 106 * 1024, "s37", 0, 12, per=1, flags="sc1")):
            if not (EXP & 4 and l == 1):
                S.post(g0 + 2 * k, self.grp(g), cost=1.5)
        assert g0 + 24 < first[3]
        tokH = a.tok(); self.tokH2 = a.tok()
        ga = first[6] + FA
        def epi(t, earliest, deadline):
            ac = AC + 16 * aset[t]
            f = lambda s, c=None: S.fill(s, earliest=earliest, deadline=deadline, cost=c)
            for i in range(8):
                f(f"v_mul_f32 v{ac+8+i}, v{ac+i}, v{ac+8+i}")
                f(f"v_mul_f32 v{ac+i}, v217, v{ac+i}")
            for i in range(8):
                f(f"v_exp_f32 v{ac+i}, v{ac+i}")
            for i in range(8):
                f(f"v_fma_f32 v{ac+i}, v{ac+i}, v219, v219")
            for i in range(8):
                f(f"v_rcp_f32 v{ac+i}, v{ac+i}")
            for i in range(8):
                f(f"v_mul_f32 v{ac+i}, v{ac+i}, v{ac+8+i}")
            for i in range(4):
                f(f"v_cvt_pk_bf16_f32 v{ac+i}, v{ac+2*i}, v{ac+2*i+1}")
            if t % 4 == 0:
                f(f"s_add_u32 s39, s28, {t*1024}")
            st_ = f"buffer_store_dwordx4 {vr(ac)}, v0, {SRD}, s39 offen offset:{(t%4)*1024}"
            S.fill(st_ + " sc1", earliest=earliest, deadline=deadline, cost=2, tok=(tokH if t <= 3 else self.tokH2))
        tokD = a.tok()
        nmid = first[3] + 12
        def midbar(aa):
            aa.drain(vm=True, lgkm=False)
            self.ts(2)
            aa("s_barrier")
            aa(f"s_mul_i32 s37, s14, {11*1024}")
            aa("s_add_u32 s38, s49, s37")
        assert nmid <= idx[(3, 22)] - NB
        S.pre(nmid, midbar)
        for k, g in enumerate(self.dma_groups("s38", 154 * 1024, "s37", 48 * 1024, 11, per=1, flags="sc1")):
            if not (EXP & 4 and l == 1):
                S.post(nmid + 2 * k, self.grp(g, tok=tokD), cost=1.5)
        def bar2(aa):
            self.ts(2)
            aa.wait_tok(tokD)
            aa("s_barrier")
            aa(f"s_mul_i32 s37, s14, {14*1024}")
            aa("s_add_u32 s38, s48, s37")
        nb2 = idx[(5, 14)] - NB
        S.pre(nb2, bar2)
        if l == 0:
            for k, g in enumerate(self.dma_groups("s38", 0, "s37", 98 * 1024, 14, per=1, flags="sc1")):
                S.post(nb2 + 1 + 3 * k, self.grp(g), cost=1.5)
            gs2 = self.priv_groups(w2_frag, "s60", "s61", W2B, 28)
            for k, g in enumerate(gs2):
                p = nmid + 23 + (70 // max(len(gs2), 1)) * k
                if p > nb2 and (p - nb2 - 1) % 3 == 0:
                    p += 1
                S.post(p, self.grp(g), cost=2)
        epi(0, last[2] + 1, first[4])
        epi(1, last[2] + 1, first[5])
        epi(2, last[2] + 1, first[6])
        epi(3, last[3] + 2, ga - 14)
        epi(4, last[4] + 2, None)
        epi(5, last[5] + 2, len(seq))
        nf = len(S.fifo)
        epi(6, last[6] + 2, None)
        kl = self.kloads(28, "s24", "s25")
        tail = S.fifo[nf:]
        del S.fifo[nf:]
        k = H1
        for n_, it in enumerate(tail):
            S.fifo.append(it)
            if n_ % 4 == 3 and k < H2:
                S.fill(self.grp(kl[k][1]), earliest=len(seq)); k += 1
        while k < H2:
            S.fill(self.grp(kl[k][1]), earliest=len(seq)); k += 1
        def early(aa):
            aa.wait_tok(tokH)
            aa("s_barrier")
            self.wave0_else(lambda: self.signal("s30", 2 * 4096 + 128, True), None)
        S.pre(ga, early)
        S.post(len(seq) - APD, self.grp(self.apoll_issue(2 * 4096 + 128, 220)), cost=1.5)
        def head(aa):
            self.apoll_check(2 * 4096 + 128, 220)
            for (i, g) in kl[:H1]:
                for t in g:
                    aa(t)
        S.pre(len(seq), lambda aa: self.ts(2))
        S.pre(len(seq), head)
        for k in (0, 1, 21, 42, 63):
            S.pre(k, lambda aa: self.ts(3))
        S.emit(a)

    def p5(self, l):
        a = self.a
        Le = self.label("p5end")
        self.ksplit_pre()
        if l == 1:
            a("v_bfe_u32 v212, v7, 3, 5")
            a("v_mul_u32_u24 v212, 896, v212")
            a("v_bfe_u32 v213, v7, 8, 1")
            a("v_lshl_add_u32 v212, v213, 4, v212")
        self.ts()
        a(f"s_mul_i32 s39, s14, {7*1024}")
        a("s_add_u32 s38, s48, s39")
        qg = self.dma_groups("s38", 56 * 1024, "s39", 70 * 1024, 7, per=1, flags="sc1")
        Lgo = self.label("p5go")
        a("s_cmp_ge_u32 s13, 14")
        a(f"s_cbranch_scc0 {Lgo}")
        a.uncounted = True
        a("s_waitcnt vmcnt(0)")
        a("s_barrier")
        self.wave0_else(lambda: self.signal("s30", 2 * 4096, True), None)
        if l == 0:
            a.uncounted = True
            for g in qg:
                for t in g:
                    a(t)
            a.uncounted = False
        a(f"s_branch {Le}")
        a(f"{Lgo}:")
        def sigl(aa):
            aa.wait_tok(self.tokH2)
            aa("s_barrier")
            self.wave0_else(lambda: self.signal("s30", 2 * 4096, True), None)
        self.k_hook = (SG5, sigl)
        if l == 0:
            self.ksplit(28, "s24", "s25", w2_frag, self.store_x(GX[2], GST[2]), extra=qg, xpos=90, issued=H2, late=2 * 4096)
            a.drain()
            a("s_barrier")
            self.wave0_else(lambda: self.signal("s30", 3 * 4096, True), None)
        else:
            self.ksplit(28, "s24", "s25", w2_frag,
                        lambda h: a(f"buffer_store_dwordx4 {vr(8+4*h)}, v212, s[8:11], s57 offen offset:{32*h}"), issued=H2, late=2 * 4096)
        self.k_hook = None
        a(f"{Le}:")

    def build(self):
        a = self.a
        self.nts = 28
        self.prologue()
        for l in range(2):
            self.nts = 0
            if l == 0:
                a.wait_tok(self.tokW[0])
            a("s_barrier")
            self.ts()
            self.dts()
            ph = [self.p1, self.p2, self.p3, self.p4, self.p5]
            for k, p in enumerate(ph):
                p(l)
                self.ts()
                self.dts()
                if STOP == 5 * l + k + 1:
                    a("s_branch main_done")
            if l == 0:
                a.drain()
                self.wave0_else(lambda: self.poll("s29", 3 * 4096, "0x3fff", nowr=True), None)
                for s, d in (("s19", 0x40000), ("s20", 0x40000), ("s29", 4 * 4096), ("s30", 4 * 4096), ("s31", 0x8000), ("s62", 0x8000)):
                    a(f"s_add_u32 {s}, {s}, {d}")
                for s in ("s15", "s32", "s21", "s22", "s23", "s24", "s25", "s26", "s27", "s28"):
                    a(f"s_add_u32 {s}, {s}, s63")
                if TS:
                    a("s_add_u32 s51, s51, 256")
        a("main_done:")
        a("s_endpgm")
        txt, n = a.finish()
        return txt


def gen_main():
    return G().build()

MAIN_KD = dict(vgpr=512, sgpr=102, accum=256, grid=256, block=256, lds=LDS_BYTES)
```

```python
import math, struct, os
from asmlib import *
from layout import *

STOP = int(os.environ.get("STOP", "99"))
TS = int(os.environ.get("TS", "0"))
NOFAST = int(os.environ.get("NOFAST", "0"))

DTS = int(os.environ.get("DTS", "0"))
X0N = int(os.environ.get("X0N", "8"))
CPF = int(os.environ.get("CPF", "1"))
KTL = int(os.environ.get("KTL", "1"))
W2A = int(os.environ.get("W2A", "4"))
W2B = int(os.environ.get("W2B", "16"))
NTW = " nt" if int(os.environ.get("NTW", "0")) else ""
NTA = " nt" if int(os.environ.get("NTA", "0")) else ""
EXP = int(os.environ.get("EXP", "0"))
UST = int(os.environ.get("UST", "12"))
G4 = float(os.environ.get("G4", "2"))
G1 = float(os.environ.get("G1", "1.5"))
N1, N2, N3 = (int(x) for x in os.environ.get("NW", "19,17,0").split(","))
assert 2 * N1 + 4 * N2 + 3 * N3 == 106
XD = int(os.environ.get("XD", "8"))
SPOS = int(os.environ.get("SPOS", "16"))
KD = int(os.environ.get("KD", "10"))
KP = float(os.environ.get("KP", "2"))
KNAME = "interleave_layers__sliding_block__glu_gated_swiglu__prompt_kernel"
def f32(x):
    return "0x%08x" % struct.unpack("<I", struct.pack("<f", x))[0]

MISC = 154 * 1024
L_AUG = MISC
L_ST = MISC + 5120
LDS_BYTES = 160 * 1024
WQ_BLK = {0: 98, 1: 126, 2: 70}

def w13_blk(q):
    return 48 + q if q < 106 else (q - 106 if q < 154 else 48 + q - 154)

SRD = "s[4:7]"
MF = "v_mfma_f32_32x32x16_bf16"

def vr(b, n=4):
    return f"v[{b}:{b+n-1}]"

def ar(b, n=4):
    return f"a[{b}:{b+n-1}]"

def lds_blk(b):
    return f"v{b // 64}", (b % 64) * 1024

def w2_frag(i, b):
    return ar((2 * i + b) * 4)

def wo_frag(i, b):
    k = 2 * i + b
    return ar(224 + 4 * k) if k < 8 else vr(224 + 4 * (k - 8))

class G:
    def __init__(self):
        self.a = Asm()
        self.nl = 0
        self.nts = 0
        self.ndts = 0

    def label(self, base):
        self.nl += 1
        return f"L{base}_{self.nl}"

    def ts(self, lvl=1):
        if TS < lvl:
            return
        a = self.a
        k = self.nts
        self.nts += 1
        unc = a.uncounted
        a("s_memrealtime s[42:43]")
        a("s_memtime s[44:45]")
        a("s_waitcnt lgkmcnt(0)")
        a.uncounted = True
        a("v_mov_b32 v222, s42")
        a("v_mov_b32 v223, s44")
        a(f"s_add_u32 s42, s51, {k*8}")
        a("s_mov_b64 exec, 1")
        a(f"buffer_store_dwordx2 v[222:223], v0, {SRD}, s42 offen")
        a("s_mov_b64 exec, -1")
        a.uncounted = unc

    def dts(self):
        if not DTS:
            return
        a = self.a
        k = self.ndts
        self.ndts += 1
        L = self.label("dts")
        unc = a.uncounted
        a("s_cmp_eq_u32 s51, 0")
        a(f"s_cbranch_scc0 {L}")
        a.uncounted = True
        a("s_memrealtime s[42:43]")
        a("s_waitcnt lgkmcnt(0)")
        a("v_mov_b32 v222, s42")
        a("s_mov_b64 exec, 1")
        a(f"global_store_dword v0, v222, s[44:45] offset:{8+4*k}")
        a("s_mov_b64 exec, -1")
        a.uncounted = unc
        a(f"{L}:")
        a("s_waitcnt lgkmcnt(0)")

    def dma_groups(self, sg, goff, slds, loff, n, flags="", per=4):
        out = []
        for i0 in range(0, n, per):
            g = [f"s_add_u32 s34, {sg}, {goff + i0*1024}", f"s_add_u32 m0, {slds}, {loff + i0*1024}"]
            for i in range(i0, min(n, i0 + per)):
                g.append(f"buffer_load_dwordx4 v0, {SRD}, s34 offen offset:{(i-i0)*1024} {flags} lds")
            out.append(g)
        return out

    def dma(self, sg, goff, slds, loff, n, tok=None, flags=""):
        for g in self.dma_groups(sg, goff, slds, loff, n, flags):
            for t in g:
                self.a(t, tok=tok)

    def grp(self, texts, tok=None):
        def f(a):
            for t in texts:
                a(t, tok=tok)
        return f

    def hstore(self, text):
        def f(a):
            if not NOFAST:
                a(text.replace(SRD, "s[96:99]"))
            a(text.replace(SRD, "s[0:3]") + " sc1")
        return f

    def signal(self, soff_sgpr, const, fast):
        a = self.a
        a(f"s_add_u32 s34, {soff_sgpr}, {const}")
        a("v_mov_b32 v220, s100")
        a("v_mov_b32 v221, s101")
        a("s_mov_b64 exec, 1")
        t = f"buffer_store_dwordx2 v[220:221], v0, {SRD}, s34 offen"
        if fast:
            self.hstore(t)(a)
        else:
            a(t + " sc1")
        a("s_mov_b64 exec, -1")

    def poll(self, soff_sgpr, const, mask, vaddr="v7", hi=None):
        a = self.a
        L = self.label("poll")
        a(f"s_add_u32 s34, {soff_sgpr}, {const}")
        a(f"s_mov_b32 exec_lo, {mask}")
        a(f"s_mov_b32 exec_hi, {hi if hi else 0}")
        a(f"{L}:")
        a(f"buffer_load_dwordx2 v[220:221], {vaddr}, {SRD}, s34 offen sc1")
        a("s_waitcnt vmcnt(0)")
        a("v_cmp_eq_u64 vcc, s[100:101], v[220:221]")
        a("s_sub_u32 s33, s33, 1")
        a("s_cmp_eq_u32 s33, 0")
        a(f"s_cbranch_scc1 main_done")
        a(f"s_cmp_eq_u64 vcc, exec")
        a(f"s_cbranch_scc0 {L}")
        a("s_mov_b64 exec, -1")

    def xcc_poll(self):
        a = self.a
        L = self.label("xcc")
        a(f"s_add_u32 s34, s29, {XCCT}")
        a("s_mov_b64 exec, 0xffff")
        a(f"{L}:")
        a(f"buffer_load_dwordx2 v[220:221], v7, {SRD}, s34 offen sc1")
        a("s_waitcnt vmcnt(0)")
        a("v_subrev_u32 v218, s101, v221")
        a("v_cmp_eq_u32 s[36:37], s100, v220")
        a("v_cmp_gt_u32 vcc, 16, v218")
        a("s_sub_u32 s33, s33, 1")
        a("s_cmp_eq_u32 s33, 0")
        a("s_cbranch_scc1 main_done")
        a("s_and_b32 s36, s36, vcc_lo")
        a("s_cmp_eq_u32 s36, 0xffff")
        a(f"s_cbranch_scc0 {L}")

    def wave_if(self, cmp, f0, f1):
        a = self.a
        Lo = self.label("oth"); Lj = self.label("join")
        a(cmp)
        a(f"s_cbranch_scc0 {Lo}")
        a.uncounted = True
        f0()
        if f1:
            a(f"s_branch {Lj}")
        a(f"{Lo}:")
        if f1:
            f1()
        a.uncounted = False
        if f1:
            a(f"{Lj}:")

    def wave0_else(self, f0, f1):
        self.wave_if("s_cmp_eq_u32 s14, 0", f0, f1)

    def stats_tree(self, T, n):
        o = []
        idx = list(range(n))
        while len(idx) > 1:
            nxt = []
            for k in range(0, len(idx) - 1, 2):
                x, y = idx[k], idx[k + 1]
                o.append(f"v_add_f32 v{T+2*x}, v{T+2*x}, v{T+2*y}")
                o.append(f"v_add_f32 v{T+2*x+1}, v{T+2*x+1}, v{T+2*y+1}")
                nxt.append(x)
            if len(idx) % 2:
                nxt.append(idx[-1])
            idx = nxt
        return o

    def stats_finish(self, T, AB):
        return [f"v_mov_b32 v{T+2}, v{T}", f"v_mov_b32 v{T+3}, v{T+1}",
              f"v_permlane32_swap_b32 v{T}, v{T+2}", f"v_permlane32_swap_b32 v{T+1}, v{T+3}",
              f"v_add_f32 v{T}, v{T}, v{T+2}", f"v_add_f32 v{T+1}, v{T+1}, v{T+3}",
              f"v_mul_f32 v216, s52, v{T}", f"v_mul_f32 v219, s52, v{T+1}",
              "v_fma_f32 v219, -v216, v216, v219", "v_max_f32 v219, 0, v219", "v_add_f32 v219, s53, v219",
              "v_rsq_f32 v217, v219",
              f"v_cndmask_b32 v{T}, -v216, 0, s[40:41]",
              f"v_cvt_pk_bf16_f32 v{T+1}, v{T}, v{T}",
              f"v_and_b32 v{T+1}, 0xffff0000, v{T+1}",
              f"v_sub_f32 v{T+1}, v{T}, v{T+1}",
              f"v_cvt_pk_bf16_f32 v{AB}, v{T}, v{T+1}",
              f"v_and_b32 v{T+2}, 0xffff0000, v{AB}",
              f"v_sub_f32 v{T+2}, v{T+1}, v{T+2}",
              f"v_cvt_pk_bf16_f32 v{AB+1}, v{T}, v{T+2}",
              f"v_mov_b32 v{AB+2}, v{AB}", f"v_mov_b32 v{AB+3}, 0"]

    def xload(self, sx, const, X, ks):
        o = []
        if ks % 4 == 0:
            o.append(f"s_add_u32 s36, {sx}, {const + ks*1024}")
        o.append(f"buffer_load_dwordx4 {vr(X+4*ks)}, v0, {SRD}, s36 offen offset:{(ks%4)*1024} sc1")
        return o

    def priv_groups(self, frag, sb0, sb1, i0, i1):
        out = []
        for b, sb in ((0, sb0), (1, sb1)):
            for i in range(i0, i1, 2):
                out.append([f"s_add_u32 s34, {sb}, {i*1024}",
                            f"buffer_load_dwordx4 {frag(i,b)}, v0, {SRD}, s34 offen sc1{NTW}",
                            f"buffer_load_dwordx4 {frag(i+1,b)}, v0, {SRD}, s34 offen offset:1024 sc1{NTW}"])
        return out

    def touch(self, sbase, const, nlines, dst):
        mask = (1 << nlines) - 1
        o = [f"s_add_u32 s34, {sbase}, {const}", "v_lshlrev_b32 v218, 3, v0"]
        if nlines <= 32:
            o.append(f"s_mov_b64 exec, {hex(mask)}")
        else:
            o += [f"s_mov_b32 exec_lo, -1", f"s_mov_b32 exec_hi, {hex(mask >> 32)}"]
        o += [f"!buffer_load_dword v{dst}, v218, s[96:99], s34 offen sc1", "s_mov_b64 exec, -1"]
        return o

    def code_ahead(self):
        a = self.a
        L = self.label("pcb")
        a("s_getpc_b64 s[34:35]")
        a(f"{L}:")
        a("s_lshl_b32 s36, s14, 13")
        a("v_lshl_add_u32 v218, v0, 3, s36")
        a(f"s_mov_b32 s36, main_done - {L}")
        a("v_min_u32 v218, s36, v218")
        a("!global_load_dword v223, v218, s[34:35]")

    def code_jit(self):
        if CPF < 3:
            return
        a = self.a
        L = self.label("pcj"); Ls = self.label("pcs")
        a("s_cmp_eq_u32 s14, 3")
        a(f"s_cbranch_scc0 {Ls}")
        unc = a.uncounted
        a.uncounted = True
        a("s_getpc_b64 s[34:35]")
        a(f"{L}:")
        a("s_lshl_b32 s36, s13, 1"); a("s_and_b32 s37, s12, 1"); a("s_add_u32 s36, s36, s37"); a("s_lshl_b32 s36, s36, 10")
        a("v_lshl_add_u32 v218, v0, 3, s36")
        a(f"s_mov_b32 s36, main_done - {L}")
        a("v_min_u32 v218, s36, v218")
        a("s_mov_b64 exec, 0xff")
        a("!global_load_dword v223, v218, s[34:35]")
        a("s_mov_b64 exec, -1")
        a.uncounted = unc
        a(f"{Ls}:")

    def zero_groups(self, Z, big, small):
        zs = []
        for sb_, c_, n_ in big:
            for i in range(n_):
                zs.append([f"s_add_u32 s35, {sb_}, {c_ + i*1024}", f"buffer_store_dwordx4 {vr(Z)}, v0, s[96:99], s35 offen sc1"])
        for c_ in small:
            zs.append(["v_and_b32 v218, 0xf8, v7", f"s_add_u32 s35, s27, {c_}", f"buffer_store_dwordx2 {vr(Z, 2)}, v218, s[96:99], s35 offen sc1"])
        return zs

    def aug_split(self, c, t1, t2, D):
        return [f"v_cvt_pk_bf16_f32 v{D}, v{c}, v{c}", f"v_and_b32 v{t1}, 0xffff0000, v{D}", f"v_sub_f32 v{t1}, v{c}, v{t1}",
                f"v_cvt_pk_bf16_f32 v{D+1}, v{t1}, v{c}", f"v_lshlrev_b32 v{t2}, 16, v{D+1}", f"v_sub_f32 v{t2}, v{t1}, v{t2}",
                f"v_cvt_pk_bf16_f32 v{D+2}, v{t2}, v{t1}", f"v_mov_b32 v{D+3}, 0"]

    def prologue(self):
        a = self.a
        X = 16
        a(f"{KNAME}:")
        a("s_load_dwordx16 s[64:79], s[0:1], 0")
        a("s_load_dwordx4 s[80:83], s[0:1], 64")
        a("s_cmp_ge_u32 s2, 256")
        a("s_cbranch_scc1 main_done")
        a("v_lshrrev_b32 v1, 6, v0")
        a("v_and_b32 v7, 63, v0")
        a("v_readfirstlane_b32 s14, v1")
        a("s_and_b32 s12, s2, 7"); a("s_lshl_b32 s12, s12, 1"); a("s_bfe_u32 s34, s2, 0x10003"); a("s_add_u32 s12, s12, s34")
        a("s_lshr_b32 s13, s2, 4")
        a("s_mul_i32 s16, s13, 5"); a("s_add_u32 s16, s16, s12"); a("s_and_b32 s16, s16, 15")
        if CPF:
            Lp = self.label("cpf")
            a("s_getpc_b64 s[34:35]")
            a("Lpc_base:")
            a("s_cmp_eq_u32 s14, 3"); a(f"s_cbranch_scc0 {Lp}")
            a("s_lshr_b32 s36, s2, 3"); a("s_lshl_b32 s36, s36, 11")
            a("v_lshl_add_u32 v196, v7, 7, s36")
            a("s_mov_b32 s36, main_done - Lpc_base")
            a("v_min_u32 v196, s36, v196")
            a.uncounted = True
            a("s_mov_b64 exec, 0xffff")
            a("!global_load_dword v223, v196, s[34:35]")
            a("s_mov_b64 exec, -1")
            a.uncounted = False
            a(f"{Lp}:")
        a("v_lshrrev_b32 v196, 2, v7")
        a("v_and_b32 v197, 3, v7")
        a("v_lshlrev_b32 v0, 4, v7")
        a("v_and_b32 v206, 31, v7"); a("v_lshrrev_b32 v207, 5, v7")
        a("s_lshr_b32 s34, s16, 2"); a("s_and_b32 s35, s16, 3")
        a("s_add_u32 s36, s34, 1"); a("s_cmp_ge_u32 s36, 3"); a("s_cselect_b32 s36, 0, s36")
        a("s_mul_i32 s36, s36, 896"); a("s_mul_i32 s37, s13, 56"); a("s_add_u32 s36, s36, s37")
        a("s_mul_i32 s37, s35, 7"); a("s_lshl_b32 s38, s14, 1"); a("s_add_u32 s38, s38, s37")
        a(f"s_mul_i32 s39, s38, {16*2688}"); a("s_add_u32 s36, s36, s39")
        a(f"s_add_u32 s39, s36, {16*2688}")
        a("s_cmp_eq_u32 s14, 3"); a("s_cselect_b32 s39, 0x40000000, s39")
        a("s_mul_i32 s40, s13, 3"); a("s_add_u32 s40, s40, s34")
        a("s_mul_i32 s41, s40, 28"); a("s_add_u32 s41, s41, s37"); a("s_lshl_b32 s41, s41, 10"); a(f"s_add_u32 s41, s41, {WQKV}")
        a("s_lshl_b32 s42, s40, 4"); a("s_lshl_b32 s43, s35, 2"); a("s_add_u32 s42, s42, s43"); a("s_add_u32 s42, s42, s14")
        a("s_lshl_b32 s42, s42, 8"); a(f"s_add_u32 s42, s42, {CSP}")
        a("s_cmp_lt_u32 s16, 12"); a("s_cselect_b32 s43, -1, 0")
        a("v_mul_u32_u24 v198, 2688, v196"); a("v_lshl_add_u32 v198, v197, 4, v198")
        a("s_lshl_b32 s44, s14, 11"); a(f"s_add_u32 s44, s44, {32*1024}")
        a("v_lshrrev_b32 v199, 3, v7"); a("v_and_b32 v200, 7, v7")
        a("v_lshrrev_b32 v201, 1, v199"); a("v_xor_b32 v200, v200, v201"); a("v_lshlrev_b32 v200, 4, v200")
        a("v_mul_u32_u24 v201, 896, v199")
        a("v_xor_b32 v202, 64, v200")
        a("v_add_u32 v200, v200, v201"); a("v_add_u32 v202, v202, v201")
        a("s_lshl_b32 s48, s12, 2"); a("s_add_u32 s48, s48, s14"); a(f"s_mul_i32 s48, s48, {32*896}")
        a(f"s_mul_i32 s46, s14, {28*1024}"); a(f"s_add_u32 s46, s46, {40*1024}")
        a("s_lshr_b32 s47, s13, 1"); a("s_min_u32 s47, s47, 6")
        a("s_waitcnt lgkmcnt(0)")
        if TS:
            a("s_memrealtime s[52:53]"); a("s_waitcnt lgkmcnt(0)")
        a("s_mov_b64 s[84:85], s[66:67]"); a(f"s_and_b32 s86, s43, {448*1344*2}"); a("s_mov_b32 s87, 0x20000")
        a("s_mov_b32 s8, s64"); a("s_mov_b32 s9, s65"); a(f"s_mov_b32 s10, {2048*896}"); a("s_mov_b32 s11, 0x20000")
        tokA = a.tok(); tokX0 = a.tok()
        a("s_mov_b32 m0, s44")
        a("buffer_load_dwordx4 v198, s[84:87], s36 offen lds", tok=tokA)
        a("s_add_u32 m0, s44, 1024")
        a("buffer_load_dwordx4 v198, s[84:87], s39 offen lds", tok=tokA)
        a("s_mov_b32 s64, s47")
        def xdma(n0, n1, tok=None):
            for n in range(n0, n1):
                rq = n & 3
                if rq == 0:
                    a("s_lshl_b32 s65, s64, 12"); a("s_add_u32 s65, s65, s46")
                    a("s_lshl_b32 s66, s64, 7"); a("s_add_u32 s66, s66, s48")
                    a("s_add_u32 s64, s64, 1"); a("s_cmp_eq_u32 s64, 7"); a("s_cselect_b32 s64, 0, s64")
                a(f"s_add_u32 m0, s65, {rq*1024}")
                a(f"s_add_u32 s67, s66, {rq*8*896}")
                a(f"buffer_load_dwordx4 {'v200' if rq % 2 == 0 else 'v202'}, s[8:11], s67 offen lds", tok=tok)
        xdma(0, 4, tokX0)
        Ln = self.label("nonce")
        a("s_cmp_eq_u32 s2, 0"); a(f"s_cbranch_scc0 {Ln}")
        a("s_cmp_eq_u32 s14, 0"); a(f"s_cbranch_scc0 {Ln}")
        a.uncounted = True
        a("s_memrealtime s[34:35]")
        a("s_waitcnt lgkmcnt(0)")
        a("s_or_b32 s34, s34, 1")
        a("v_mov_b32 v210, s34"); a("v_mov_b32 v211, s35")
        a("s_mov_b64 exec, 1")
        a("global_store_dwordx2 v0, v[210:211], s[80:81] sc1")
        a("s_mov_b64 exec, -1")
        a.uncounted = False
        a(f"{Ln}:")
        xdma(4, X0N)
        a("s_mov_b32 s4, s82"); a("s_mov_b32 s5, s83"); a("s_mov_b32 s6, 0x10000000"); a("s_mov_b32 s7, 0x20000")
        a("s_add_u32 s92, s82, s41"); a("s_addc_u32 s93, s83, 0"); a("s_and_b32 s94, s43, 7168"); a("s_mov_b32 s95, 0x20000")
        a("s_mov_b32 s96, s82"); a("s_mov_b32 s97, s83"); a("s_and_b32 s98, s43, 0x10000000"); a("s_mov_b32 s99, 0x20000")
        if TS:
            a("s_lshl_b32 s51, s2, 2"); a("s_add_u32 s51, s51, s14"); a("s_lshl_b32 s51, s51, 9"); a(f"s_add_u32 s51, s51, {DBG}")
            a.uncounted = True
            a("s_mov_b64 exec, 1")
            a("v_mov_b32 v222, s52"); a(f"s_add_u32 s34, s51, {24*8}")
            a(f"buffer_store_dword v222, v0, {SRD}, s34 offen")
            a("s_mov_b64 exec, -1")
            a.uncounted = False
        a("v_lshlrev_b32 v7, 3, v7")
        a("v_bfe_u32 v205, v7, 5, 2")
        a("v_lshl_add_u32 v205, v207, 3, v205"); a("v_lshlrev_b32 v205, 6, v205")
        a("v_bfe_u32 v203, v7, 7, 1"); a("v_lshl_add_u32 v205, v203, 5, v205")
        a("v_bfe_u32 v203, v7, 3, 1"); a("v_lshl_add_u32 v205, v203, 4, v205")
        a("v_bfe_u32 v203, v7, 4, 1"); a("v_lshl_add_u32 v205, v203, 3, v205")
        a("v_add_u32 v203, s44, v205")
        a("v_cmp_gt_u32 vcc, 28, v206")
        a("v_cndmask_b32 v201, 0, -1, vcc")
        a("v_mov_b32 v209, 0x3f803f80")
        a("s_lshl_b32 s34, s14, 11"); a("v_add_u32 v199, s34, v0")
        a("v_lshrrev_b32 v198, 1, v7")
        a("v_bfe_u32 v204, v206, 1, 3"); a("v_xor_b32 v204, v204, v207"); a("v_lshlrev_b32 v204, 4, v204")
        a("v_lshl_add_u32 v204, v206, 7, v204"); a("v_add_u32 v204, s46, v204")
        a("s_and_b32 s34, s13, 1"); a("s_lshl_b32 s34, s34, 6"); a("v_xor_b32 v208, s34, v204")
        a("s_lshl_b32 s34, s47, 12"); a("v_add_u32 v208, s34, v208"); a("v_xor_b32 v197, 32, v208")
        for e in range(8):
            a(f"v_mov_b32 v{188+e}, 0")
        a.wait_tok(tokA)
        for b in range(2):
            for m in range(2):
                a(f"ds_read_b64_tr_b16 {vr(128+4*b+2*m, 2)}, v203 offset:{b*1024 + m*256}")
        for b in range(2):
            for k in range(4):
                a(f"v_and_b32 v{128+4*b+k}, v201, v{128+4*b+k}")
            a(f"buffer_store_dwordx4 {vr(128+4*b)}, v199, s[92:95], 0 offen offset:{b*1024} sc1")
        for b in range(2):
            for k in range(4):
                a(f"v_dot2_f32_bf16 v{188+k}, v{128+4*b+k}, v209, v{188+k}")
        a("v_add_f32 v188, v188, v189"); a("v_add_f32 v190, v190, v191"); a("v_add_f32 v188, v188, v190")
        a("buffer_store_dword v188, v198, s[96:99], s42 offen sc1")
        a("s_lshl_b32 s15, s12, 20"); a(f"s_add_u32 s15, s15, {GRP0}")
        a("s_mul_i32 s34, s14, 14"); a("s_add_u32 s34, s34, s13"); a("s_lshl_b32 s34, s34, 8"); a("s_add_u32 s34, s34, s15"); a(f"s_add_u32 s34, s34, {GST[0]}")
        a("s_cmp_lt_u32 s13, 14"); a("s_cselect_b32 s34, s34, 0x40000000")
        a.wait_tok(tokX0)
        a("ds_read_b128 v[136:139], v208")
        a("ds_read_b128 v[140:143], v197")
        for k in range(8):
            o = 192 + 2 * (k & 1)
            a(f"v_dot2_f32_bf16 v{o}, v{136+k}, v209, v{o}")
            a(f"v_dot2_f32_bf16 v{o+1}, v{136+k}, v{136+k}, v{o+1}")
        a("v_add_f32 v192, v192, v194"); a("v_add_f32 v193, v193, v195")
        a("v_mov_b32 v194, v192"); a("v_mov_b32 v195, v193")
        a("v_and_b32 v197, 0xf8, v7")
        a("v_permlane32_swap_b32 v192, v194"); a("v_permlane32_swap_b32 v193, v195")
        a("v_add_f32 v192, v192, v194"); a("v_add_f32 v193, v193, v195")
        a(f"buffer_store_dwordx2 v[192:193], v197, {SRD}, s34 offen sc1")
        self.ts(2)
        Lt = self.label("tag"); Lok = self.label("tagok")
        a("v_mov_b32 v203, 0")
        a("global_load_dwordx2 v[210:211], v203, s[80:81] sc1")
        xdma(X0N, 28)
        Lw2, Lwo, Lu = (self.label(x) for x in ("uw2", "uwo", "uend"))
        a("s_sub_u32 s3, 15, s16"); a("s_lshl_b32 s3, s3, 4"); a("s_add_u32 s3, s3, s13")
        a("s_and_b32 s40, s14, 1"); a("s_lshr_b32 s41, s14, 1")
        a("s_mov_b32 s39, 0"); a("s_mov_b32 s70, 0x40000000"); a("s_mov_b32 s94, 7168"); a("s_mov_b32 s38, 32")
        a(f"s_mul_i32 s67, s14, {7*1024}"); a(f"s_mov_b32 s71, {152*1024}")
        a("s_cmp_ge_u32 s3, 168"); a(f"s_cbranch_scc1 {Lwo}")
        a("s_cmp_ge_u32 s3, 112"); a(f"s_cbranch_scc1 {Lw2}")
        a("s_lshr_b32 s34, s3, 2"); a("s_and_b32 s35, s3, 3")
        a("s_mov_b32 s36, 3584")
        a("s_lshl_b32 s37, s35, 1"); a("s_add_u32 s37, s37, s40"); a(f"s_mul_i32 s37, s37, {56*3584}"); a("s_lshl_b32 s64, s34, 7"); a("s_add_u32 s37, s37, s64")
        a("s_cmp_eq_u32 s41, 0"); a("s_cselect_b32 s84, s72, s74"); a("s_cselect_b32 s85, s73, s75"); a(f"s_mov_b32 s86, {448*1792*2}")
        a("s_lshl_b32 s64, s34, 2"); a("s_add_u32 s64, s64, s14")
        a("s_lshl_b32 s70, s64, 2"); a("s_add_u32 s70, s70, s35")
        a(f"s_mul_i32 s66, s70, {7*1024}"); a(f"s_add_u32 s66, s66, {W13}")
        a("s_lshl_b32 s70, s70, 8"); a(f"s_add_u32 s70, s70, {CSP13}")
        a("s_lshl_b32 s65, s14, 5"); a("s_mov_b32 s38, 14336")
        a(f"s_branch {Lu}")
        a(f"{Lw2}:")
        a("s_sub_u32 s34, s3, 112"); a("s_and_b32 s35, s34, 7"); a("s_lshr_b32 s34, s34, 3")
        a("s_mov_b32 s36, 896")
        a("s_lshl_b32 s37, s35, 2"); a("s_add_u32 s37, s37, s14"); a(f"s_mul_i32 s37, s37, {56*896}"); a("s_lshl_b32 s64, s34, 7"); a("s_add_u32 s37, s37, s64")
        a("s_mov_b64 s[84:85], s[76:77]"); a(f"s_mov_b32 s86, {1792*448*2}")
        a("s_lshl_b32 s64, s34, 1"); a("s_add_u32 s64, s64, s40"); a("s_lshl_b32 s64, s64, 4")
        a("s_lshl_b32 s65, s35, 1"); a("s_add_u32 s64, s64, s65"); a("s_add_u32 s64, s64, s41")
        a(f"s_mul_i32 s66, s64, {7*1024}"); a(f"s_add_u32 s66, s66, {W2}")
        a(f"s_mul_i32 s65, s41, {112*128}"); a("s_lshl_b32 s64, s40, 6"); a("s_add_u32 s65, s65, s64")
        a(f"s_branch {Lu}")
        a(f"{Lwo}:")
        a("s_sub_u32 s34, s3, 168"); a("s_and_b32 s35, s34, 1"); a("s_lshr_b32 s34, s34, 1")
        a("s_mov_b32 s36, 896"); a("s_mov_b32 s39, 4")
        a("s_lshl_b32 s37, s35, 2"); a("s_add_u32 s37, s37, s14"); a(f"s_mul_i32 s37, s37, {56*896}"); a("s_lshl_b32 s64, s34, 7"); a("s_add_u32 s37, s37, s64")
        a("s_mov_b64 s[84:85], s[68:69]")
        a("s_cmp_lt_u32 s3, 182"); a(f"s_cselect_b32 s86, {448*448*2}, 0"); a("s_cselect_b32 s94, 8192, 0")
        a("s_lshl_b32 s64, s34, 1"); a("s_add_u32 s64, s64, s40"); a("s_lshl_b32 s64, s64, 2")
        a("s_lshl_b32 s65, s35, 1"); a("s_add_u32 s64, s64, s65"); a("s_add_u32 s64, s64, s41")
        a("s_lshl_b32 s66, s64, 13"); a(f"s_add_u32 s66, s66, {WO}")
        a("s_lshl_b32 s65, s41, 14"); a("s_lshl_b32 s64, s40, 6"); a("s_add_u32 s65, s65, s64")
        a("s_lshl_b32 s67, s14, 13"); a("s_add_u32 s71, s67, 7168")
        a(f"{Lu}:")
        a("s_add_u32 s92, s82, s66"); a("s_addc_u32 s93, s83, 0")
        a("v_bfe_u32 v196, v7, 6, 3"); a("v_bfe_u32 v197, v7, 3, 3")
        a("v_mul_lo_u32 v198, v196, s36"); a("v_lshl_add_u32 v198, v197, 4, v198")
        a("v_mov_b32 v201, 0x40000000")
        a("v_add_u32 v199, s39, v196")
        a("v_cmp_le_u32 vcc, 8, v199")
        a("v_cndmask_b32 v199, v198, v201, vcc")
        a("s_lshl_b32 s64, s36, 3")
        a("s_sub_u32 s66, 8, s39"); a("s_mul_i32 s66, s66, s36")
        for i in range(8):
            a(f"s_add_u32 m0, s67, {i*1024}" if i < 7 else "s_mov_b32 m0, s71")
            a(f"buffer_load_dwordx4 {'v199' if (i & 3) == 3 else 'v198'}, s[84:87], s37 offen lds")
            if i < 7:
                a(f"s_add_u32 s37, s37, {'s66' if i == 3 else 's64'}")
        a("v_bfe_u32 v205, v7, 5, 2")
        a("v_lshl_add_u32 v205, v207, 3, v205"); a("v_lshlrev_b32 v205, 7, v205")
        a("v_bfe_u32 v201, v7, 7, 1"); a("v_mul_lo_u32 v201, v201, s38"); a("v_add_u32 v205, v205, v201")
        a("v_bfe_u32 v201, v7, 3, 1"); a("v_lshl_add_u32 v205, v201, 4, v205")
        a("v_bfe_u32 v201, v7, 4, 1"); a("v_lshl_add_u32 v205, v201, 3, v205")
        a("v_add_u32 v205, s65, v205")
        a("s_lshl_b32 s3, s3, 3")
        a("s_lshl_b32 s69, s16, 3")
        a("v_add_u32 v1, 0x10000, v0")
        a("v_add_u32 v2, 0x20000, v0")
        a(f"s_mul_i32 s48, s13, {84*1024}"); a(f"s_add_u32 s48, s48, {WQKV}")
        a(f"s_mul_i32 s49, s13, {196*1024}"); a(f"s_add_u32 s49, s49, {W13}")
        a("s_mov_b32 s33, 0x40000")
        a("s_getreg_b32 s63, hwreg(HW_REG_XCC_ID, 0, 4)")
        a("s_mov_b32 s16, s15")
        a("s_cmp_ge_u32 s13, 7"); a("s_cselect_b32 s40, 1, 0")
        a("s_mul_i32 s41, s40, 7"); a("s_sub_u32 s41, s13, s41")
        a("s_min_u32 s41, s41, 6")
        a("s_lshr_b32 s36, s14, 1"); a("s_and_b32 s37, s14, 1")
        a("s_lshl_b32 s38, s40, 1")
        a("s_add_u32 s39, s38, s36")
        a("s_sub_u32 s38, s38, s36"); a("s_add_u32 s38, s38, 1")
        a("s_lshl_b32 s41, s41, 1")
        a("s_add_u32 s46, s41, s37")
        a("s_sub_u32 s47, s41, s37"); a("s_add_u32 s47, s47, 1")
        a(f"s_mul_i32 s17, s14, {28*1024}"); a("s_add_u32 s17, s17, s16"); a("s_mov_b32 s15, s17")
        a(f"s_mul_i32 s18, s14, {14*256}"); a("s_add_u32 s18, s18, s16"); a("s_mov_b32 s32, s18")
        a("s_lshl_b32 s19, s12, 5"); a("s_add_u32 s19, s19, s13"); a("s_lshl_b32 s19, s19, 14"); a(f"s_add_u32 s19, s19, {KV0}")
        a("s_add_u32 s20, s14, 1"); a("s_lshl_b32 s20, s20, 19"); a("s_sub_u32 s20, s19, s20")
        a("s_lshl_b32 s34, s14, 12"); a("s_add_u32 s19, s19, s34")
        a("s_lshl_b32 s21, s14, 4"); a("s_add_u32 s21, s21, s13"); a("s_lshl_b32 s21, s21, 11"); a("s_add_u32 s21, s21, s16"); a(f"s_add_u32 s21, s21, {GO}")
        a("s_lshl_b32 s34, s14, 13"); a("s_add_u32 s34, s34, s16"); a(f"s_add_u32 s34, s34, {GO}")
        a("s_lshl_b32 s22, s39, 15"); a("s_add_u32 s22, s22, s34")
        a("s_lshl_b32 s23, s38, 15"); a("s_add_u32 s23, s23, s34")
        a(f"s_add_u32 s34, s17, {GH}")
        a(f"s_mul_i32 s24, s39, {112*1024}"); a("s_add_u32 s24, s24, s34")
        a(f"s_mul_i32 s25, s38, {112*1024}"); a("s_add_u32 s25, s25, s34")
        a("s_mul_i32 s34, s39, 14"); a("s_add_u32 s34, s34, s46")
        a("s_lshl_b32 s26, s34, 11"); a("s_add_u32 s26, s26, s16")
        a("s_lshl_b32 s27, s34, 8"); a("s_add_u32 s27, s27, s16")
        a("s_lshl_b32 s28, s14, 4"); a("s_add_u32 s28, s28, s13"); a(f"s_mul_i32 s28, s28, {7*1024}"); a("s_add_u32 s28, s28, s16"); a(f"s_add_u32 s28, s28, {GH}")
        a("s_lshl_b32 s34, s12, 2"); a("s_add_u32 s34, s34, s39")
        a(f"s_mul_i32 s57, s34, {32*896}"); a("s_lshl_b32 s34, s46, 6"); a("s_add_u32 s57, s57, s34")
        a("s_lshl_b32 s34, s14, 13"); a(f"s_add_u32 s34, s34, {WO}")
        a("s_lshl_b32 s58, s46, 15"); a("s_add_u32 s58, s58, s34")
        a("s_lshl_b32 s59, s47, 15"); a("s_add_u32 s59, s59, s34")
        a(f"s_mul_i32 s34, s14, {28*1024}"); a(f"s_add_u32 s34, s34, {W2}")
        a(f"s_mul_i32 s60, s46, {112*1024}"); a("s_add_u32 s60, s60, s34")
        a(f"s_mul_i32 s61, s47, {112*1024}"); a("s_add_u32 s61, s61, s34")
        a("s_mov_b32 s46, s41")
        a("v_mul_u32_u24 v208, 896, v206"); a("v_lshl_add_u32 v208, v207, 4, v208")
        a("buffer_load_dwordx4 v[8:11], v208, s[8:11], s57 offen")
        a("buffer_load_dwordx4 v[12:15], v208, s[8:11], s57 offen offset:32")
        a("s_lshl_b32 s29, s12, 8")
        a("s_lshl_b32 s34, s13, 3"); a("s_add_u32 s30, s29, s34")
        a("s_lshl_b32 s62, s12, 4"); a("s_add_u32 s62, s62, s13"); a("s_lshl_b32 s62, s62, 7"); a(f"s_add_u32 s62, s62, {F1}")
        a("s_add_u32 s34, s14, 1"); a("s_lshl_b32 s34, s34, 11"); a("s_sub_u32 s31, s62, s34")
        a("s_sub_u32 s50, s14, 1")
        a(f"s_mov_b32 s52, {f32(1.0/448)}"); a(f"s_mov_b32 s53, {f32(1e-5)}")
        a(f"s_mov_b32 s54, {f32(28**-0.5 * math.log2(math.e))}"); a(f"s_mov_b32 s55, {f32(-math.log2(math.e))}")
        a(f"s_mov_b32 s56, {f32(-2.0**100)}")
        a("s_mov_b32 s40, 0"); a("s_mov_b32 s41, -1")
        if DTS:
            a("s_lshl_b32 s51, s2, 2"); a("s_add_u32 s51, s51, s14"); a(f"s_sub_u32 s51, s51, {DTS*4}")
            a("s_mov_b64 s[44:45], s[80:81]")
        a("v_readfirstlane_b32 s100, v210")
        a("v_readfirstlane_b32 s101, v211")
        a("s_cmp_lg_u32 s100, 0")
        a(f"s_cbranch_scc1 {Lok}")
        a.uncounted = True
        a(f"{Lt}:")
        a("global_load_dwordx2 v[210:211], v203, s[80:81] sc1")
        a("s_waitcnt vmcnt(0)")
        a("v_readfirstlane_b32 s100, v210")
        a("v_readfirstlane_b32 s101, v211")
        a("s_sub_u32 s33, s33, 1")
        a("s_cmp_eq_u32 s33, 0")
        a("s_cbranch_scc1 main_done")
        a("s_cmp_lg_u32 s100, 0")
        a(f"s_cbranch_scc0 {Lt}")
        a.uncounted = False
        a(f"{Lok}:")
        a("s_barrier")
        def sig():
            a("s_lshl_b32 s35, s13, 8"); a("s_add_u32 s35, s35, s69")
            self.signal("s35", PKA, False)
            a("s_add_u32 s35, s101, s63")
            a("v_mov_b32 v221, s35")
            a(f"s_add_u32 s34, s30, {XCCT}")
            a("s_mov_b64 exec, 1")
            a(f"buffer_store_dwordx2 v[220:221], v0, {SRD}, s34 offen sc1")
            a("s_mov_b64 exec, -1")
        self.wave0_else(sig, None)
        self.dts()
        self.ts(2)
        a("v_lshlrev_b32 v4, 4, v206"); a(f"v_add_u32 v4, {MISC}, v4")
        a("v_cmp_eq_u32 vcc, 28, v206")
        a("v_cndmask_b32 v5, 0, 1.0, vcc")
        a("s_lshl_b32 s34, s14, 7"); a(f"s_add_u32 s34, s34, {L_ST}")
        a("v_lshl_add_u32 v3, v206, 2, s34")
        a("v_lshl_add_u32 v6, v207, 4, s34")
        for k in range(1, 4):
            a(f"v_xor_b32 v{196+k}, {32*k}, v204")
        a.drain(lgkm=False)
        a("s_barrier")
        for i in range(8):
            for m in range(2):
                a(f"ds_read_b64_tr_b16 {vr(224+4*i+2*m, 2)}, v205 offset:{i*2048 + m*512}")
        for k in range(4):
            a(f"v_mov_b32 v{188+k}, 0")
        for i in range(7):
            for k in range(4):
                a(f"v_dot2_f32_bf16 v{188+k}, v{224+4*i+k}, v209, v{188+k}")
        a("v_add_f32 v188, v188, v189"); a("v_add_f32 v190, v190, v191"); a("v_add_f32 v5, v188, v190")
        a("s_mov_b64 s[96:97], s[92:93]"); a("s_mov_b32 s98, s94"); a("s_mov_b32 s47, s70")
        for ks in range(28):
            a(f"ds_read_b128 {vr(X+4*ks)}, {'v204' if ks % 4 == 0 else 'v%d' % (196 + ks % 4)} offset:{(ks >> 2)*4096}")
        a("s_mov_b32 s8, s78"); a("s_mov_b32 s9, s79")
        a("v_lshlrev_b32 v207, 2, v207")
        a("v_sub_u32 v207, v206, v207")
        for rho in range(16):
            kk = 8 * (rho >> 2) + (rho & 3)
            a(f"v_cmp_le_i32 s[{64+2*rho}:{65+2*rho}], {kk}, v207")
        a("s_lshl_b32 s35, s13, 8")
        def polls():
            Lb = self.label("pb"); Lc = self.label("pc")
            a("s_cmp_eq_u32 s14, 0"); a(f"s_cbranch_scc0 {Lb}")
            self.poll("s35", PKA, "0xfff")
            a(f"s_branch {Lc}")
            a(f"{Lb}:")
            self.xcc_poll()
            a("s_mov_b64 exec, -1")
            a(f"{Lc}:")
        self.wave_if("s_cmp_lt_u32 s14, 2", polls, None)
        a("s_lshr_b32 s37, s14, 1"); a(f"s_mul_i32 s37, s37, {28*1024}")
        a("s_and_b32 s39, s14, 1"); a(f"s_mul_i32 s39, s39, {7*1024}"); a("s_add_u32 s37, s37, s39")
        a(f"s_mul_i32 s39, s14, {7*1024}")
        a.drain()
        a("s_barrier")
        self.ts(2)
        self.tokW = [a.tok(), a.tok(), a.tok()]
        a("s_add_u32 s38, s48, s37")
        self.dma("s38", 0, "s37", 98 * 1024, 7, flags="sc1", tok=self.tokW[0])
        self.dma("s38", 14 * 1024, "s37", 112 * 1024, 7, flags="sc1", tok=self.tokW[1])

    def xstream(self, S, a, sx, xoff, sst, stoff, X, T, gaps):
        items = [self.xload(sx, xoff, X, ks) for ks in range(28)]
        sitems = []
        for u in range(7):
            g = []
            if u == 0:
                g.append(f"s_add_u32 s35, {sst}, {stoff}")
            g.append(f"buffer_load_dwordx2 {vr(T+2*u, 2)}, v7, {SRD}, s35 offen offset:{u*512} sc1")
            sitems.append(g)
        order = items[:SPOS] + sitems + items[SPOS:]
        for g in order[:XD]:
            for t in g:
                a(t)
        pos = {}
        for k, g in enumerate(order[XD:]):
            S.post(gaps[k], self.grp(g), cost=1.5)
            pos[XD + k] = gaps[k]
        return pos[SPOS + 6]

    def p1(self, l):
        a = self.a
        X, AK, AV, AQ, WB, RV, AB = 16, 128, 144, 160, 176, 200, 212
        NB = 6
        S = Sched(budget=5)
        seq = []
        for ks in range(29):
            seq.append((0, ks)); seq.append((1, ks))
        for ks in range(29):
            seq.append((2, ks))
        ACC = {0: AK, 1: AV, 2: AQ}
        idx = {}
        for n, (p, ks) in enumerate(seq):
            idx[(p, ks)] = n
            wb = WB + 4 * (n % NB)
            if ks < 28:
                base, off = lds_blk(WQ_BLK[p] + ks)
                S.post(n - NB, f"ds_read_b128 {vr(wb)}, {base} offset:{off}")
                xb = vr(X + 4 * ks)
            else:
                S.post(n - NB, f"ds_read_b128 {vr(wb)}, v4 offset:{p*512}")
                xb = vr(AB)
            ac = vr(ACC[p], 16)
            c = "0" if ks == 0 else ac
            if p == 1:
                S.add_main(f"{MF} {ac}, {xb}, {vr(wb)}, {c}")
            else:
                S.add_main(f"{MF} {ac}, {vr(wb)}, {xb}, {c}")
        dq = idx[(0, 28)]
        e0 = idx[(1, 28)] + 1
        if l == 1:
            gaps = [int(G1 * k) for k in range(40)]
            gs = self.xstream(S, a, "s17", GX[2], "s18", GST[2], X, AQ, gaps)
            for t in self.stats_tree(AQ, 7) + self.stats_finish(AQ, AB):
                S.fill(t, earliest=gs + 14, deadline=dq)
        a("s_lshl_b32 s34, s14, 12")
        a("v_add_u32 v220, s34, v0")
        if l == 0:
            U, C = 224, 240
            n2, n3 = idx[(0, 14)] - NB, idx[(0, 28)] - NB
            C = RV
            a(f"v_lshrrev_b32 v{AQ+14}, 1, v7"); a(f"v_add_u32 v{AQ+15}, 4096, v0")
            l4 = f"v{AQ+14}"
            g = [[f"s_add_u32 s35, s18, {GST[0]}"] + [f"buffer_load_dwordx2 {vr(AQ+2*u, 2)}, v7, {SRD}, s35 offen offset:{u*512} sc1" for u in range(2)]]
            g += [[f"buffer_load_dwordx2 {vr(AQ+2*u, 2)}, v7, {SRD}, s35 offen offset:{u*512} sc1" for u in us] for us in ((2, 3), (4, 5), (6,))]
            g[-1] += ["s_min_u32 s36, s14, 2", "s_mul_i32 s35, s13, 3", "s_add_u32 s35, s35, s36", "s_lshl_b32 s35, s35, 12", f"s_add_u32 s35, s35, {CSP}"]
            cr = [C + k for k in range(12)] + [216, 217, 218, 219]
            g += [[f"buffer_load_dword v{cr[k]}, {l4}, {SRD}, s35 offen offset:{k*256} sc1" for k in (k0, k0 + 1)] for k0 in range(0, 16, 2)]
            for k, gg in enumerate(g):
                S.post(k, self.grp(gg), cost=2)
            a("s_add_u32 s38, s48, s39")
            for k, gg in enumerate(self.dma_groups("s38", 56 * 1024, "s39", 70 * 1024, 7, per=1, flags="sc1")):
                S.post(12 + k, self.grp(gg, tok=self.tokW[2]), cost=1.5)
            tokU = a.tok()
            for i in range(8):
                S.post(UST + 2 * i, f"buffer_store_dwordx4 {vr(224+4*i)}, {'v0' if i < 4 else 'v%d' % (AQ+15)}, s[96:99], 0 offen offset:{(i%4)*1024} sc1", tok=tokU, cost=2)
            S.post(UST + 16, self.grp([f"buffer_store_dword v5, {l4}, {SRD}, s47 offen sc1", "v_bfe_u32 v221, v7, 3, 5", "v_cmp_eq_u32 vcc, 28, v221", "v_cndmask_b32 v5, 0, 1.0, vcc"], tok=tokU), cost=3)
            def st2(aa):
                aa.wait_tok(self.tokW[1])
                aa("s_barrier")
            def st3(aa):
                aa.wait_tok(self.tokW[2], tokU)
                aa.drain(vm=False)
                aa("s_barrier")
                aa("v_mov_b32 v222, v220")
                self.wave_if("s_cmp_eq_u32 s14, 3", lambda: self.signal("s3", PKF, False), None)
                aa("v_mov_b32 v220, v222")
            S.pre(n2, st2)
            S.pre(n3, st3)
            o = []
            for st in (8, 4, 2, 1):
                o += [f"v_add_f32 v{cr[i]}, v{cr[i]}, v{cr[i+st]}" for i in range(st)]
            o += [f"v_mov_b32 v{C+1}, v{C}", "s_lshl_b32 s36, s36, 9", f"v_add_u32 v{C+8}, s36, v4", f"v_permlane32_swap_b32 v{C}, v{C+1}", f"v_add_f32 v{C}, v{C}, v{C+1}"]
            o += self.aug_split(C, C + 1, C + 2, C + 4) + [f"ds_write_b128 v{C+8}, {vr(C+4)}"]
            for t in o:
                S.fill(t, earliest=n2 + 4, deadline=n3)
            for t in self.stats_tree(AQ, 7) + self.stats_finish(AQ, AB):
                S.fill(t, earliest=n2, deadline=dq)
        S.fill("ds_write_b32 v3, v217", earliest=30, deadline=e0)
        for q in range(3):
            S.fill(f"ds_read_b128 {vr(RV+4*q)}, v6 offset:{q*32}", deadline=e0)
        S.fill("v_mul_f32 v219, s54, v217", deadline=e0)
        tokS = a.tok()
        f = lambda t, tok=None: S.fill(t, earliest=e0, cost=0.5, tok=tok)
        for i in range(16):
            f(f"v_mul_f32 v{AK+i}, v217, v{AK+i}")
        for i in range(8):
            f(f"v_cvt_pk_bf16_f32 v{AK+i}, v{AK+2*i}, v{AK+2*i+1}")
        f(f"ds_read_b128 {vr(AK+8)}, v6 offset:96")
        f(f"buffer_store_dwordx4 {vr(AK)}, v0, {SRD}, s19 offen sc1", tokS)
        f(f"buffer_store_dwordx4 {vr(AK+4)}, v0, {SRD}, s19 offen offset:1024 sc1", tokS)
        for i in range(16):
            rv = RV + i if i < 12 else AK + 8 + (i - 12)
            f(f"v_fma_f32 v{AV+i}, v{AV+i}, v{rv}, v5")
        for i in range(8):
            f(f"v_cvt_pk_bf16_f32 v{AV+i}, v{AV+2*i}, v{AV+2*i+1}")
        f(f"buffer_store_dwordx4 {vr(AV)}, v0, {SRD}, s19 offen offset:2048 sc1", tokS)
        f(f"buffer_store_dwordx4 {vr(AV+4)}, v0, {SRD}, s19 offen offset:3072 sc1", tokS)
        for k, r in enumerate((AK, AK + 4, AV, AV + 4)):
            S.fill(f"ds_write_b128 v220, {vr(r)} offset:{8*4096+k*1024}", earliest=e0)
        PM = 152
        S.fill("v_mov_b32 v216, 0xffff", earliest=e0); S.fill("v_mov_b32 v218, 0xffff0000", earliest=e0)
        for i in range(8):
            S.fill(f"v_cndmask_b32 v{PM+i}, 0, v216, s[{64+4*i}:{65+4*i}]", earliest=e0)
            S.fill(f"v_cndmask_b32 v221, 0, v218, s[{66+4*i}:{67+4*i}]", earliest=e0)
            S.fill(f"v_or_b32 v{PM+i}, v{PM+i}, v221", earliest=e0)
        S.pre(e0, lambda aa: self.ts(2))
        for k in (0, 1, 20, 40):
            S.pre(k, lambda aa: self.ts(3))
        S.emit(a)
        a("v_mov_b32 v176, v220")
        a.wait_tok(tokS)
        a.drain(vm=False)
        a("s_barrier")
        def sg():
            self.signal("s62", 0, False)
        self.wave0_else(sg, None)
        for i in range(16):
            a(f"v_mul_f32 v{AQ+i}, v219, v{AQ+i}")
        a("v_mov_b32 v221, s56")
        a(f"v_cndmask_b32 v{AQ+12}, v{AQ+12}, v221, s[40:41]")
        for i in range(8):
            a(f"v_cvt_pk_bf16_f32 v{AQ+i}, v{AQ+2*i}, v{AQ+2*i+1}")
        a("v_mov_b32 v168, v176")
        if l == 0:
            self.xcc_poll()
            a.forget()
            a("v_cmp_eq_u32 vcc, s63, v218")
            a("s_mov_b64 exec, -1")
            a("s_mov_b32 s96, s4"); a("s_mov_b32 s97, s5"); a("s_mov_b32 s99, 0x20000")
            a("s_mov_b32 s0, s4"); a("s_mov_b32 s1, s5"); a("s_mov_b32 s3, 0x20000")
            if NOFAST:
                a("s_cmp_eq_u32 s4, -1")
            else:
                a("s_cmp_eq_u32 vcc_lo, 0xffff")
            a("s_cselect_b32 s98, 0x10000000, 0")
            a("s_cselect_b32 s2, 0, 0x10000000")
            a(f"s_cselect_b32 s63, 0, {SLOWD}")

    def p2(self, l):
        a = self.a
        Q, KF, SB, NM, PM, OA, VB = 160, 16, 88, 136, 152, 176, 192
        def halo():
            Lf = self.label("fill"); Lh = self.label("halo")
            a("s_lshl_b32 s37, s14, 14"); a("s_sub_u32 s37, 16384, s37")
            a("s_cmp_le_u32 s12, s14")
            a(f"s_cbranch_scc1 {Lf}")
            self.poll("s31", 0, "1")
            for half in range(2):
                for t in range(4):
                    a(f"s_add_u32 s34, s20, {t*4096 + half*2048}")
                    a(f"s_add_u32 m0, s37, {t*4096 + half*2048}")
                    for i in range(2):
                        a(f"buffer_load_dwordx4 v0, {SRD}, s34 offen offset:{i*1024} sc1 lds")
            a("s_waitcnt vmcnt(8)")
            a(f"s_branch {Lh}")
            a(f"{Lf}:")
            a("v_add_u32 v220, s37, v0")
            for i in range(8):
                a(f"v_mov_b32 v{SB+i}, 0")
            a("v_mov_b32 v221, 0x3f80")
            a(f"v_cndmask_b32 v{SB+6}, 0, v221, s[40:41]")
            for t in range(4):
                a(f"ds_write_b128 v220, {vr(SB)} offset:{t*4096}")
                a(f"ds_write_b128 v220, {vr(SB+4)} offset:{t*4096+1024}")
                a(f"ds_write_b128 v220, {vr(SB)} offset:{t*4096+2048}")
                a(f"ds_write_b128 v220, {vr(SB)} offset:{t*4096+3072}")
            a("s_waitcnt lgkmcnt(0)")
            a(f"{Lh}:")
        def pref():
            if l == 0:
                a("s_mul_i32 s35, s13, 7"); a("s_add_u32 s36, s35, 6"); a("s_lshr_b32 s35, s35, 2"); a("s_lshr_b32 s36, s36, 2")
                a("s_sub_u32 s36, s36, s35"); a("s_cmp_eq_u32 s36, 2"); a("s_cselect_b32 s47, 0xf00, 0"); a("s_or_b32 s47, s47, 0x00ff00ff")
                a("s_lshl_b32 s35, s35, 5")
                a("s_lshl_b32 s36, s46, 5"); a(f"s_add_u32 s36, s36, {112*8}")
                a("s_lshl_b32 s37, s46, 3"); a(f"s_add_u32 s37, s37, {168*8}")
                a("v_bfe_u32 v218, v7, 7, 2")
                a("v_mov_b32 v220, s35"); a("v_mov_b32 v221, s36"); a("v_mov_b32 v219, s37")
                a("v_cmp_eq_u32 vcc, 1, v218"); a("v_cndmask_b32 v220, v220, v221, vcc")
                a("v_cmp_eq_u32 vcc, 2, v218"); a("v_cndmask_b32 v220, v220, v219, vcc")
                a("v_and_b32 v218, 0x78, v7"); a("v_add_u32 v218, v218, v220")
                a("s_mov_b32 s35, 0")
                self.poll("s35", PKF, "s47", vaddr="v218", hi="3")
                a("s_sub_u32 s37, s14, 2"); a("s_mul_i32 s37, s37, 3")
                a("s_mul_i32 s38, s13, 7"); a("s_add_u32 s38, s38, s37"); a("s_lshl_b32 s38, s38, 10"); a(f"s_add_u32 s38, s38, {CSP13}")
                a("v_lshrrev_b32 v218, 1, v7")
                for k in range(16):
                    a(f"!buffer_load_dword v{SB+k}, v218, {SRD}, s38 offen offset:{k*256} sc1")
                a("s_lshl_b32 s37, s37, 9"); a("v_add_u32 v218, s37, v4")
            a("s_sub_u32 s37, s14, 2"); a(f"s_mul_i32 s37, s37, {N1*1024}")
            a("s_add_u32 s38, s49, s37")
            if not (EXP & 2 and l == 1):
                self.dma("s38", 0, "s37", 48 * 1024, N1, flags="sc1")
            if l == 0:
                a(f"s_waitcnt vmcnt({N1})")
                for t in range(4):
                    c = SB + 4 * t
                    for tt in (f"v_add_f32 v{c}, v{c}, v{c+1}", f"v_add_f32 v{c+2}, v{c+2}, v{c+3}", f"v_add_f32 v{c}, v{c}, v{c+2}",
                               f"v_mov_b32 v{c+1}, v{c}", "s_nop 1", f"v_permlane32_swap_b32 v{c}, v{c+1}", f"v_add_f32 v{c}, v{c}, v{c+1}"):
                        a("!" + tt if False else tt)
                    for tt in self.aug_split(c, c + 1, c + 2, SB + 16 + 4 * t):
                        a(tt)
                    a(f"ds_write_b128 v218, {vr(SB+16+4*t)} offset:{(3+t)*512}")
                a("s_waitcnt lgkmcnt(0)")
        self.code_jit()
        self.wave_if("s_cmp_lt_u32 s14, 2", halo, pref)
        a(f"s_mul_i32 s37, s14, {N2*1024}")
        a("s_add_u32 s38, s49, s37")
        a("s_barrier")
        self.ts()
        order = [8, 0, 1, 2, 3, 4, 5, 6, 7]
        S = Sched(budget=5)
        for n, i in enumerate(order):
            for s in range(2):
                S.post(2 * n + s - 6, f"ds_read_b128 {vr(KF+8*n+4*s)}, v168 offset:{i*4096+s*1024}")
        for n, i in enumerate(order):
            sb = SB + 16 * (n % 3)
            S.add_main(f"{MF} {vr(sb,16)}, {vr(KF+8*n)}, {vr(Q)}, 0")
            S.add_main(f"{MF} {vr(sb,16)}, {vr(KF+8*n+4)}, {vr(Q+4)}, {vr(sb,16)}")
            e = 2 * n + 3
            dl = 2 * (n + 3)
            if n == 0:
                continue
            if n == 1:
                sd = SB
                for k in range(16):
                    S.fill(f"v_cndmask_b32 v{sb+k}, v{sb+k}, v{sd+k}, s[{64+2*k}:{65+2*k}]", earliest=e, deadline=6)
                S.fill(f"v_max_f32 v216, v{sb}, v{sb+1}", earliest=e, deadline=dl)
                for k in range(1, 8):
                    S.fill(f"v_max3_f32 v216, v216, v{sb+2*k}, v{sb+2*k+1}", earliest=e, deadline=dl)
            else:
                for k in range(8):
                    S.fill(f"v_max3_f32 v216, v216, v{sb+2*k}, v{sb+2*k+1}", earliest=e, deadline=dl)
        if l == 0:
            for k in range(4):
                a(f"v_mov_b32 v{VB+k}, 0")
            for k, g in enumerate(self.zero_groups(VB, (("s21", 0, 2), ("s26", GX[1], 2), ("s28", 5120, 2), ("s26", GX[2], 2)), (GST[1], GST[2]))):
                S.post((3 * k) // 2, self.grp(g), cost=1.5)
        S.emit(a)
        a("v_mov_b32 v217, v216")
        a("v_permlane32_swap_b32 v216, v217")
        a("v_max_f32 v216, v216, v217")
        for k in range(16):
            a(f"v_sub_f32 v{NM+k}, 0, v216")
        nz = 10 if l == 0 else 0
        self.wave_if("s_cmp_lt_u32 s14, 2", lambda: a(f"s_waitcnt vmcnt({nz})"), None)
        a("s_barrier")
        self.ts(2)
        S = Sched(budget=10)
        nv = [0]
        def vread(i, s, gap):
            vb = VB + 4 * (nv[0] % 6); nv[0] += 1
            S.post(gap, f"ds_read_b128 {vr(vb)}, v168 offset:{i*4096+2048+s*1024}")
            return vb
        def smm(n):
            sb = SB + 16 * (n % 3)
            S.add_main(f"{MF} {vr(sb,16)}, {vr(KF+8*n)}, {vr(Q)}, {vr(NM,16)}")
            return S.add_main(f"{MF} {vr(sb,16)}, {vr(KF+8*n+4)}, {vr(Q+4)}, {vr(sb,16)}")
        first = [True]
        def pv(i, pb):
            for s in range(2):
                vb = vread(i, s, len(S.main) - 4)
                c = "0" if first[0] else vr(OA, 16)
                first[0] = False
                S.add_main(f"{MF} {vr(OA,16)}, {vr(vb)}, {vr(pb+4*s)}, {c}")
        def soft(n, e, dl):
            sb = SB + 16 * (n % 3)
            for k in range(8):
                S.fill(f"v_exp_f32 v{sb+2*k}, v{sb+2*k}", earliest=e, deadline=dl)
                S.fill(f"v_exp_f32 v{sb+2*k+1}, v{sb+2*k+1}", earliest=e, deadline=dl)
                if k >= 1:
                    S.fill(f"v_cvt_pk_bf16_f32 v{sb+k-1}, v{sb+2*k-2}, v{sb+2*k-1}", earliest=e, deadline=dl)
            S.fill(f"v_cvt_pk_bf16_f32 v{sb+7}, v{sb+14}, v{sb+15}", earliest=e, deadline=dl)
        smm(0); i1 = smm(1); i2 = smm(2)
        sb1 = SB + 16
        for k in range(16):
            S.fill(f"v_cndmask_b32 v{sb1+k}, v{sb1+k}, v{SB+k}, s[{64+2*k}:{65+2*k}]", earliest=i1 + 1, deadline=6)
        i3 = smm(3)
        soft(1, i1 + 1, 8)
        for k in range(8):
            S.fill(f"v_bfi_b32 v{sb1+8+k}, v{PM+k}, 0, v{sb1+k}", deadline=8)
            S.fill(f"v_and_b32 v{sb1+k}, v{PM+k}, v{sb1+k}", deadline=8)
        pv(8, sb1); pv(0, sb1 + 8)
        send = {2: i2, 3: i3}
        for n in range(2, 9):
            if n + 2 <= 8:
                send[n + 2] = smm(n + 2)
            soft(n, send[n] + 1, len(S.main))
            pv(order[n], SB + 16 * (n % 3))
        for k, g in enumerate(self.dma_groups("s38", 2 * N1 * 1024, "s37", (48 + 2 * N1) * 1024, N2, per=1, flags="sc1")):
            if not (EXP & 1 and l == 1):
                S.post(2 * k, self.grp(g), cost=1.5)
        if l == 0:
            for k, g in enumerate(self.priv_groups(wo_frag, "s58", "s59", 0, 8)):
                S.post(4 * k + 1, self.grp(g), cost=2)
        S.emit(a)
        a(f"v_mov_b32 v216, v{OA+12}")
        a(f"v_mov_b32 v217, v{OA+12}")
        a("v_permlane32_swap_b32 v216, v217")
        a("v_rcp_f32 v217, v217")
        for k in range(16):
            a(f"v_mul_f32 v{OA+k}, v217, v{OA+k}")
            if k in (7, 15):
                h = k // 8
                for kk in range(4):
                    a(f"v_cvt_pk_bf16_f32 v{OA+8*h+kk}, v{OA+8*h+2*kk}, v{OA+8*h+2*kk+1}")
                self.hstore(f"buffer_store_dwordx4 {vr(OA+8*h)}, v0, {SRD}, s21 offen offset:{h*1024}")(a)

    def ksplit_pre(self):
        a = self.a
        AC = 16
        for k in range(8):
            a(f"v_lshlrev_b32 v{AC+2*k}, 16, v{8+k}")
            a(f"v_and_b32 v{AC+2*k+1}, 0xffff0000, v{8+k}")
        for s in range(1, 4):
            a(f"s_xor_b32 s34, s14, {s}")
            a(f"s_mul_i32 s34, s34, 12288")
            a(f"s_add_u32 s34, s34, {(s-1)*4096}")
            a(f"v_add_u32 v{207+s}, s34, v0")
        a(f"s_mul_i32 s34, s14, 12288")
        a("v_add_u32 v211, s34, v0")
        for k in range(4):
            a(f"v_mov_b32 v{212+k}, 0")
        a("v_mov_b32 v216, 0x3f803f80")
        a("v_and_b32 v217, 0xf8, v7")

    def ksplit(self, n, sa0, sa1, wfrag, final, extra=None):
        a = self.a
        AC, AB, NBUF = 16, 80, 16
        loads = []
        for i in range(n):
            for s, sa in ((0, sa0), (1, sa1)):
                st = "s36" if s == 0 else "s37"
                g = []
                if i % 4 == 0:
                    g.append(f"s_add_u32 {st}, {sa}, {i*1024}")
                g.append(f"buffer_load_dwordx4 {vr(AB + 8*(i % NBUF) + 4*s)}, v0, {SRD}, {st} offen offset:{(i%4)*1024} sc1{NTA}")
                loads.append((i, g))
        S = Sched(budget=5)
        TL = KTL
        order = [(i, sl) for i in range(n - TL) for sl in (1, 0, 2, 3)]
        order += [(i, sl) for sl in (1, 2, 3, 0) for i in range(n - TL, n)]
        for (i, sl) in order:
            aa, bb = sl >> 1, sl & 1
            ac = AC + 16 * sl
            c = vr(ac, 16) if (i > 0 or sl == 0) else "0"
            m = S.add_main(f"{MF} {vr(ac,16)}, {wfrag(i,bb)}, {vr(AB + 8*(i % NBUF) + 4*aa)}, {c}")
            if i == n - 1 and sl != 0:
                for q in range(4):
                    S.fill(f"ds_write_b128 v{207+sl}, {vr(AC+16*sl+4*q)} offset:{q*1024}", earliest=m + 2, cost=2.5)
        for k, (i, g) in enumerate(loads):
            pos = -1 if k < KD else max(int(KP * (k - KD)), 4 * (i - NBUF) + 3)
            S.post(pos, self.grp(g), cost=1.5)
        if extra:
            for k, g in enumerate(extra):
                S.post(8 + 2 * k, self.grp(g), cost=2)
        if n == 28:
            for k in (0, 1, 28, 56, 84):
                S.pre(k, lambda aa: self.ts(3))
        S.pre(len(order), lambda aa: self.ts(2))
        S.emit(a)
        a.drain(vm=False)
        a("s_barrier")
        for q in range(4):
            for s in range(3):
                a(f"ds_read_b128 {vr(AB+16*s+4*q)}, v211 offset:{s*4096+q*1024}")
        for h in range(2):
            for q in (2 * h, 2 * h + 1):
                for s in range(3):
                    for k in range(4 * q, 4 * q + 4):
                        a(f"v_add_f32 v{AC+k}, v{AC+k}, v{AB+16*s+k}")
            for k in range(4 * h, 4 * h + 4):
                a(f"v_cvt_pk_bf16_f32 v{8+k}, v{AC+2*k}, v{AC+2*k+1}")
            final(h)

    def store_x(self, xoff, stoff):
        a = self.a
        def fin(h):
            if h == 0:
                a(f"s_add_u32 s34, s26, {xoff}")
            self.hstore(f"buffer_store_dwordx4 {vr(8+4*h)}, v0, {SRD}, s34 offen offset:{h*1024}")(a)
            for k in range(4 * h, 4 * h + 4):
                o = 2 * (k & 1)
                a(f"v_dot2_f32_bf16 v{212+o}, v{8+k}, v216, v{212+o}")
                a(f"v_dot2_f32_bf16 v{213+o}, v{8+k}, v{8+k}, v{213+o}")
            if h == 1:
                a(f"s_add_u32 s35, s27, {stoff}")
                a("v_add_f32 v212, v212, v214")
                a("v_add_f32 v213, v213, v215")
                a("v_mov_b32 v214, v212")
                a("v_mov_b32 v215, v213")
                a("v_permlane32_swap_b32 v212, v214")
                a("v_permlane32_swap_b32 v213, v215")
                a("v_add_f32 v212, v212, v214")
                a("v_add_f32 v213, v213, v215")
                self.hstore(f"buffer_store_dwordx2 v[212:213], v217, {SRD}, s35 offen")(a)
        return fin

    def p3(self, l):
        a = self.a
        Le = self.label("p3end")
        a.drain()
        a("s_barrier")
        self.wave0_else(lambda: self.signal("s30", 0 * 4096, True),
                        (lambda: self.dma3("s49", 106 - 3 * N3, N3, 48 + 106 - 3 * N3)) if N3 else None)
        a("s_cmp_ge_u32 s13, 14")
        a(f"s_cbranch_scc1 {Le}")
        if l == 0:
            for g in self.priv_groups(w2_frag, "s60", "s61", 0, W2A):
                for t in g:
                    a(t)
        self.ksplit_pre()
        self.wave0_else(lambda: self.poll("s29", 0 * 4096, "0xffff"), None)
        a("s_barrier")
        self.ts()
        self.ksplit(8, "s22", "s23", wo_frag, self.store_x(GX[1], GST[1]),
                    self.priv_groups(w2_frag, "s60", "s61", W2A, W2B) if l == 0 else None)
        a.drain()
        a("s_barrier")
        self.wave0_else(lambda: self.signal("s30", 1 * 4096, True), None)
        if CPF >= 2:
            Lx = self.label("p3x")
            a(f"s_branch {Lx}")
            a(f"{Le}:")
            a.uncounted = True
            self.code_ahead()
            a.uncounted = False
            a(f"{Lx}:")
        else:
            a(f"{Le}:")

    def dma3(self, sbase, q0, n3, lds0):
        a = self.a
        a(f"s_mul_i32 s37, s50, {n3*1024}")
        a(f"s_add_u32 s38, {sbase}, s37")
        self.dma("s38", q0 * 1024, "s37", lds0 * 1024, n3, flags="sc1")

    def p4(self, l):
        a = self.a
        X, AC, WB, NB, AB = 16, 128, 192, 5, 212
        self.wave0_else(lambda: self.poll("s29", 1 * 4096, "0x3fff"), None)
        a.drain(lgkm=False)
        a(f"s_mul_i32 s37, s14, {12*1024}")
        a("s_add_u32 s38, s49, s37")
        a("s_barrier")
        self.ts()
        S = Sched(budget=5)
        seq = []
        for ks in range(29):
            for t in range(3):
                seq.append((t, ks))
        for t in range(3, 7):
            for ks in range(29):
                seq.append((t, ks))
        aset = {0: 0, 1: 1, 2: 2, 3: 3, 4: 0, 5: 1, 6: 2}
        idx = {k: n for n, k in enumerate(seq)}
        first = {t: idx[(t, 0)] for t in range(7)}
        last = {t: idx[(t, 28)] for t in range(7)}
        for n, (t, ks) in enumerate(seq):
            wb = WB + 4 * (n % NB)
            if ks < 28:
                base, off = lds_blk(w13_blk(t * 28 + ks))
                S.post(n - NB, f"ds_read_b128 {vr(wb)}, {base} offset:{off}")
                xb = vr(X + 4 * ks)
            else:
                S.post(n - NB, f"ds_read_b128 {vr(wb)}, v4 offset:{(3+t)*512}")
                xb = vr(AB)
            ac = vr(AC + 16 * aset[t], 16)
            S.add_main(f"{MF} {ac}, {vr(wb)}, {xb}, {'0' if ks == 0 else ac}")
        T = AC + 48
        gaps = [int(G4 * k) for k in range(40)]
        gs = self.xstream(S, a, "s15", GX[1], "s32", GST[1], X, T, gaps)
        for t in self.stats_tree(T, 7) + self.stats_finish(T, AB):
            S.fill(t, earliest=gs + 20, deadline=idx[(0, 28)])
        S.fill("v_mul_f32 v217, s55, v217", deadline=idx[(0, 28)])
        g0 = gaps[35 - XD]
        for k, g in enumerate(self.dma_groups("s38", 106 * 1024, "s37", 0, 12, per=1, flags="sc1")):
            if not (EXP & 4 and l == 1):
                S.post(g0 + 2 * k, self.grp(g), cost=1.5)
        assert g0 + 24 < first[3]
        def epi(t, earliest, deadline):
            ac = AC + 16 * aset[t]
            f = lambda s, c=None: S.fill(s, earliest=earliest, deadline=deadline, cost=c)
            for i in range(8):
                f(f"v_mul_f32 v{ac+8+i}, v{ac+i}, v{ac+8+i}")
                f(f"v_mul_f32 v{ac+i}, v217, v{ac+i}")
            for i in range(8):
                f(f"v_exp_f32 v{ac+i}, v{ac+i}")
            for i in range(8):
                f(f"v_fma_f32 v{ac+i}, v{ac+i}, v219, v219")
            for i in range(8):
                f(f"v_rcp_f32 v{ac+i}, v{ac+i}")
            for i in range(8):
                f(f"v_mul_f32 v{ac+i}, v{ac+i}, v{ac+8+i}")
            for i in range(4):
                f(f"v_cvt_pk_bf16_f32 v{ac+i}, v{ac+2*i}, v{ac+2*i+1}")
            if t % 4 == 0:
                f(f"s_add_u32 s39, s28, {t*1024}")
            st_ = f"buffer_store_dwordx4 {vr(ac)}, v0, {SRD}, s39 offen offset:{(t%4)*1024}"
            if t >= 5:
                f(self.hstore(st_), 3)
            else:
                f(st_ + " sc1", 2)
        tokD = a.tok()
        nmid = first[3] + 12
        def midbar(aa):
            aa.drain(vm=True, lgkm=False)
            self.ts(2)
            aa("s_barrier")
            aa(f"s_mul_i32 s37, s14, {11*1024}")
            aa("s_add_u32 s38, s49, s37")
        assert nmid <= idx[(3, 22)] - NB
        S.pre(nmid, midbar)
        for k, g in enumerate(self.dma_groups("s38", 154 * 1024, "s37", 48 * 1024, 11, per=1, flags="sc1")):
            if not (EXP & 4 and l == 1):
                S.post(nmid + 2 * k, self.grp(g, tok=tokD), cost=1.5)
        def bar2(aa):
            self.ts(2)
            aa.wait_tok(tokD)
            aa("s_barrier")
            aa(f"s_mul_i32 s37, s14, {14*1024}")
            aa("s_add_u32 s38, s48, s37")
        nb2 = idx[(5, 14)] - NB
        S.pre(nb2, bar2)
        if l == 0:
            for k, g in enumerate(self.dma_groups("s38", 0, "s37", 98 * 1024, 14, per=1, flags="sc1")):
                S.post(nb2 + 1 + 3 * k, self.grp(g), cost=1.5)
            gs2 = self.priv_groups(w2_frag, "s60", "s61", W2B, 28)
            for k, g in enumerate(gs2):
                p = nmid + 23 + (70 // max(len(gs2), 1)) * k
                if p > nb2 and (p - nb2 - 1) % 3 == 0:
                    p += 1
                S.post(p, self.grp(g), cost=2)
        epi(0, last[2] + 1, first[4])
        epi(1, last[2] + 1, first[5])
        epi(2, last[2] + 1, first[6])
        for t in range(3, 7):
            epi(t, last[t] + 2, None)
        S.pre(len(seq), lambda aa: self.ts(2))
        for k in (0, 1, 21, 42, 63):
            S.pre(k, lambda aa: self.ts(3))
        S.emit(a)

    def p5(self, l):
        a = self.a
        Le = self.label("p5end")
        a.drain()
        a("s_barrier")
        self.wave0_else(lambda: self.signal("s30", 2 * 4096, True),
                        (lambda: self.dma3("s48", 54, 10, 68)) if l == 0 else None)
        if l == 0:
            self.code_jit()
        a("s_cmp_ge_u32 s13, 14")
        a(f"s_cbranch_scc1 {Le}")
        self.ksplit_pre()
        if l == 1:
            a("v_bfe_u32 v212, v7, 3, 5")
            a("v_mul_u32_u24 v212, 896, v212")
            a("v_bfe_u32 v213, v7, 8, 1")
            a("v_lshl_add_u32 v212, v213, 4, v212")
        self.wave0_else(lambda: self.poll("s29", 2 * 4096, "0xffff"), None)
        a("s_barrier")
        self.ts()
        if l == 0:
            self.ksplit(28, "s24", "s25", w2_frag, self.store_x(GX[2], GST[2]))
            a.drain()
            a("s_barrier")
            self.wave0_else(lambda: self.signal("s30", 3 * 4096, True), None)
        else:
            self.ksplit(28, "s24", "s25", w2_frag,
                        lambda h: a(f"buffer_store_dwordx4 {vr(8+4*h)}, v212, s[8:11], s57 offen offset:{32*h}"))
        if CPF >= 2 and l == 0:
            Lx = self.label("p5x")
            a(f"s_branch {Lx}")
            a(f"{Le}:")
            a.uncounted = True
            self.code_ahead()
            a.uncounted = False
            a(f"{Lx}:")
        else:
            a(f"{Le}:")

    def build(self):
        a = self.a
        self.nts = 28
        self.prologue()
        for l in range(2):
            self.nts = 0
            if l == 0:
                a.wait_tok(self.tokW[0])
            else:
                a.drain()
            a("s_barrier")
            self.ts()
            self.dts()
            ph = [self.p1, self.p2, self.p3, self.p4, self.p5]
            for k, p in enumerate(ph):
                p(l)
                self.ts()
                self.dts()
                if STOP == 5 * l + k + 1:
                    a("s_branch main_done")
            if l == 0:
                self.wave0_else(lambda: self.poll("s29", 3 * 4096, "0x3fff"), None)
                for s, d in (("s19", 0x40000), ("s20", 0x40000), ("s29", 4 * 4096), ("s30", 4 * 4096), ("s31", 0x8000), ("s62", 0x8000)):
                    a(f"s_add_u32 {s}, {s}, {d}")
                for s in ("s15", "s32", "s21", "s22", "s23", "s24", "s25", "s26", "s27", "s28"):
                    a(f"s_add_u32 {s}, {s}, s63")
                if TS:
                    a("s_add_u32 s51, s51, 256")
        a("main_done:")
        a("s_endpgm")
        txt, n = a.finish()
        return txt


def gen_main():
    return G().build()

MAIN_KD = dict(vgpr=512, sgpr=102, accum=256, grid=256, block=256, lds=LDS_BYTES)
```

```python
import math, struct, os
from asmlib import *
from layout import *

STOP = int(os.environ.get("STOP", "99"))
TS = int(os.environ.get("TS", "0"))
NOFAST = int(os.environ.get("NOFAST", "0"))

DTS = int(os.environ.get("DTS", "0"))
X0N = int(os.environ.get("X0N", "8"))
CPF = int(os.environ.get("CPF", "2"))
KTL = int(os.environ.get("KTL", "1"))
W2A = int(os.environ.get("W2A", "4"))
W2B = int(os.environ.get("W2B", "16"))
NTW = " nt" if int(os.environ.get("NTW", "0")) else ""
NTA = " nt" if int(os.environ.get("NTA", "0")) else ""
EXP = int(os.environ.get("EXP", "0"))
UST = int(os.environ.get("UST", "12"))
G4 = float(os.environ.get("G4", "2"))
G1 = float(os.environ.get("G1", "1.5"))
N1, N2, N3 = (int(x) for x in os.environ.get("NW", "19,17,0").split(","))
assert 2 * N1 + 4 * N2 + 3 * N3 == 106
XD = int(os.environ.get("XD", "8"))
SPOS = int(os.environ.get("SPOS", "16"))
KD = int(os.environ.get("KD", "10"))
KP = float(os.environ.get("KP", "2"))
KNAME = "interleave_layers__sliding_block__glu_gated_swiglu__prompt_kernel"
def f32(x):
    return "0x%08x" % struct.unpack("<I", struct.pack("<f", x))[0]

MISC = 154 * 1024
L_AUG = MISC
L_ST = MISC + 5120
LDS_BYTES = 160 * 1024
WQ_BLK = {0: 98, 1: 126, 2: 70}

def w13_blk(q):
    return 48 + q if q < 106 else (q - 106 if q < 154 else 48 + q - 154)

SRD = "s[4:7]"
MF = "v_mfma_f32_32x32x16_bf16"

def vr(b, n=4):
    return f"v[{b}:{b+n-1}]"

def ar(b, n=4):
    return f"a[{b}:{b+n-1}]"

def lds_blk(b):
    return f"v{b // 64}", (b % 64) * 1024

def w2_frag(i, b):
    return ar((2 * i + b) * 4)

def wo_frag(i, b):
    k = 2 * i + b
    return ar(224 + 4 * k) if k < 8 else vr(224 + 4 * (k - 8))

class G:
    def __init__(self):
        self.a = Asm()
        self.nl = 0
        self.nts = 0
        self.ndts = 0

    def label(self, base):
        self.nl += 1
        return f"L{base}_{self.nl}"

    def ts(self, lvl=1):
        if TS < lvl:
            return
        a = self.a
        k = self.nts
        self.nts += 1
        unc = a.uncounted
        a("s_memrealtime s[42:43]")
        a("s_memtime s[44:45]")
        a("s_waitcnt lgkmcnt(0)")
        a.uncounted = True
        a("v_mov_b32 v222, s42")
        a("v_mov_b32 v223, s44")
        a(f"s_add_u32 s42, s51, {k*8}")
        a("s_mov_b64 exec, 1")
        a(f"buffer_store_dwordx2 v[222:223], v0, {SRD}, s42 offen")
        a("s_mov_b64 exec, -1")
        a.uncounted = unc

    def dts(self):
        if not DTS:
            return
        a = self.a
        k = self.ndts
        self.ndts += 1
        L = self.label("dts")
        unc = a.uncounted
        a("s_cmp_eq_u32 s51, 0")
        a(f"s_cbranch_scc0 {L}")
        a.uncounted = True
        a("s_memrealtime s[42:43]")
        a("s_waitcnt lgkmcnt(0)")
        a("v_mov_b32 v222, s42")
        a("s_mov_b64 exec, 1")
        a(f"global_store_dword v0, v222, s[44:45] offset:{8+4*k}")
        a("s_mov_b64 exec, -1")
        a.uncounted = unc
        a(f"{L}:")
        a("s_waitcnt lgkmcnt(0)")

    def dma_groups(self, sg, goff, slds, loff, n, flags="", per=4):
        out = []
        for i0 in range(0, n, per):
            g = [f"s_add_u32 s34, {sg}, {goff + i0*1024}", f"s_add_u32 m0, {slds}, {loff + i0*1024}"]
            for i in range(i0, min(n, i0 + per)):
                g.append(f"buffer_load_dwordx4 v0, {SRD}, s34 offen offset:{(i-i0)*1024} {flags} lds")
            out.append(g)
        return out

    def dma(self, sg, goff, slds, loff, n, tok=None, flags=""):
        for g in self.dma_groups(sg, goff, slds, loff, n, flags):
            for t in g:
                self.a(t, tok=tok)

    def grp(self, texts, tok=None):
        def f(a):
            for t in texts:
                a(t, tok=tok)
        return f

    def hstore(self, text):
        def f(a):
            if not NOFAST:
                a(text.replace(SRD, "s[96:99]"))
            a(text.replace(SRD, "s[0:3]") + " sc1")
        return f

    def signal(self, soff_sgpr, const, fast):
        a = self.a
        a(f"s_add_u32 s34, {soff_sgpr}, {const}")
        a("v_mov_b32 v220, s100")
        a("v_mov_b32 v221, s101")
        a("s_mov_b64 exec, 1")
        t = f"buffer_store_dwordx2 v[220:221], v0, {SRD}, s34 offen"
        if fast:
            self.hstore(t)(a)
        else:
            a(t + " sc1")
        a("s_mov_b64 exec, -1")

    def poll(self, soff_sgpr, const, mask, vaddr="v7", hi=None):
        a = self.a
        L = self.label("poll")
        a(f"s_add_u32 s34, {soff_sgpr}, {const}")
        a(f"s_mov_b32 exec_lo, {mask}")
        a(f"s_mov_b32 exec_hi, {hi if hi else 0}")
        a(f"{L}:")
        a(f"buffer_load_dwordx2 v[220:221], {vaddr}, {SRD}, s34 offen sc1")
        a("s_waitcnt vmcnt(0)")
        a("v_cmp_eq_u64 vcc, s[100:101], v[220:221]")
        a("s_sub_u32 s33, s33, 1")
        a("s_cmp_eq_u32 s33, 0")
        a(f"s_cbranch_scc1 main_done")
        a(f"s_cmp_eq_u64 vcc, exec")
        a(f"s_cbranch_scc0 {L}")
        a("s_mov_b64 exec, -1")

    def xcc_poll(self):
        a = self.a
        L = self.label("xcc")
        a(f"s_add_u32 s34, s29, {XCCT}")
        a("s_mov_b64 exec, 0xffff")
        a(f"{L}:")
        a(f"buffer_load_dwordx2 v[220:221], v7, {SRD}, s34 offen sc1")
        a("s_waitcnt vmcnt(0)")
        a("v_subrev_u32 v218, s101, v221")
        a("v_cmp_eq_u32 s[36:37], s100, v220")
        a("v_cmp_gt_u32 vcc, 16, v218")
        a("s_sub_u32 s33, s33, 1")
        a("s_cmp_eq_u32 s33, 0")
        a("s_cbranch_scc1 main_done")
        a("s_and_b32 s36, s36, vcc_lo")
        a("s_cmp_eq_u32 s36, 0xffff")
        a(f"s_cbranch_scc0 {L}")

    def wave_if(self, cmp, f0, f1):
        a = self.a
        Lo = self.label("oth"); Lj = self.label("join")
        a(cmp)
        a(f"s_cbranch_scc0 {Lo}")
        a.uncounted = True
        f0()
        if f1:
            a(f"s_branch {Lj}")
        a(f"{Lo}:")
        if f1:
            f1()
        a.uncounted = False
        if f1:
            a(f"{Lj}:")

    def wave0_else(self, f0, f1):
        self.wave_if("s_cmp_eq_u32 s14, 0", f0, f1)

    def stats_tree(self, T, n):
        o = []
        idx = list(range(n))
        while len(idx) > 1:
            nxt = []
            for k in range(0, len(idx) - 1, 2):
                x, y = idx[k], idx[k + 1]
                o.append(f"v_add_f32 v{T+2*x}, v{T+2*x}, v{T+2*y}")
                o.append(f"v_add_f32 v{T+2*x+1}, v{T+2*x+1}, v{T+2*y+1}")
                nxt.append(x)
            if len(idx) % 2:
                nxt.append(idx[-1])
            idx = nxt
        return o

    def stats_finish(self, T, AB):
        return [f"v_mov_b32 v{T+2}, v{T}", f"v_mov_b32 v{T+3}, v{T+1}",
              f"v_permlane32_swap_b32 v{T}, v{T+2}", f"v_permlane32_swap_b32 v{T+1}, v{T+3}",
              f"v_add_f32 v{T}, v{T}, v{T+2}", f"v_add_f32 v{T+1}, v{T+1}, v{T+3}",
              f"v_mul_f32 v216, s52, v{T}", f"v_mul_f32 v219, s52, v{T+1}",
              "v_fma_f32 v219, -v216, v216, v219", "v_max_f32 v219, 0, v219", "v_add_f32 v219, s53, v219",
              "v_rsq_f32 v217, v219",
              f"v_cndmask_b32 v{T}, -v216, 0, s[40:41]",
              f"v_cvt_pk_bf16_f32 v{T+1}, v{T}, v{T}",
              f"v_and_b32 v{T+1}, 0xffff0000, v{T+1}",
              f"v_sub_f32 v{T+1}, v{T}, v{T+1}",
              f"v_cvt_pk_bf16_f32 v{AB}, v{T}, v{T+1}",
              f"v_and_b32 v{T+2}, 0xffff0000, v{AB}",
              f"v_sub_f32 v{T+2}, v{T+1}, v{T+2}",
              f"v_cvt_pk_bf16_f32 v{AB+1}, v{T}, v{T+2}",
              f"v_mov_b32 v{AB+2}, v{AB}", f"v_mov_b32 v{AB+3}, 0"]

    def xload(self, sx, const, X, ks):
        o = []
        if ks % 4 == 0:
            o.append(f"s_add_u32 s36, {sx}, {const + ks*1024}")
        o.append(f"buffer_load_dwordx4 {vr(X+4*ks)}, v0, {SRD}, s36 offen offset:{(ks%4)*1024} sc1")
        return o

    def priv_groups(self, frag, sb0, sb1, i0, i1):
        out = []
        for b, sb in ((0, sb0), (1, sb1)):
            for i in range(i0, i1, 2):
                out.append([f"s_add_u32 s34, {sb}, {i*1024}",
                            f"buffer_load_dwordx4 {frag(i,b)}, v0, {SRD}, s34 offen sc1{NTW}",
                            f"buffer_load_dwordx4 {frag(i+1,b)}, v0, {SRD}, s34 offen offset:1024 sc1{NTW}"])
        return out

    def touch(self, sbase, const, nlines, dst):
        mask = (1 << nlines) - 1
        o = [f"s_add_u32 s34, {sbase}, {const}", "v_lshlrev_b32 v218, 3, v0"]
        if nlines <= 32:
            o.append(f"s_mov_b64 exec, {hex(mask)}")
        else:
            o += [f"s_mov_b32 exec_lo, -1", f"s_mov_b32 exec_hi, {hex(mask >> 32)}"]
        o += [f"!buffer_load_dword v{dst}, v218, s[96:99], s34 offen sc1", "s_mov_b64 exec, -1"]
        return o

    def code_ahead(self):
        a = self.a
        L = self.label("pcb")
        a("s_getpc_b64 s[34:35]")
        a(f"{L}:")
        a("s_lshl_b32 s36, s14, 13")
        a("v_lshl_add_u32 v218, v0, 3, s36")
        a(f"s_mov_b32 s36, main_done - {L}")
        a("v_min_u32 v218, s36, v218")
        a("!global_load_dword v223, v218, s[34:35]")

    def code_jit(self):
        if CPF < 3:
            return
        a = self.a
        L = self.label("pcj"); Ls = self.label("pcs")
        a("s_cmp_eq_u32 s14, 3")
        a(f"s_cbranch_scc0 {Ls}")
        unc = a.uncounted
        a.uncounted = True
        a("s_getpc_b64 s[34:35]")
        a(f"{L}:")
        a("s_lshl_b32 s36, s13, 1"); a("s_and_b32 s37, s12, 1"); a("s_add_u32 s36, s36, s37"); a("s_lshl_b32 s36, s36, 10")
        a("v_lshl_add_u32 v218, v0, 3, s36")
        a(f"s_mov_b32 s36, main_done - {L}")
        a("v_min_u32 v218, s36, v218")
        a("s_mov_b64 exec, 0xff")
        a("!global_load_dword v223, v218, s[34:35]")
        a("s_mov_b64 exec, -1")
        a.uncounted = unc
        a(f"{Ls}:")

    def zero_groups(self, Z, big, small):
        zs = []
        for sb_, c_, n_ in big:
            for i in range(n_):
                zs.append([f"s_add_u32 s35, {sb_}, {c_ + i*1024}", f"buffer_store_dwordx4 {vr(Z)}, v0, s[96:99], s35 offen sc1"])
        for c_ in small:
            zs.append(["v_and_b32 v218, 0xf8, v7", f"s_add_u32 s35, s27, {c_}", f"buffer_store_dwordx2 {vr(Z, 2)}, v218, s[96:99], s35 offen sc1"])
        return zs

    def aug_split(self, c, t1, t2, D):
        return [f"v_cvt_pk_bf16_f32 v{D}, v{c}, v{c}", f"v_and_b32 v{t1}, 0xffff0000, v{D}", f"v_sub_f32 v{t1}, v{c}, v{t1}",
                f"v_cvt_pk_bf16_f32 v{D+1}, v{t1}, v{c}", f"v_lshlrev_b32 v{t2}, 16, v{D+1}", f"v_sub_f32 v{t2}, v{t1}, v{t2}",
                f"v_cvt_pk_bf16_f32 v{D+2}, v{t2}, v{t1}", f"v_mov_b32 v{D+3}, 0"]

    def prologue(self):
        a = self.a
        X = 16
        a(f"{KNAME}:")
        a("s_load_dwordx16 s[64:79], s[0:1], 0")
        a("s_load_dwordx4 s[80:83], s[0:1], 64")
        a("s_cmp_ge_u32 s2, 256")
        a("s_cbranch_scc1 main_done")
        a("v_lshrrev_b32 v1, 6, v0")
        a("v_and_b32 v7, 63, v0")
        a("v_readfirstlane_b32 s14, v1")
        a("s_and_b32 s12, s2, 7"); a("s_lshl_b32 s12, s12, 1"); a("s_bfe_u32 s34, s2, 0x10003"); a("s_add_u32 s12, s12, s34")
        a("s_lshr_b32 s13, s2, 4")
        a("s_mul_i32 s16, s13, 5"); a("s_add_u32 s16, s16, s12"); a("s_and_b32 s16, s16, 15")
        if CPF:
            Lp = self.label("cpf")
            a("s_getpc_b64 s[34:35]")
            a("Lpc_base:")
            a("s_cmp_eq_u32 s14, 3"); a(f"s_cbranch_scc0 {Lp}")
            a("s_lshr_b32 s36, s2, 3"); a("s_lshl_b32 s36, s36, 11")
            a("v_lshl_add_u32 v196, v7, 7, s36")
            a("s_mov_b32 s36, main_done - Lpc_base")
            a("v_min_u32 v196, s36, v196")
            a.uncounted = True
            a("s_mov_b64 exec, 0xffff")
            a("!global_load_dword v223, v196, s[34:35]")
            a("s_mov_b64 exec, -1")
            a.uncounted = False
            a(f"{Lp}:")
        a("v_lshrrev_b32 v196, 2, v7")
        a("v_and_b32 v197, 3, v7")
        a("v_lshlrev_b32 v0, 4, v7")
        a("v_and_b32 v206, 31, v7"); a("v_lshrrev_b32 v207, 5, v7")
        a("s_lshr_b32 s34, s16, 2"); a("s_and_b32 s35, s16, 3")
        a("s_add_u32 s36, s34, 1"); a("s_cmp_ge_u32 s36, 3"); a("s_cselect_b32 s36, 0, s36")
        a("s_mul_i32 s36, s36, 896"); a("s_mul_i32 s37, s13, 56"); a("s_add_u32 s36, s36, s37")
        a("s_mul_i32 s37, s35, 7"); a("s_lshl_b32 s38, s14, 1"); a("s_add_u32 s38, s38, s37")
        a(f"s_mul_i32 s39, s38, {16*2688}"); a("s_add_u32 s36, s36, s39")
        a(f"s_add_u32 s39, s36, {16*2688}")
        a("s_cmp_eq_u32 s14, 3"); a("s_cselect_b32 s39, 0x40000000, s39")
        a("s_mul_i32 s40, s13, 3"); a("s_add_u32 s40, s40, s34")
        a("s_mul_i32 s41, s40, 28"); a("s_add_u32 s41, s41, s37"); a("s_lshl_b32 s41, s41, 10"); a(f"s_add_u32 s41, s41, {WQKV}")
        a("s_lshl_b32 s42, s40, 4"); a("s_lshl_b32 s43, s35, 2"); a("s_add_u32 s42, s42, s43"); a("s_add_u32 s42, s42, s14")
        a("s_lshl_b32 s42, s42, 8"); a(f"s_add_u32 s42, s42, {CSP}")
        a("s_cmp_lt_u32 s16, 12"); a("s_cselect_b32 s43, -1, 0")
        a("v_mul_u32_u24 v198, 2688, v196"); a("v_lshl_add_u32 v198, v197, 4, v198")
        a("s_lshl_b32 s44, s14, 11"); a(f"s_add_u32 s44, s44, {32*1024}")
        a("v_lshrrev_b32 v199, 3, v7"); a("v_and_b32 v200, 7, v7")
        a("v_lshrrev_b32 v201, 1, v199"); a("v_xor_b32 v200, v200, v201"); a("v_lshlrev_b32 v200, 4, v200")
        a("v_mul_u32_u24 v201, 896, v199")
        a("v_xor_b32 v202, 64, v200")
        a("v_add_u32 v200, v200, v201"); a("v_add_u32 v202, v202, v201")
        a("s_lshl_b32 s48, s12, 2"); a("s_add_u32 s48, s48, s14"); a(f"s_mul_i32 s48, s48, {32*896}")
        a(f"s_mul_i32 s46, s14, {28*1024}"); a(f"s_add_u32 s46, s46, {40*1024}")
        a("s_lshr_b32 s47, s13, 1"); a("s_min_u32 s47, s47, 6")
        a("s_waitcnt lgkmcnt(0)")
        if TS:
            a("s_memrealtime s[52:53]"); a("s_waitcnt lgkmcnt(0)")
        a("s_mov_b64 s[84:85], s[66:67]"); a(f"s_and_b32 s86, s43, {448*1344*2}"); a("s_mov_b32 s87, 0x20000")
        a("s_mov_b32 s8, s64"); a("s_mov_b32 s9, s65"); a(f"s_mov_b32 s10, {2048*896}"); a("s_mov_b32 s11, 0x20000")
        tokA = a.tok(); tokX0 = a.tok()
        a("s_mov_b32 m0, s44")
        a("buffer_load_dwordx4 v198, s[84:87], s36 offen lds", tok=tokA)
        a("s_add_u32 m0, s44, 1024")
        a("buffer_load_dwordx4 v198, s[84:87], s39 offen lds", tok=tokA)
        a("s_mov_b32 s64, s47")
        def xdma(n0, n1, tok=None):
            for n in range(n0, n1):
                rq = n & 3
                if rq == 0:
                    a("s_lshl_b32 s65, s64, 12"); a("s_add_u32 s65, s65, s46")
                    a("s_lshl_b32 s66, s64, 7"); a("s_add_u32 s66, s66, s48")
                    a("s_add_u32 s64, s64, 1"); a("s_cmp_eq_u32 s64, 7"); a("s_cselect_b32 s64, 0, s64")
                a(f"s_add_u32 m0, s65, {rq*1024}")
                a(f"s_add_u32 s67, s66, {rq*8*896}")
                a(f"buffer_load_dwordx4 {'v200' if rq % 2 == 0 else 'v202'}, s[8:11], s67 offen lds", tok=tok)
        xdma(0, 4, tokX0)
        Ln = self.label("nonce")
        a("s_cmp_eq_u32 s2, 0"); a(f"s_cbranch_scc0 {Ln}")
        a("s_cmp_eq_u32 s14, 0"); a(f"s_cbranch_scc0 {Ln}")
        a.uncounted = True
        a("s_memrealtime s[34:35]")
        a("s_waitcnt lgkmcnt(0)")
        a("s_or_b32 s34, s34, 1")
        a("v_mov_b32 v210, s34"); a("v_mov_b32 v211, s35")
        a("s_mov_b64 exec, 1")
        a("global_store_dwordx2 v0, v[210:211], s[80:81] sc1")
        a("s_mov_b64 exec, -1")
        a.uncounted = False
        a(f"{Ln}:")
        xdma(4, X0N)
        a("s_mov_b32 s4, s82"); a("s_mov_b32 s5, s83"); a("s_mov_b32 s6, 0x10000000"); a("s_mov_b32 s7, 0x20000")
        a("s_add_u32 s92, s82, s41"); a("s_addc_u32 s93, s83, 0"); a("s_and_b32 s94, s43, 7168"); a("s_mov_b32 s95, 0x20000")
        a("s_mov_b32 s96, s82"); a("s_mov_b32 s97, s83"); a("s_and_b32 s98, s43, 0x10000000"); a("s_mov_b32 s99, 0x20000")
        if TS:
            a("s_lshl_b32 s51, s2, 2"); a("s_add_u32 s51, s51, s14"); a("s_lshl_b32 s51, s51, 9"); a(f"s_add_u32 s51, s51, {DBG}")
            a.uncounted = True
            a("s_mov_b64 exec, 1")
            a("v_mov_b32 v222, s52"); a(f"s_add_u32 s34, s51, {24*8}")
            a(f"buffer_store_dword v222, v0, {SRD}, s34 offen")
            a("s_mov_b64 exec, -1")
            a.uncounted = False
        a("v_lshlrev_b32 v7, 3, v7")
        a("v_bfe_u32 v205, v7, 5, 2")
        a("v_lshl_add_u32 v205, v207, 3, v205"); a("v_lshlrev_b32 v205, 6, v205")
        a("v_bfe_u32 v203, v7, 7, 1"); a("v_lshl_add_u32 v205, v203, 5, v205")
        a("v_bfe_u32 v203, v7, 3, 1"); a("v_lshl_add_u32 v205, v203, 4, v205")
        a("v_bfe_u32 v203, v7, 4, 1"); a("v_lshl_add_u32 v205, v203, 3, v205")
        a("v_add_u32 v203, s44, v205")
        a("v_cmp_gt_u32 vcc, 28, v206")
        a("v_cndmask_b32 v201, 0, -1, vcc")
        a("v_mov_b32 v209, 0x3f803f80")
        a("s_lshl_b32 s34, s14, 11"); a("v_add_u32 v199, s34, v0")
        a("v_lshrrev_b32 v198, 1, v7")
        a("v_bfe_u32 v204, v206, 1, 3"); a("v_xor_b32 v204, v204, v207"); a("v_lshlrev_b32 v204, 4, v204")
        a("v_lshl_add_u32 v204, v206, 7, v204"); a("v_add_u32 v204, s46, v204")
        a("s_and_b32 s34, s13, 1"); a("s_lshl_b32 s34, s34, 6"); a("v_xor_b32 v208, s34, v204")
        a("s_lshl_b32 s34, s47, 12"); a("v_add_u32 v208, s34, v208"); a("v_xor_b32 v197, 32, v208")
        for e in range(8):
            a(f"v_mov_b32 v{188+e}, 0")
        a.wait_tok(tokA)
        for b in range(2):
            for m in range(2):
                a(f"ds_read_b64_tr_b16 {vr(128+4*b+2*m, 2)}, v203 offset:{b*1024 + m*256}")
        for b in range(2):
            for k in range(4):
                a(f"v_and_b32 v{128+4*b+k}, v201, v{128+4*b+k}")
            a(f"buffer_store_dwordx4 {vr(128+4*b)}, v199, s[92:95], 0 offen offset:{b*1024} sc1")
        for b in range(2):
            for k in range(4):
                a(f"v_dot2_f32_bf16 v{188+k}, v{128+4*b+k}, v209, v{188+k}")
        a("v_add_f32 v188, v188, v189"); a("v_add_f32 v190, v190, v191"); a("v_add_f32 v188, v188, v190")
        a("buffer_store_dword v188, v198, s[96:99], s42 offen sc1")
        a("s_lshl_b32 s15, s12, 20"); a(f"s_add_u32 s15, s15, {GRP0}")
        a("s_mul_i32 s34, s14, 14"); a("s_add_u32 s34, s34, s13"); a("s_lshl_b32 s34, s34, 8"); a("s_add_u32 s34, s34, s15"); a(f"s_add_u32 s34, s34, {GST[0]}")
        a("s_cmp_lt_u32 s13, 14"); a("s_cselect_b32 s34, s34, 0x40000000")
        a.wait_tok(tokX0)
        a("ds_read_b128 v[136:139], v208")
        a("ds_read_b128 v[140:143], v197")
        for k in range(8):
            o = 192 + 2 * (k & 1)
            a(f"v_dot2_f32_bf16 v{o}, v{136+k}, v209, v{o}")
            a(f"v_dot2_f32_bf16 v{o+1}, v{136+k}, v{136+k}, v{o+1}")
        a("v_add_f32 v192, v192, v194"); a("v_add_f32 v193, v193, v195")
        a("v_mov_b32 v194, v192"); a("v_mov_b32 v195, v193")
        a("v_and_b32 v197, 0xf8, v7")
        a("v_permlane32_swap_b32 v192, v194"); a("v_permlane32_swap_b32 v193, v195")
        a("v_add_f32 v192, v192, v194"); a("v_add_f32 v193, v193, v195")
        a(f"buffer_store_dwordx2 v[192:193], v197, {SRD}, s34 offen sc1")
        self.ts(2)
        Lt = self.label("tag"); Lok = self.label("tagok")
        a("v_mov_b32 v203, 0")
        a("global_load_dwordx2 v[210:211], v203, s[80:81] sc1")
        xdma(X0N, 28)
        Lw2, Lwo, Lu = (self.label(x) for x in ("uw2", "uwo", "uend"))
        a("s_sub_u32 s3, 15, s16"); a("s_lshl_b32 s3, s3, 4"); a("s_add_u32 s3, s3, s13")
        a("s_and_b32 s40, s14, 1"); a("s_lshr_b32 s41, s14, 1")
        a("s_mov_b32 s39, 0"); a("s_mov_b32 s70, 0x40000000"); a("s_mov_b32 s94, 7168"); a("s_mov_b32 s38, 32")
        a(f"s_mul_i32 s67, s14, {7*1024}"); a(f"s_mov_b32 s71, {152*1024}")
        a("s_cmp_ge_u32 s3, 168"); a(f"s_cbranch_scc1 {Lwo}")
        a("s_cmp_ge_u32 s3, 112"); a(f"s_cbranch_scc1 {Lw2}")
        a("s_lshr_b32 s34, s3, 2"); a("s_and_b32 s35, s3, 3")
        a("s_mov_b32 s36, 3584")
        a("s_lshl_b32 s37, s35, 1"); a("s_add_u32 s37, s37, s40"); a(f"s_mul_i32 s37, s37, {56*3584}"); a("s_lshl_b32 s64, s34, 7"); a("s_add_u32 s37, s37, s64")
        a("s_cmp_eq_u32 s41, 0"); a("s_cselect_b32 s84, s72, s74"); a("s_cselect_b32 s85, s73, s75"); a(f"s_mov_b32 s86, {448*1792*2}")
        a("s_lshl_b32 s64, s34, 2"); a("s_add_u32 s64, s64, s14")
        a("s_lshl_b32 s70, s64, 2"); a("s_add_u32 s70, s70, s35")
        a(f"s_mul_i32 s66, s70, {7*1024}"); a(f"s_add_u32 s66, s66, {W13}")
        a("s_lshl_b32 s70, s70, 8"); a(f"s_add_u32 s70, s70, {CSP13}")
        a("s_lshl_b32 s65, s14, 5"); a("s_mov_b32 s38, 14336")
        a(f"s_branch {Lu}")
        a(f"{Lw2}:")
        a("s_sub_u32 s34, s3, 112"); a("s_and_b32 s35, s34, 7"); a("s_lshr_b32 s34, s34, 3")
        a("s_mov_b32 s36, 896")
        a("s_lshl_b32 s37, s35, 2"); a("s_add_u32 s37, s37, s14"); a(f"s_mul_i32 s37, s37, {56*896}"); a("s_lshl_b32 s64, s34, 7"); a("s_add_u32 s37, s37, s64")
        a("s_mov_b64 s[84:85], s[76:77]"); a(f"s_mov_b32 s86, {1792*448*2}")
        a("s_lshl_b32 s64, s34, 1"); a("s_add_u32 s64, s64, s40"); a("s_lshl_b32 s64, s64, 4")
        a("s_lshl_b32 s65, s35, 1"); a("s_add_u32 s64, s64, s65"); a("s_add_u32 s64, s64, s41")
        a(f"s_mul_i32 s66, s64, {7*1024}"); a(f"s_add_u32 s66, s66, {W2}")
        a(f"s_mul_i32 s65, s41, {112*128}"); a("s_lshl_b32 s64, s40, 6"); a("s_add_u32 s65, s65, s64")
        a(f"s_branch {Lu}")
        a(f"{Lwo}:")
        a("s_sub_u32 s34, s3, 168"); a("s_and_b32 s35, s34, 1"); a("s_lshr_b32 s34, s34, 1")
        a("s_mov_b32 s36, 896"); a("s_mov_b32 s39, 4")
        a("s_lshl_b32 s37, s35, 2"); a("s_add_u32 s37, s37, s14"); a(f"s_mul_i32 s37, s37, {56*896}"); a("s_lshl_b32 s64, s34, 7"); a("s_add_u32 s37, s37, s64")
        a("s_mov_b64 s[84:85], s[68:69]")
        a("s_cmp_lt_u32 s3, 182"); a(f"s_cselect_b32 s86, {448*448*2}, 0"); a("s_cselect_b32 s94, 8192, 0")
        a("s_lshl_b32 s64, s34, 1"); a("s_add_u32 s64, s64, s40"); a("s_lshl_b32 s64, s64, 2")
        a("s_lshl_b32 s65, s35, 1"); a("s_add_u32 s64, s64, s65"); a("s_add_u32 s64, s64, s41")
        a("s_lshl_b32 s66, s64, 13"); a(f"s_add_u32 s66, s66, {WO}")
        a("s_lshl_b32 s65, s41, 14"); a("s_lshl_b32 s64, s40, 6"); a("s_add_u32 s65, s65, s64")
        a("s_lshl_b32 s67, s14, 13"); a("s_add_u32 s71, s67, 7168")
        a(f"{Lu}:")
        a("s_add_u32 s92, s82, s66"); a("s_addc_u32 s93, s83, 0")
        a("v_bfe_u32 v196, v7, 6, 3"); a("v_bfe_u32 v197, v7, 3, 3")
        a("v_mul_lo_u32 v198, v196, s36"); a("v_lshl_add_u32 v198, v197, 4, v198")
        a("v_mov_b32 v201, 0x40000000")
        a("v_add_u32 v199, s39, v196")
        a("v_cmp_le_u32 vcc, 8, v199")
        a("v_cndmask_b32 v199, v198, v201, vcc")
        a("s_lshl_b32 s64, s36, 3")
        a("s_sub_u32 s66, 8, s39"); a("s_mul_i32 s66, s66, s36")
        for i in range(8):
            a(f"s_add_u32 m0, s67, {i*1024}" if i < 7 else "s_mov_b32 m0, s71")
            a(f"buffer_load_dwordx4 {'v199' if (i & 3) == 3 else 'v198'}, s[84:87], s37 offen lds")
            if i < 7:
                a(f"s_add_u32 s37, s37, {'s66' if i == 3 else 's64'}")
        a("v_bfe_u32 v205, v7, 5, 2")
        a("v_lshl_add_u32 v205, v207, 3, v205"); a("v_lshlrev_b32 v205, 7, v205")
        a("v_bfe_u32 v201, v7, 7, 1"); a("v_mul_lo_u32 v201, v201, s38"); a("v_add_u32 v205, v205, v201")
        a("v_bfe_u32 v201, v7, 3, 1"); a("v_lshl_add_u32 v205, v201, 4, v205")
        a("v_bfe_u32 v201, v7, 4, 1"); a("v_lshl_add_u32 v205, v201, 3, v205")
        a("v_add_u32 v205, s65, v205")
        a("s_lshl_b32 s3, s3, 3")
        a("s_lshl_b32 s69, s16, 3")
        a("v_add_u32 v1, 0x10000, v0")
        a("v_add_u32 v2, 0x20000, v0")
        a(f"s_mul_i32 s48, s13, {84*1024}"); a(f"s_add_u32 s48, s48, {WQKV}")
        a(f"s_mul_i32 s49, s13, {196*1024}"); a(f"s_add_u32 s49, s49, {W13}")
        a("s_mov_b32 s33, 0x40000")
        a("s_getreg_b32 s63, hwreg(HW_REG_XCC_ID, 0, 4)")
        a("s_mov_b32 s16, s15")
        a("s_cmp_ge_u32 s13, 7"); a("s_cselect_b32 s40, 1, 0")
        a("s_mul_i32 s41, s40, 7"); a("s_sub_u32 s41, s13, s41")
        a("s_min_u32 s41, s41, 6")
        a("s_lshr_b32 s36, s14, 1"); a("s_and_b32 s37, s14, 1")
        a("s_lshl_b32 s38, s40, 1")
        a("s_add_u32 s39, s38, s36")
        a("s_sub_u32 s38, s38, s36"); a("s_add_u32 s38, s38, 1")
        a("s_lshl_b32 s41, s41, 1")
        a("s_add_u32 s46, s41, s37")
        a("s_sub_u32 s47, s41, s37"); a("s_add_u32 s47, s47, 1")
        a(f"s_mul_i32 s17, s14, {28*1024}"); a("s_add_u32 s17, s17, s16"); a("s_mov_b32 s15, s17")
        a(f"s_mul_i32 s18, s14, {14*256}"); a("s_add_u32 s18, s18, s16"); a("s_mov_b32 s32, s18")
        a("s_lshl_b32 s19, s12, 5"); a("s_add_u32 s19, s19, s13"); a("s_lshl_b32 s19, s19, 14"); a(f"s_add_u32 s19, s19, {KV0}")
        a("s_add_u32 s20, s14, 1"); a("s_lshl_b32 s20, s20, 19"); a("s_sub_u32 s20, s19, s20")
        a("s_lshl_b32 s34, s14, 12"); a("s_add_u32 s19, s19, s34")
        a("s_lshl_b32 s21, s14, 4"); a("s_add_u32 s21, s21, s13"); a("s_lshl_b32 s21, s21, 11"); a("s_add_u32 s21, s21, s16"); a(f"s_add_u32 s21, s21, {GO}")
        a("s_lshl_b32 s34, s14, 13"); a("s_add_u32 s34, s34, s16"); a(f"s_add_u32 s34, s34, {GO}")
        a("s_lshl_b32 s22, s39, 15"); a("s_add_u32 s22, s22, s34")
        a("s_lshl_b32 s23, s38, 15"); a("s_add_u32 s23, s23, s34")
        a(f"s_add_u32 s34, s17, {GH}")
        a(f"s_mul_i32 s24, s39, {112*1024}"); a("s_add_u32 s24, s24, s34")
        a(f"s_mul_i32 s25, s38, {112*1024}"); a("s_add_u32 s25, s25, s34")
        a("s_mul_i32 s34, s39, 14"); a("s_add_u32 s34, s34, s46")
        a("s_lshl_b32 s26, s34, 11"); a("s_add_u32 s26, s26, s16")
        a("s_lshl_b32 s27, s34, 8"); a("s_add_u32 s27, s27, s16")
        a("s_lshl_b32 s28, s14, 4"); a("s_add_u32 s28, s28, s13"); a(f"s_mul_i32 s28, s28, {7*1024}"); a("s_add_u32 s28, s28, s16"); a(f"s_add_u32 s28, s28, {GH}")
        a("s_lshl_b32 s34, s12, 2"); a("s_add_u32 s34, s34, s39")
        a(f"s_mul_i32 s57, s34, {32*896}"); a("s_lshl_b32 s34, s46, 6"); a("s_add_u32 s57, s57, s34")
        a("s_lshl_b32 s34, s14, 13"); a(f"s_add_u32 s34, s34, {WO}")
        a("s_lshl_b32 s58, s46, 15"); a("s_add_u32 s58, s58, s34")
        a("s_lshl_b32 s59, s47, 15"); a("s_add_u32 s59, s59, s34")
        a(f"s_mul_i32 s34, s14, {28*1024}"); a(f"s_add_u32 s34, s34, {W2}")
        a(f"s_mul_i32 s60, s46, {112*1024}"); a("s_add_u32 s60, s60, s34")
        a(f"s_mul_i32 s61, s47, {112*1024}"); a("s_add_u32 s61, s61, s34")
        a("s_mov_b32 s46, s41")
        a("v_mul_u32_u24 v208, 896, v206"); a("v_lshl_add_u32 v208, v207, 4, v208")
        a("buffer_load_dwordx4 v[8:11], v208, s[8:11], s57 offen")
        a("buffer_load_dwordx4 v[12:15], v208, s[8:11], s57 offen offset:32")
        a("s_lshl_b32 s29, s12, 8")
        a("s_lshl_b32 s34, s13, 3"); a("s_add_u32 s30, s29, s34")
        a("s_lshl_b32 s62, s12, 4"); a("s_add_u32 s62, s62, s13"); a("s_lshl_b32 s62, s62, 7"); a(f"s_add_u32 s62, s62, {F1}")
        a("s_add_u32 s34, s14, 1"); a("s_lshl_b32 s34, s34, 11"); a("s_sub_u32 s31, s62, s34")
        a("s_sub_u32 s50, s14, 1")
        a(f"s_mov_b32 s52, {f32(1.0/448)}"); a(f"s_mov_b32 s53, {f32(1e-5)}")
        a(f"s_mov_b32 s54, {f32(28**-0.5 * math.log2(math.e))}"); a(f"s_mov_b32 s55, {f32(-math.log2(math.e))}")
        a(f"s_mov_b32 s56, {f32(-2.0**100)}")
        a("s_mov_b32 s40, 0"); a("s_mov_b32 s41, -1")
        if DTS:
            a("s_lshl_b32 s51, s2, 2"); a("s_add_u32 s51, s51, s14"); a(f"s_sub_u32 s51, s51, {DTS*4}")
            a("s_mov_b64 s[44:45], s[80:81]")
        a("v_readfirstlane_b32 s100, v210")
        a("v_readfirstlane_b32 s101, v211")
        a("s_cmp_lg_u32 s100, 0")
        a(f"s_cbranch_scc1 {Lok}")
        a.uncounted = True
        a(f"{Lt}:")
        a("global_load_dwordx2 v[210:211], v203, s[80:81] sc1")
        a("s_waitcnt vmcnt(0)")
        a("v_readfirstlane_b32 s100, v210")
        a("v_readfirstlane_b32 s101, v211")
        a("s_sub_u32 s33, s33, 1")
        a("s_cmp_eq_u32 s33, 0")
        a("s_cbranch_scc1 main_done")
        a("s_cmp_lg_u32 s100, 0")
        a(f"s_cbranch_scc0 {Lt}")
        a.uncounted = False
        a(f"{Lok}:")
        a("s_barrier")
        def sig():
            a("s_lshl_b32 s35, s13, 8"); a("s_add_u32 s35, s35, s69")
            self.signal("s35", PKA, False)
            a("s_add_u32 s35, s101, s63")
            a("v_mov_b32 v221, s35")
            a(f"s_add_u32 s34, s30, {XCCT}")
            a("s_mov_b64 exec, 1")
            a(f"buffer_store_dwordx2 v[220:221], v0, {SRD}, s34 offen sc1")
            a("s_mov_b64 exec, -1")
        self.wave0_else(sig, None)
        self.dts()
        self.ts(2)
        a("v_lshlrev_b32 v4, 4, v206"); a(f"v_add_u32 v4, {MISC}, v4")
        a("v_cmp_eq_u32 vcc, 28, v206")
        a("v_cndmask_b32 v5, 0, 1.0, vcc")
        a("s_lshl_b32 s34, s14, 7"); a(f"s_add_u32 s34, s34, {L_ST}")
        a("v_lshl_add_u32 v3, v206, 2, s34")
        a("v_lshl_add_u32 v6, v207, 4, s34")
        for k in range(1, 4):
            a(f"v_xor_b32 v{196+k}, {32*k}, v204")
        a.drain(lgkm=False)
        for ks in range(28):
            a(f"ds_read_b128 {vr(X+4*ks)}, {'v204' if ks % 4 == 0 else 'v%d' % (196 + ks % 4)} offset:{(ks >> 2)*4096}")
        a("s_lshl_b32 s35, s13, 8")
        def polls():
            Lb = self.label("pb"); Lc = self.label("pc")
            a("s_cmp_eq_u32 s14, 0"); a(f"s_cbranch_scc0 {Lb}")
            self.poll("s35", PKA, "0xfff")
            a(f"s_branch {Lc}")
            a(f"{Lb}:")
            self.xcc_poll()
            a("s_mov_b64 exec, -1")
            a(f"{Lc}:")
        self.wave_if("s_cmp_lt_u32 s14, 2", polls, None)
        a("s_lshr_b32 s37, s14, 1"); a(f"s_mul_i32 s37, s37, {28*1024}")
        a("s_and_b32 s39, s14, 1"); a(f"s_mul_i32 s39, s39, {7*1024}"); a("s_add_u32 s37, s37, s39")
        a(f"s_mul_i32 s39, s14, {7*1024}")
        a.drain()
        a("s_barrier")
        self.ts(2)
        self.tokW = [a.tok(), a.tok(), a.tok()]
        a("s_add_u32 s38, s48, s37")
        self.dma("s38", 0, "s37", 98 * 1024, 7, flags="sc1", tok=self.tokW[0])
        self.dma("s38", 14 * 1024, "s37", 112 * 1024, 7, flags="sc1", tok=self.tokW[1])
        for i in range(8):
            for m in range(2):
                a(f"ds_read_b64_tr_b16 {vr(224+4*i+2*m, 2)}, v205 offset:{i*2048 + m*512}")
        for k in range(4):
            a(f"v_mov_b32 v{188+k}, 0")
        for i in range(7):
            for k in range(4):
                a(f"v_dot2_f32_bf16 v{188+k}, v{224+4*i+k}, v209, v{188+k}")
        a("v_add_f32 v188, v188, v189"); a("v_add_f32 v190, v190, v191"); a("v_add_f32 v5, v188, v190")
        a("s_mov_b64 s[96:97], s[92:93]"); a("s_mov_b32 s98, s94"); a("s_mov_b32 s47, s70")
        a("s_mov_b32 s8, s78"); a("s_mov_b32 s9, s79")
        a("v_lshlrev_b32 v207, 2, v207")
        a("v_sub_u32 v207, v206, v207")
        for rho in range(16):
            kk = 8 * (rho >> 2) + (rho & 3)
            a(f"v_cmp_le_i32 s[{64+2*rho}:{65+2*rho}], {kk}, v207")

    def xstream(self, S, a, sx, xoff, sst, stoff, X, T, gaps):
        items = [self.xload(sx, xoff, X, ks) for ks in range(28)]
        sitems = []
        for u in range(7):
            g = []
            if u == 0:
                g.append(f"s_add_u32 s35, {sst}, {stoff}")
            g.append(f"buffer_load_dwordx2 {vr(T+2*u, 2)}, v7, {SRD}, s35 offen offset:{u*512} sc1")
            sitems.append(g)
        order = items[:SPOS] + sitems + items[SPOS:]
        for g in order[:XD]:
            for t in g:
                a(t)
        pos = {}
        for k, g in enumerate(order[XD:]):
            S.post(gaps[k], self.grp(g), cost=1.5)
            pos[XD + k] = gaps[k]
        return pos[SPOS + 6]

    def p1(self, l):
        a = self.a
        X, AK, AV, AQ, WB, RV, AB = 16, 128, 144, 160, 176, 200, 212
        NB = 6
        S = Sched(budget=5)
        seq = []
        for ks in range(29):
            seq.append((0, ks)); seq.append((1, ks))
        for ks in range(29):
            seq.append((2, ks))
        ACC = {0: AK, 1: AV, 2: AQ}
        idx = {}
        for n, (p, ks) in enumerate(seq):
            idx[(p, ks)] = n
            wb = WB + 4 * (n % NB)
            if ks < 28:
                base, off = lds_blk(WQ_BLK[p] + ks)
                S.post(n - NB, f"ds_read_b128 {vr(wb)}, {base} offset:{off}")
                xb = vr(X + 4 * ks)
            else:
                S.post(n - NB, f"ds_read_b128 {vr(wb)}, v4 offset:{p*512}")
                xb = vr(AB)
            ac = vr(ACC[p], 16)
            c = "0" if ks == 0 else ac
            if p == 1:
                S.add_main(f"{MF} {ac}, {xb}, {vr(wb)}, {c}")
            else:
                S.add_main(f"{MF} {ac}, {vr(wb)}, {xb}, {c}")
        dq = idx[(0, 28)]
        e0 = idx[(1, 28)] + 1
        if l == 1:
            gaps = [int(G1 * k) for k in range(40)]
            gs = self.xstream(S, a, "s17", GX[2], "s18", GST[2], X, AQ, gaps)
            for t in self.stats_tree(AQ, 7) + self.stats_finish(AQ, AB):
                S.fill(t, earliest=gs + 14, deadline=dq)
        a("s_lshl_b32 s34, s14, 12")
        a("v_add_u32 v220, s34, v0")
        if l == 0:
            U, C = 224, 240
            n2, n3 = idx[(0, 14)] - NB, idx[(0, 28)] - NB
            C = RV
            a(f"v_lshrrev_b32 v{AQ+14}, 1, v7"); a(f"v_add_u32 v{AQ+15}, 4096, v0")
            l4 = f"v{AQ+14}"
            g = [[f"s_add_u32 s35, s18, {GST[0]}"] + [f"buffer_load_dwordx2 {vr(AQ+2*u, 2)}, v7, {SRD}, s35 offen offset:{u*512} sc1" for u in range(2)]]
            g += [[f"buffer_load_dwordx2 {vr(AQ+2*u, 2)}, v7, {SRD}, s35 offen offset:{u*512} sc1" for u in us] for us in ((2, 3), (4, 5), (6,))]
            g[-1] += ["s_min_u32 s36, s14, 2", "s_mul_i32 s35, s13, 3", "s_add_u32 s35, s35, s36", "s_lshl_b32 s35, s35, 12", f"s_add_u32 s35, s35, {CSP}"]
            cr = [C + k for k in range(12)] + [216, 217, 218, 219]
            g += [[f"buffer_load_dword v{cr[k]}, {l4}, {SRD}, s35 offen offset:{k*256} sc1" for k in (k0, k0 + 1)] for k0 in range(0, 16, 2)]
            for k, gg in enumerate(g):
                S.post(k, self.grp(gg), cost=2)
            a("s_add_u32 s38, s48, s39")
            for k, gg in enumerate(self.dma_groups("s38", 56 * 1024, "s39", 70 * 1024, 7, per=1, flags="sc1")):
                S.post(12 + k, self.grp(gg, tok=self.tokW[2]), cost=1.5)
            tokU = a.tok()
            for i in range(8):
                S.post(UST + 2 * i, f"buffer_store_dwordx4 {vr(224+4*i)}, {'v0' if i < 4 else 'v%d' % (AQ+15)}, s[96:99], 0 offen offset:{(i%4)*1024} sc1", tok=tokU, cost=2)
            S.post(UST + 16, self.grp([f"buffer_store_dword v5, {l4}, {SRD}, s47 offen sc1", "v_bfe_u32 v221, v7, 3, 5", "v_cmp_eq_u32 vcc, 28, v221", "v_cndmask_b32 v5, 0, 1.0, vcc"], tok=tokU), cost=3)
            def st2(aa):
                aa.wait_tok(self.tokW[1])
                aa("s_barrier")
            def st3(aa):
                aa.wait_tok(self.tokW[2], tokU)
                aa.drain(vm=False)
                aa("s_barrier")
                aa("v_mov_b32 v222, v220")
                self.wave_if("s_cmp_eq_u32 s14, 3", lambda: self.signal("s3", PKF, False), None)
                aa("v_mov_b32 v220, v222")
            S.pre(n2, st2)
            S.pre(n3, st3)
            o = []
            for st in (8, 4, 2, 1):
                o += [f"v_add_f32 v{cr[i]}, v{cr[i]}, v{cr[i+st]}" for i in range(st)]
            o += [f"v_mov_b32 v{C+1}, v{C}", "s_lshl_b32 s36, s36, 9", f"v_add_u32 v{C+8}, s36, v4", f"v_permlane32_swap_b32 v{C}, v{C+1}", f"v_add_f32 v{C}, v{C}, v{C+1}"]
            o += self.aug_split(C, C + 1, C + 2, C + 4) + [f"ds_write_b128 v{C+8}, {vr(C+4)}"]
            for t in o:
                S.fill(t, earliest=n2 + 4, deadline=n3)
            for t in self.stats_tree(AQ, 7) + self.stats_finish(AQ, AB):
                S.fill(t, earliest=n2, deadline=dq)
        S.fill("ds_write_b32 v3, v217", earliest=30, deadline=e0)
        for q in range(3):
            S.fill(f"ds_read_b128 {vr(RV+4*q)}, v6 offset:{q*32}", deadline=e0)
        S.fill("v_mul_f32 v219, s54, v217", deadline=e0)
        tokS = a.tok()
        f = lambda t, tok=None: S.fill(t, earliest=e0, cost=0.5, tok=tok)
        for i in range(16):
            f(f"v_mul_f32 v{AK+i}, v217, v{AK+i}")
        for i in range(8):
            f(f"v_cvt_pk_bf16_f32 v{AK+i}, v{AK+2*i}, v{AK+2*i+1}")
        f(f"ds_read_b128 {vr(AK+8)}, v6 offset:96")
        f(f"buffer_store_dwordx4 {vr(AK)}, v0, {SRD}, s19 offen sc1", tokS)
        f(f"buffer_store_dwordx4 {vr(AK+4)}, v0, {SRD}, s19 offen offset:1024 sc1", tokS)
        for i in range(16):
            rv = RV + i if i < 12 else AK + 8 + (i - 12)
            f(f"v_fma_f32 v{AV+i}, v{AV+i}, v{rv}, v5")
        for i in range(8):
            f(f"v_cvt_pk_bf16_f32 v{AV+i}, v{AV+2*i}, v{AV+2*i+1}")
        f(f"buffer_store_dwordx4 {vr(AV)}, v0, {SRD}, s19 offen offset:2048 sc1", tokS)
        f(f"buffer_store_dwordx4 {vr(AV+4)}, v0, {SRD}, s19 offen offset:3072 sc1", tokS)
        for k, r in enumerate((AK, AK + 4, AV, AV + 4)):
            S.fill(f"ds_write_b128 v220, {vr(r)} offset:{8*4096+k*1024}", earliest=e0)
        PM = 152
        S.fill("v_mov_b32 v216, 0xffff", earliest=e0); S.fill("v_mov_b32 v218, 0xffff0000", earliest=e0)
        for i in range(8):
            S.fill(f"v_cndmask_b32 v{PM+i}, 0, v216, s[{64+4*i}:{65+4*i}]", earliest=e0)
            S.fill(f"v_cndmask_b32 v221, 0, v218, s[{66+4*i}:{67+4*i}]", earliest=e0)
            S.fill(f"v_or_b32 v{PM+i}, v{PM+i}, v221", earliest=e0)
        S.pre(e0, lambda aa: self.ts(2))
        for k in (0, 1, 20, 40):
            S.pre(k, lambda aa: self.ts(3))
        S.emit(a)
        a("v_mov_b32 v176, v220")
        a.wait_tok(tokS)
        a.drain(vm=False)
        a("s_barrier")
        def sg():
            self.signal("s62", 0, False)
        self.wave0_else(sg, None)
        for i in range(16):
            a(f"v_mul_f32 v{AQ+i}, v219, v{AQ+i}")
        a("v_mov_b32 v221, s56")
        a(f"v_cndmask_b32 v{AQ+12}, v{AQ+12}, v221, s[40:41]")
        for i in range(8):
            a(f"v_cvt_pk_bf16_f32 v{AQ+i}, v{AQ+2*i}, v{AQ+2*i+1}")
        a("v_mov_b32 v168, v176")
        if l == 0:
            self.xcc_poll()
            a.forget()
            a("v_cmp_eq_u32 vcc, s63, v218")
            a("s_mov_b64 exec, -1")
            a("s_mov_b32 s96, s4"); a("s_mov_b32 s97, s5"); a("s_mov_b32 s99, 0x20000")
            a("s_mov_b32 s0, s4"); a("s_mov_b32 s1, s5"); a("s_mov_b32 s3, 0x20000")
            if NOFAST:
                a("s_cmp_eq_u32 s4, -1")
            else:
                a("s_cmp_eq_u32 vcc_lo, 0xffff")
            a("s_cselect_b32 s98, 0x10000000, 0")
            a("s_cselect_b32 s2, 0, 0x10000000")
            a(f"s_cselect_b32 s63, 0, {SLOWD}")

    def p2(self, l):
        a = self.a
        Q, KF, SB, NM, PM, OA, VB = 160, 16, 88, 136, 152, 176, 192
        def halo():
            Lf = self.label("fill"); Lh = self.label("halo")
            a("s_lshl_b32 s37, s14, 14"); a("s_sub_u32 s37, 16384, s37")
            a("s_cmp_le_u32 s12, s14")
            a(f"s_cbranch_scc1 {Lf}")
            self.poll("s31", 0, "1")
            for half in range(2):
                for t in range(4):
                    a(f"s_add_u32 s34, s20, {t*4096 + half*2048}")
                    a(f"s_add_u32 m0, s37, {t*4096 + half*2048}")
                    for i in range(2):
                        a(f"buffer_load_dwordx4 v0, {SRD}, s34 offen offset:{i*1024} sc1 lds")
            a("s_waitcnt vmcnt(8)")
            a(f"s_branch {Lh}")
            a(f"{Lf}:")
            a("v_add_u32 v220, s37, v0")
            for i in range(8):
                a(f"v_mov_b32 v{SB+i}, 0")
            a("v_mov_b32 v221, 0x3f80")
            a(f"v_cndmask_b32 v{SB+6}, 0, v221, s[40:41]")
            for t in range(4):
                a(f"ds_write_b128 v220, {vr(SB)} offset:{t*4096}")
                a(f"ds_write_b128 v220, {vr(SB+4)} offset:{t*4096+1024}")
                a(f"ds_write_b128 v220, {vr(SB)} offset:{t*4096+2048}")
                a(f"ds_write_b128 v220, {vr(SB)} offset:{t*4096+3072}")
            a("s_waitcnt lgkmcnt(0)")
            a(f"{Lh}:")
        def pref():
            if l == 0:
                a("s_mul_i32 s35, s13, 7"); a("s_add_u32 s36, s35, 6"); a("s_lshr_b32 s35, s35, 2"); a("s_lshr_b32 s36, s36, 2")
                a("s_sub_u32 s36, s36, s35"); a("s_cmp_eq_u32 s36, 2"); a("s_cselect_b32 s47, 0xf00, 0"); a("s_or_b32 s47, s47, 0x00ff00ff")
                a("s_lshl_b32 s35, s35, 5")
                a("s_lshl_b32 s36, s46, 5"); a(f"s_add_u32 s36, s36, {112*8}")
                a("s_lshl_b32 s37, s46, 3"); a(f"s_add_u32 s37, s37, {168*8}")
                a("v_bfe_u32 v218, v7, 7, 2")
                a("v_mov_b32 v220, s35"); a("v_mov_b32 v221, s36"); a("v_mov_b32 v219, s37")
                a("v_cmp_eq_u32 vcc, 1, v218"); a("v_cndmask_b32 v220, v220, v221, vcc")
                a("v_cmp_eq_u32 vcc, 2, v218"); a("v_cndmask_b32 v220, v220, v219, vcc")
                a("v_and_b32 v218, 0x78, v7"); a("v_add_u32 v218, v218, v220")
                a("s_mov_b32 s35, 0")
                self.poll("s35", PKF, "s47", vaddr="v218", hi="3")
                a("s_sub_u32 s37, s14, 2"); a("s_mul_i32 s37, s37, 3")
                a("s_mul_i32 s38, s13, 7"); a("s_add_u32 s38, s38, s37"); a("s_lshl_b32 s38, s38, 10"); a(f"s_add_u32 s38, s38, {CSP13}")
                a("v_lshrrev_b32 v218, 1, v7")
                for k in range(16):
                    a(f"!buffer_load_dword v{SB+k}, v218, {SRD}, s38 offen offset:{k*256} sc1")
                a("s_lshl_b32 s37, s37, 9"); a("v_add_u32 v218, s37, v4")
            a("s_sub_u32 s37, s14, 2"); a(f"s_mul_i32 s37, s37, {N1*1024}")
            a("s_add_u32 s38, s49, s37")
            if not (EXP & 2 and l == 1):
                self.dma("s38", 0, "s37", 48 * 1024, N1, flags="sc1")
            if l == 0:
                a(f"s_waitcnt vmcnt({N1})")
                for t in range(4):
                    c = SB + 4 * t
                    for tt in (f"v_add_f32 v{c}, v{c}, v{c+1}", f"v_add_f32 v{c+2}, v{c+2}, v{c+3}", f"v_add_f32 v{c}, v{c}, v{c+2}",
                               f"v_mov_b32 v{c+1}, v{c}", "s_nop 1", f"v_permlane32_swap_b32 v{c}, v{c+1}", f"v_add_f32 v{c}, v{c}, v{c+1}"):
                        a("!" + tt if False else tt)
                    for tt in self.aug_split(c, c + 1, c + 2, SB + 16 + 4 * t):
                        a(tt)
                    a(f"ds_write_b128 v218, {vr(SB+16+4*t)} offset:{(3+t)*512}")
                a("s_waitcnt lgkmcnt(0)")
        self.code_jit()
        self.wave_if("s_cmp_lt_u32 s14, 2", halo, pref)
        a(f"s_mul_i32 s37, s14, {N2*1024}")
        a("s_add_u32 s38, s49, s37")
        a("s_barrier")
        self.ts()
        order = [8, 0, 1, 2, 3, 4, 5, 6, 7]
        S = Sched(budget=5)
        for n, i in enumerate(order):
            for s in range(2):
                S.post(2 * n + s - 6, f"ds_read_b128 {vr(KF+8*n+4*s)}, v168 offset:{i*4096+s*1024}")
        for n, i in enumerate(order):
            sb = SB + 16 * (n % 3)
            S.add_main(f"{MF} {vr(sb,16)}, {vr(KF+8*n)}, {vr(Q)}, 0")
            S.add_main(f"{MF} {vr(sb,16)}, {vr(KF+8*n+4)}, {vr(Q+4)}, {vr(sb,16)}")
            e = 2 * n + 3
            dl = 2 * (n + 3)
            if n == 0:
                continue
            if n == 1:
                sd = SB
                for k in range(16):
                    S.fill(f"v_cndmask_b32 v{sb+k}, v{sb+k}, v{sd+k}, s[{64+2*k}:{65+2*k}]", earliest=e, deadline=6)
                S.fill(f"v_max_f32 v216, v{sb}, v{sb+1}", earliest=e, deadline=dl)
                for k in range(1, 8):
                    S.fill(f"v_max3_f32 v216, v216, v{sb+2*k}, v{sb+2*k+1}", earliest=e, deadline=dl)
            else:
                for k in range(8):
                    S.fill(f"v_max3_f32 v216, v216, v{sb+2*k}, v{sb+2*k+1}", earliest=e, deadline=dl)
        if l == 0:
            for k in range(4):
                a(f"v_mov_b32 v{VB+k}, 0")
            for k, g in enumerate(self.zero_groups(VB, (("s21", 0, 2), ("s26", GX[1], 2), ("s28", 5120, 2), ("s26", GX[2], 2)), (GST[1], GST[2]))):
                S.post((3 * k) // 2, self.grp(g), cost=1.5)
        S.emit(a)
        a("v_mov_b32 v217, v216")
        a("v_permlane32_swap_b32 v216, v217")
        a("v_max_f32 v216, v216, v217")
        for k in range(16):
            a(f"v_sub_f32 v{NM+k}, 0, v216")
        nz = 10 if l == 0 else 0
        self.wave_if("s_cmp_lt_u32 s14, 2", lambda: a(f"s_waitcnt vmcnt({nz})"), None)
        a("s_barrier")
        self.ts(2)
        S = Sched(budget=10)
        nv = [0]
        def vread(i, s, gap):
            vb = VB + 4 * (nv[0] % 6); nv[0] += 1
            S.post(gap, f"ds_read_b128 {vr(vb)}, v168 offset:{i*4096+2048+s*1024}")
            return vb
        def smm(n):
            sb = SB + 16 * (n % 3)
            S.add_main(f"{MF} {vr(sb,16)}, {vr(KF+8*n)}, {vr(Q)}, {vr(NM,16)}")
            return S.add_main(f"{MF} {vr(sb,16)}, {vr(KF+8*n+4)}, {vr(Q+4)}, {vr(sb,16)}")
        first = [True]
        def pv(i, pb):
            for s in range(2):
                vb = vread(i, s, len(S.main) - 4)
                c = "0" if first[0] else vr(OA, 16)
                first[0] = False
                S.add_main(f"{MF} {vr(OA,16)}, {vr(vb)}, {vr(pb+4*s)}, {c}")
        def soft(n, e, dl):
            sb = SB + 16 * (n % 3)
            for k in range(8):
                S.fill(f"v_exp_f32 v{sb+2*k}, v{sb+2*k}", earliest=e, deadline=dl)
                S.fill(f"v_exp_f32 v{sb+2*k+1}, v{sb+2*k+1}", earliest=e, deadline=dl)
                if k >= 1:
                    S.fill(f"v_cvt_pk_bf16_f32 v{sb+k-1}, v{sb+2*k-2}, v{sb+2*k-1}", earliest=e, deadline=dl)
            S.fill(f"v_cvt_pk_bf16_f32 v{sb+7}, v{sb+14}, v{sb+15}", earliest=e, deadline=dl)
        smm(0); i1 = smm(1); i2 = smm(2)
        sb1 = SB + 16
        for k in range(16):
            S.fill(f"v_cndmask_b32 v{sb1+k}, v{sb1+k}, v{SB+k}, s[{64+2*k}:{65+2*k}]", earliest=i1 + 1, deadline=6)
        i3 = smm(3)
        soft(1, i1 + 1, 8)
        for k in range(8):
            S.fill(f"v_bfi_b32 v{sb1+8+k}, v{PM+k}, 0, v{sb1+k}", deadline=8)
            S.fill(f"v_and_b32 v{sb1+k}, v{PM+k}, v{sb1+k}", deadline=8)
        pv(8, sb1); pv(0, sb1 + 8)
        send = {2: i2, 3: i3}
        for n in range(2, 9):
            if n + 2 <= 8:
                send[n + 2] = smm(n + 2)
            soft(n, send[n] + 1, len(S.main))
            pv(order[n], SB + 16 * (n % 3))
        for k, g in enumerate(self.dma_groups("s38", 2 * N1 * 1024, "s37", (48 + 2 * N1) * 1024, N2, per=1, flags="sc1")):
            if not (EXP & 1 and l == 1):
                S.post(2 * k, self.grp(g), cost=1.5)
        if l == 0:
            for k, g in enumerate(self.priv_groups(wo_frag, "s58", "s59", 0, 8)):
                S.post(4 * k + 1, self.grp(g), cost=2)
        S.emit(a)
        a(f"v_mov_b32 v216, v{OA+12}")
        a(f"v_mov_b32 v217, v{OA+12}")
        a("v_permlane32_swap_b32 v216, v217")
        a("v_rcp_f32 v217, v217")
        for k in range(16):
            a(f"v_mul_f32 v{OA+k}, v217, v{OA+k}")
            if k in (7, 15):
                h = k // 8
                for kk in range(4):
                    a(f"v_cvt_pk_bf16_f32 v{OA+8*h+kk}, v{OA+8*h+2*kk}, v{OA+8*h+2*kk+1}")
                self.hstore(f"buffer_store_dwordx4 {vr(OA+8*h)}, v0, {SRD}, s21 offen offset:{h*1024}")(a)

    def ksplit_pre(self):
        a = self.a
        AC = 16
        for k in range(8):
            a(f"v_lshlrev_b32 v{AC+2*k}, 16, v{8+k}")
            a(f"v_and_b32 v{AC+2*k+1}, 0xffff0000, v{8+k}")
        for s in range(1, 4):
            a(f"s_xor_b32 s34, s14, {s}")
            a(f"s_mul_i32 s34, s34, 12288")
            a(f"s_add_u32 s34, s34, {(s-1)*4096}")
            a(f"v_add_u32 v{207+s}, s34, v0")
        a(f"s_mul_i32 s34, s14, 12288")
        a("v_add_u32 v211, s34, v0")
        for k in range(4):
            a(f"v_mov_b32 v{212+k}, 0")
        a("v_mov_b32 v216, 0x3f803f80")
        a("v_and_b32 v217, 0xf8, v7")

    def ksplit(self, n, sa0, sa1, wfrag, final, extra=None):
        a = self.a
        AC, AB, NBUF = 16, 80, 16
        loads = []
        for i in range(n):
            for s, sa in ((0, sa0), (1, sa1)):
                st = "s36" if s == 0 else "s37"
                g = []
                if i % 4 == 0:
                    g.append(f"s_add_u32 {st}, {sa}, {i*1024}")
                g.append(f"buffer_load_dwordx4 {vr(AB + 8*(i % NBUF) + 4*s)}, v0, {SRD}, {st} offen offset:{(i%4)*1024} sc1{NTA}")
                loads.append((i, g))
        S = Sched(budget=5)
        TL = KTL
        order = [(i, sl) for i in range(n - TL) for sl in (1, 0, 2, 3)]
        order += [(i, sl) for sl in (1, 2, 3, 0) for i in range(n - TL, n)]
        for (i, sl) in order:
            aa, bb = sl >> 1, sl & 1
            ac = AC + 16 * sl
            c = vr(ac, 16) if (i > 0 or sl == 0) else "0"
            m = S.add_main(f"{MF} {vr(ac,16)}, {wfrag(i,bb)}, {vr(AB + 8*(i % NBUF) + 4*aa)}, {c}")
            if i == n - 1 and sl != 0:
                for q in range(4):
                    S.fill(f"ds_write_b128 v{207+sl}, {vr(AC+16*sl+4*q)} offset:{q*1024}", earliest=m + 2, cost=2.5)
        for k, (i, g) in enumerate(loads):
            pos = -1 if k < KD else max(int(KP * (k - KD)), 4 * (i - NBUF) + 3)
            S.post(pos, self.grp(g), cost=1.5)
        if extra:
            for k, g in enumerate(extra):
                S.post(8 + 2 * k, self.grp(g), cost=2)
        if n == 28:
            for k in (0, 1, 28, 56, 84):
                S.pre(k, lambda aa: self.ts(3))
        S.pre(len(order), lambda aa: self.ts(2))
        S.emit(a)
        a.drain(vm=False)
        a("s_barrier")
        for q in range(4):
            for s in range(3):
                a(f"ds_read_b128 {vr(AB+16*s+4*q)}, v211 offset:{s*4096+q*1024}")
        for h in range(2):
            for q in (2 * h, 2 * h + 1):
                for s in range(3):
                    for k in range(4 * q, 4 * q + 4):
                        a(f"v_add_f32 v{AC+k}, v{AC+k}, v{AB+16*s+k}")
            for k in range(4 * h, 4 * h + 4):
                a(f"v_cvt_pk_bf16_f32 v{8+k}, v{AC+2*k}, v{AC+2*k+1}")
            final(h)

    def store_x(self, xoff, stoff):
        a = self.a
        def fin(h):
            if h == 0:
                a(f"s_add_u32 s34, s26, {xoff}")
            self.hstore(f"buffer_store_dwordx4 {vr(8+4*h)}, v0, {SRD}, s34 offen offset:{h*1024}")(a)
            for k in range(4 * h, 4 * h + 4):
                o = 2 * (k & 1)
                a(f"v_dot2_f32_bf16 v{212+o}, v{8+k}, v216, v{212+o}")
                a(f"v_dot2_f32_bf16 v{213+o}, v{8+k}, v{8+k}, v{213+o}")
            if h == 1:
                a(f"s_add_u32 s35, s27, {stoff}")
                a("v_add_f32 v212, v212, v214")
                a("v_add_f32 v213, v213, v215")
                a("v_mov_b32 v214, v212")
                a("v_mov_b32 v215, v213")
                a("v_permlane32_swap_b32 v212, v214")
                a("v_permlane32_swap_b32 v213, v215")
                a("v_add_f32 v212, v212, v214")
                a("v_add_f32 v213, v213, v215")
                self.hstore(f"buffer_store_dwordx2 v[212:213], v217, {SRD}, s35 offen")(a)
        return fin

    def p3(self, l):
        a = self.a
        Le = self.label("p3end")
        a.drain()
        a("s_barrier")
        self.wave0_else(lambda: self.signal("s30", 0 * 4096, True),
                        (lambda: self.dma3("s49", 106 - 3 * N3, N3, 48 + 106 - 3 * N3)) if N3 else None)
        a("s_cmp_ge_u32 s13, 14")
        a(f"s_cbranch_scc1 {Le}")
        if l == 0:
            for g in self.priv_groups(w2_frag, "s60", "s61", 0, W2A):
                for t in g:
                    a(t)
        self.ksplit_pre()
        self.wave0_else(lambda: self.poll("s29", 0 * 4096, "0xffff"), None)
        a("s_barrier")
        self.ts()
        self.ksplit(8, "s22", "s23", wo_frag, self.store_x(GX[1], GST[1]),
                    self.priv_groups(w2_frag, "s60", "s61", W2A, W2B) if l == 0 else None)
        a.drain()
        a("s_barrier")
        self.wave0_else(lambda: self.signal("s30", 1 * 4096, True), None)
        if CPF >= 2:
            Lx = self.label("p3x")
            a(f"s_branch {Lx}")
            a(f"{Le}:")
            a.uncounted = True
            self.code_ahead()
            a.uncounted = False
            a(f"{Lx}:")
        else:
            a(f"{Le}:")

    def dma3(self, sbase, q0, n3, lds0):
        a = self.a
        a(f"s_mul_i32 s37, s50, {n3*1024}")
        a(f"s_add_u32 s38, {sbase}, s37")
        self.dma("s38", q0 * 1024, "s37", lds0 * 1024, n3, flags="sc1")

    def p4(self, l):
        a = self.a
        X, AC, WB, NB, AB = 16, 128, 192, 5, 212
        self.wave0_else(lambda: self.poll("s29", 1 * 4096, "0x3fff"), None)
        a.drain(lgkm=False)
        a(f"s_mul_i32 s37, s14, {12*1024}")
        a("s_add_u32 s38, s49, s37")
        a("s_barrier")
        self.ts()
        S = Sched(budget=5)
        seq = []
        for ks in range(29):
            for t in range(3):
                seq.append((t, ks))
        for t in range(3, 7):
            for ks in range(29):
                seq.append((t, ks))
        aset = {0: 0, 1: 1, 2: 2, 3: 3, 4: 0, 5: 1, 6: 2}
        idx = {k: n for n, k in enumerate(seq)}
        first = {t: idx[(t, 0)] for t in range(7)}
        last = {t: idx[(t, 28)] for t in range(7)}
        for n, (t, ks) in enumerate(seq):
            wb = WB + 4 * (n % NB)
            if ks < 28:
                base, off = lds_blk(w13_blk(t * 28 + ks))
                S.post(n - NB, f"ds_read_b128 {vr(wb)}, {base} offset:{off}")
                xb = vr(X + 4 * ks)
            else:
                S.post(n - NB, f"ds_read_b128 {vr(wb)}, v4 offset:{(3+t)*512}")
                xb = vr(AB)
            ac = vr(AC + 16 * aset[t], 16)
            S.add_main(f"{MF} {ac}, {vr(wb)}, {xb}, {'0' if ks == 0 else ac}")
        T = AC + 48
        gaps = [int(G4 * k) for k in range(40)]
        gs = self.xstream(S, a, "s15", GX[1], "s32", GST[1], X, T, gaps)
        for t in self.stats_tree(T, 7) + self.stats_finish(T, AB):
            S.fill(t, earliest=gs + 20, deadline=idx[(0, 28)])
        S.fill("v_mul_f32 v217, s55, v217", deadline=idx[(0, 28)])
        g0 = gaps[35 - XD]
        for k, g in enumerate(self.dma_groups("s38", 106 * 1024, "s37", 0, 12, per=1, flags="sc1")):
            if not (EXP & 4 and l == 1):
                S.post(g0 + 2 * k, self.grp(g), cost=1.5)
        assert g0 + 24 < first[3]
        def epi(t, earliest, deadline):
            ac = AC + 16 * aset[t]
            f = lambda s, c=None: S.fill(s, earliest=earliest, deadline=deadline, cost=c)
            for i in range(8):
                f(f"v_mul_f32 v{ac+8+i}, v{ac+i}, v{ac+8+i}")
                f(f"v_mul_f32 v{ac+i}, v217, v{ac+i}")
            for i in range(8):
                f(f"v_exp_f32 v{ac+i}, v{ac+i}")
            for i in range(8):
                f(f"v_fma_f32 v{ac+i}, v{ac+i}, v219, v219")
            for i in range(8):
                f(f"v_rcp_f32 v{ac+i}, v{ac+i}")
            for i in range(8):
                f(f"v_mul_f32 v{ac+i}, v{ac+i}, v{ac+8+i}")
            for i in range(4):
                f(f"v_cvt_pk_bf16_f32 v{ac+i}, v{ac+2*i}, v{ac+2*i+1}")
            if t % 4 == 0:
                f(f"s_add_u32 s39, s28, {t*1024}")
            st_ = f"buffer_store_dwordx4 {vr(ac)}, v0, {SRD}, s39 offen offset:{(t%4)*1024}"
            if t >= 5:
                f(self.hstore(st_), 3)
            else:
                f(st_ + " sc1", 2)
        tokD = a.tok()
        nmid = first[3] + 12
        def midbar(aa):
            aa.drain(vm=True, lgkm=False)
            self.ts(2)
            aa("s_barrier")
            aa(f"s_mul_i32 s37, s14, {11*1024}")
            aa("s_add_u32 s38, s49, s37")
        assert nmid <= idx[(3, 22)] - NB
        S.pre(nmid, midbar)
        for k, g in enumerate(self.dma_groups("s38", 154 * 1024, "s37", 48 * 1024, 11, per=1, flags="sc1")):
            if not (EXP & 4 and l == 1):
                S.post(nmid + 2 * k, self.grp(g, tok=tokD), cost=1.5)
        def bar2(aa):
            self.ts(2)
            aa.wait_tok(tokD)
            aa("s_barrier")
            aa(f"s_mul_i32 s37, s14, {14*1024}")
            aa("s_add_u32 s38, s48, s37")
        nb2 = idx[(5, 14)] - NB
        S.pre(nb2, bar2)
        if l == 0:
            for k, g in enumerate(self.dma_groups("s38", 0, "s37", 98 * 1024, 14, per=1, flags="sc1")):
                S.post(nb2 + 1 + 3 * k, self.grp(g), cost=1.5)
            gs2 = self.priv_groups(w2_frag, "s60", "s61", W2B, 28)
            for k, g in enumerate(gs2):
                p = nmid + 23 + (70 // max(len(gs2), 1)) * k
                if p > nb2 and (p - nb2 - 1) % 3 == 0:
                    p += 1
                S.post(p, self.grp(g), cost=2)
        epi(0, last[2] + 1, first[4])
        epi(1, last[2] + 1, first[5])
        epi(2, last[2] + 1, first[6])
        for t in range(3, 7):
            epi(t, last[t] + 2, None)
        S.pre(len(seq), lambda aa: self.ts(2))
        for k in (0, 1, 21, 42, 63):
            S.pre(k, lambda aa: self.ts(3))
        S.emit(a)

    def p5(self, l):
        a = self.a
        Le = self.label("p5end")
        a.drain()
        a("s_barrier")
        self.wave0_else(lambda: self.signal("s30", 2 * 4096, True),
                        (lambda: self.dma3("s48", 54, 10, 68)) if l == 0 else None)
        if l == 0:
            self.code_jit()
        a("s_cmp_ge_u32 s13, 14")
        a(f"s_cbranch_scc1 {Le}")
        self.ksplit_pre()
        if l == 1:
            a("v_bfe_u32 v212, v7, 3, 5")
            a("v_mul_u32_u24 v212, 896, v212")
            a("v_bfe_u32 v213, v7, 8, 1")
            a("v_lshl_add_u32 v212, v213, 4, v212")
        self.wave0_else(lambda: self.poll("s29", 2 * 4096, "0xffff"), None)
        a("s_barrier")
        self.ts()
        if l == 0:
            self.ksplit(28, "s24", "s25", w2_frag, self.store_x(GX[2], GST[2]))
            a.drain()
            a("s_barrier")
            self.wave0_else(lambda: self.signal("s30", 3 * 4096, True), None)
        else:
            self.ksplit(28, "s24", "s25", w2_frag,
                        lambda h: a(f"buffer_store_dwordx4 {vr(8+4*h)}, v212, s[8:11], s57 offen offset:{32*h}"))
        if CPF >= 2 and l == 0:
            Lx = self.label("p5x")
            a(f"s_branch {Lx}")
            a(f"{Le}:")
            a.uncounted = True
            self.code_ahead()
            a.uncounted = False
            a(f"{Lx}:")
        else:
            a(f"{Le}:")

    def build(self):
        a = self.a
        self.nts = 28
        self.prologue()
        for l in range(2):
            self.nts = 0
            if l == 0:
                a.wait_tok(self.tokW[0])
            else:
                a.drain()
            a("s_barrier")
            self.ts()
            self.dts()
            ph = [self.p1, self.p2, self.p3, self.p4, self.p5]
            for k, p in enumerate(ph):
                p(l)
                self.ts()
                self.dts()
                if STOP == 5 * l + k + 1:
                    a("s_branch main_done")
            if l == 0:
                self.wave0_else(lambda: self.poll("s29", 3 * 4096, "0x3fff"), None)
                for s, d in (("s19", 0x40000), ("s20", 0x40000), ("s29", 4 * 4096), ("s30", 4 * 4096), ("s31", 0x8000), ("s62", 0x8000)):
                    a(f"s_add_u32 {s}, {s}, {d}")
                for s in ("s15", "s32", "s21", "s22", "s23", "s24", "s25", "s26", "s27", "s28"):
                    a(f"s_add_u32 {s}, {s}, s63")
                if TS:
                    a("s_add_u32 s51, s51, 256")
        a("main_done:")
        a("s_endpgm")
        txt, n = a.finish()
        return txt


def gen_main():
    return G().build()

MAIN_KD = dict(vgpr=512, sgpr=102, accum=256, grid=256, block=256, lds=LDS_BYTES)
```
